```python
import torch

def _softmax(x, axis=-1):
    return torch.softmax(x, dim=axis)
def _gelu(x):
    return torch.nn.functional.gelu(x, approximate="tanh")
def _silu(x):
    return torch.nn.functional.silu(x)
def _sigmoid(x):
    return torch.sigmoid(x)
def _layernorm(x, axis=-1, eps=1e-5):
    m = x.mean(dim=axis, keepdim=True)
    v = x.var(dim=axis, keepdim=True, unbiased=False)
    return (x - m) / torch.sqrt(v + eps)
def _scatter_add(tgt, idx, src, axis=0):
    return tgt.clone().index_add_(axis, idx, src)
def _segment_sum(src, seg, n):
    out = torch.zeros((n,) + src.shape[1:], dtype=src.dtype)
    return out.index_add_(0, seg, src)
def _pad(x, pw):
    flat = tuple(v for pair in reversed(pw) for v in pair)
    return torch.nn.functional.pad(x, flat)

kernel_name = 'concat_heads__gqa_block_cached__mha_block_cached__near_ridge'

def setup_inputs():

    _w = (lambda a: (lambda t: t.to(torch.bfloat16) if t.is_floating_point() else t)(torch.as_tensor(a)))
    def _A_setup():
        B, Sq, D = 8, 144, 576
        Hq, Hkv, Sk, Dh = 32, 16, 1024, 128
        assert Hq % Hkv == 0, (Hq, Hkv)
        return {
            "x": _w((lambda *s: torch.randn(*s, dtype=torch.bfloat16) * 0.8)(B, Sq, D)),
            "k_cache": _w((lambda *s: torch.randn(*s, dtype=torch.bfloat16) * 0.8)(B, Hkv, Sk, Dh)),
            "v_cache": _w((lambda *s: torch.randn(*s, dtype=torch.bfloat16) * 0.05)(B, Hkv, Sk, Dh)),
            "wq": _w((lambda *s: torch.randn(*s, dtype=torch.bfloat16) * 0.8)(D, Hq * Dh) * (D ** -0.5)),
            "wo": _w((lambda *s: torch.randn(*s, dtype=torch.bfloat16) * 0.05)(Hq * Dh, D) * ((Hq * Dh) ** -0.5)),
        }
    _A_in = _A_setup()

    def _B_setup():
        B, Sq, D = 8, 144, 576
        H, Sk, Dh = 32, 1024, 128
        return {
            "x": _w((lambda *s: torch.randn(*s, dtype=torch.bfloat16) * 0.8)(B, Sq, D)),
            "k_cache": _w((lambda *s: torch.randn(*s, dtype=torch.bfloat16) * 0.8)(B, H, Sk, Dh)),
            "v_cache": _w((lambda *s: torch.randn(*s, dtype=torch.bfloat16) * 0.05)(B, H, Sk, Dh)),
            "wq": _w((lambda *s: torch.randn(*s, dtype=torch.bfloat16) * 0.8)(D, H * Dh) * (D ** -0.5)),
            "wo": _w((lambda *s: torch.randn(*s, dtype=torch.bfloat16) * 0.05)(H * Dh, D) * ((H * Dh) ** -0.5)),
        }
    _B_in = _B_setup()

    return {
        "A_x": _A_in["x"],
        "A_k_cache": _A_in["k_cache"],
        "A_v_cache": _A_in["v_cache"],
        "A_wq": _A_in["wq"],
        "A_wo": _A_in["wo"],
        "B_x": _B_in["x"],
        "B_k_cache": _B_in["k_cache"],
        "B_v_cache": _B_in["v_cache"],
        "B_wq": _B_in["wq"],
        "B_wo": _B_in["wo"],
    }

def reference(A_x, A_k_cache, A_v_cache, A_wq, A_wo, B_x, B_k_cache, B_v_cache, B_wq, B_wo):
    def _A_ref(x, k_cache, v_cache, wq, wo):
        B, Sq, D = x.shape
        Hq, Dh = 32, 128
        Hkv = k_cache.shape[1]
        rep = Hq // Hkv
        q = (lambda x, *d: x.permute(*d))((x @ wq).reshape(B, Sq, Hq, Dh), 0, 2, 1, 3)
        k = (lambda x, n, axis: torch.repeat_interleave(x, n, dim=axis))(k_cache, rep, axis=1)
        v = (lambda x, n, axis: torch.repeat_interleave(x, n, dim=axis))(v_cache, rep, axis=1)
        scores = torch.einsum("bhqd,bhkd->bhqk", q, k) * (Dh ** -0.5)
        p = _softmax(scores, axis=-1)
        o = torch.einsum("bhqk,bhkd->bhqd", p, v)
        return (lambda x, *d: x.permute(*d))(o, 0, 2, 1, 3).reshape(B, Sq, Hq * Dh) @ wo

    def _B_ref(x, k_cache, v_cache, wq, wo):
        B, Sq, D = x.shape
        H, Dh = 32, 128
        q = (lambda x, *d: x.permute(*d))((x @ wq).reshape(B, Sq, H, Dh), 0, 2, 1, 3)
        scores = torch.einsum("bhqd,bhkd->bhqk", q, k_cache) * (Dh ** -0.5)
        p = _softmax(scores, axis=-1)
        o = torch.einsum("bhqk,bhkd->bhqd", p, v_cache)
        return (lambda x, *d: x.permute(*d))(o, 0, 2, 1, 3).reshape(B, Sq, H * Dh) @ wo

    a = _A_ref(A_x, A_k_cache, A_v_cache, A_wq, A_wo)
    b = _B_ref(B_x, B_k_cache, B_v_cache, B_wq, B_wo)
    return torch.concatenate([a, b], axis=-1)
```

```python
import re
import sys

sys.setrecursionlimit(1000000)

REG_RE = re.compile(r'^(-?)(abs\()?([vsa])(?:(\d+)|\[(\d+):(\d+)\])\)?$')
TRANS = ('v_exp_f32', 'v_log_f32', 'v_rcp_f32', 'v_rsq_f32', 'v_sqrt_f32', 'v_sin_f32', 'v_cos_f32', 'v_rcp_iflag_f32')


def regs_of(tok):
    tok = tok.strip()
    if tok in ('vcc', 'vcc_lo', 'vcc_hi'):
        return {'vcc'}
    if tok in ('exec', 'exec_lo', 'exec_hi'):
        return {'exec'}
    if tok == 'm0':
        return {'m0'}
    m = REG_RE.match(tok)
    if not m:
        return set()
    f = m.group(3)
    if m.group(4) is not None:
        return {f + m.group(4)}
    return {f + str(i) for i in range(int(m.group(5)), int(m.group(6)) + 1)}


def split_ops(s):
    out, depth, cur = [], 0, ''
    for ch in s:
        if ch in '[(':
            depth += 1
        if ch in '])':
            depth -= 1
        if ch == ',' and depth == 0:
            out.append(cur.strip())
            cur = ''
        else:
            cur += ch
    if cur.strip():
        out.append(cur.strip())
    return out


class I:
    __slots__ = ('text', 'op', 'ops', 'mods', 'kind', 'w', 'r', 'passes', 'srcA', 'srcB', 'srcC', 'states',
                 'target', 'label', 'lds_dma', 'data', 'widestore', 'lanesel', 'constread')

    def __init__(self, text):
        self.text = text
        self.label = None
        self.op = None
        self.kind = None
        self.w = set()
        self.r = set()
        self.passes = 0
        self.srcA = self.srcB = self.srcC = set()
        self.states = 1
        self.target = None
        self.lds_dma = False
        self.data = set()
        self.widestore = False
        self.lanesel = set()
        self.constread = set()
        body = text.split(';')[0].strip()
        if not body:
            self.kind = 'none'
            self.states = 0
            return
        if body.endswith(':'):
            self.kind = 'label'
            self.label = body[:-1]
            self.states = 0
            return
        if body.startswith('.'):
            self.kind = 'none'
            self.states = 0
            return
        parts = body.split(None, 1)
        op = parts[0]
        self.op = op
        rest = parts[1] if len(parts) > 1 else ''
        ops = split_ops(rest)
        mods = []
        if ops:
            lastw = ops[-1].split()
            ops[-1] = lastw[0]
            mods = lastw[1:]
        self.ops = ops
        self.mods = mods
        R = [regs_of(o) for o in ops]
        base = re.sub(r'_e(32|64)$', '', op)
        if base.startswith('v_mfma'):
            self.kind = 'mfma'
            self.passes = 8 if '32x32x16' in base else 4 if '16x16x32' in base else None
            assert self.passes, text
            self.w = R[0]
            self.srcA, self.srcB, self.srcC = R[1], R[2], R[3]
            self.r = R[1] | R[2] | R[3] | {'exec'}
        elif base.startswith('v_'):
            self.kind = 'trans' if base in TRANS else 'valu'
            self.r = {'exec'}
            if base.startswith('v_permlane') and base.endswith('swap_b32'):
                self.w = R[0] | R[1]
                self.r |= R[0] | R[1]
                self.kind = 'permlane'
            elif base in ('v_add_co_u32', 'v_sub_co_u32', 'v_subrev_co_u32'):
                self.w = R[0] | R[1]
                for x in R[2:]:
                    self.r |= x
            elif base in ('v_addc_co_u32', 'v_subb_co_u32'):
                self.w = R[0] | R[1]
                for x in R[2:]:
                    self.r |= x
            elif base in ('v_readfirstlane_b32', 'v_readlane_b32'):
                self.w = R[0]
                self.r |= R[1]
                self.kind = 'readlane'
                if len(R) > 2:
                    self.lanesel = R[2]
                    self.r |= R[2]
            else:
                self.w = R[0]
                for x in R[1:]:
                    self.r |= x
                if base in ('v_fmac_f32', 'v_pk_fmac_f16', 'v_dot2c_f32_bf16'):
                    self.r |= R[0]
                if base.startswith('v_cmpx'):
                    self.w |= {'exec'}
            self.constread = {x for x in self.r if x[0] == 's' or x == 'vcc'}
        elif base.startswith('ds_'):
            self.kind = 'ds'
            self.r = {'exec'}
            if base.startswith('ds_read') or base.startswith('ds_swizzle'):
                self.w = R[0]
                self.r |= R[1]
            elif base.startswith('ds_bpermute') or base.startswith('ds_permute'):
                self.w = R[0]
                self.r |= R[1] | R[2]
            elif base.startswith('ds_write'):
                for x in R:
                    self.r |= x
            else:
                raise ValueError('unknown ds ' + text)
        elif base.startswith('buffer_') or base.startswith('global_'):
            self.kind = 'vmem'
            self.r = {'exec'}
            if base in ('buffer_wbl2', 'buffer_inv'):
                pass
            elif 'lds' in mods or '_lds_' in base:
                self.lds_dma = True
                for x in R:
                    self.r |= x
                self.r |= {'m0'}
            elif base.startswith('buffer_load'):
                self.w = R[0]
                for x in R[1:]:
                    self.r |= x
            elif base.startswith('global_load'):
                self.w = R[0]
                for x in R[1:]:
                    self.r |= x
            elif base.startswith('buffer_store'):
                for x in R:
                    self.r |= x
                self.data = R[0]
                self.widestore = base.endswith('x4') or base.endswith('x3')
            elif base.startswith('global_store'):
                for x in R:
                    self.r |= x
                self.data = R[1]
                self.widestore = base.endswith('x4') or base.endswith('x3')
            elif base.startswith('buffer_atomic'):
                for x in R:
                    self.r |= x
                if 'sc0' in mods:
                    self.w = R[0]
            elif base.startswith('global_atomic'):
                if 'sc0' in mods:
                    self.w = R[0]
                    for x in R[1:]:
                        self.r |= x
                else:
                    for x in R:
                        self.r |= x
            else:
                raise ValueError('unknown vmem ' + text)
        elif base.startswith('s_load') or base.startswith('s_buffer_load') or base in ('s_memtime', 's_memrealtime'):
            self.kind = 'smem'
            self.w = R[0]
            for x in R[1:]:
                self.r |= x
        elif base == 's_nop':
            self.kind = 'nop'
            self.states = int(ops[0], 0) + 1
        elif base == 's_waitcnt':
            self.kind = 'wait'
        elif base in ('s_barrier', 's_setprio', 's_sleep'):
            self.kind = 'smisc'
        elif base == 's_endpgm':
            self.kind = 'end'
        elif base == 's_branch':
            self.kind = 'branch'
            self.target = ops[0]
        elif base.startswith('s_cbranch'):
            self.kind = 'cbranch'
            self.target = ops[0]
            if 'vcc' in base:
                self.r = {'vcc'}
            elif 'exec' in base:
                self.r = {'exec'}
        elif base.startswith('s_cmp') or base.startswith('s_bitcmp'):
            self.kind = 'salu'
            for x in R:
                self.r |= x
        elif base.startswith('s_'):
            self.kind = 'salu'
            self.w = R[0]
            for x in R[1:]:
                self.r |= x
            if 'saveexec' in base:
                self.w |= {'exec'}
                self.r |= {'exec'}
            if base in ('s_addk_i32', 's_mulk_i32'):
                self.r |= R[0]
        else:
            raise ValueError('unknown instruction ' + text)


def is_valu(i):
    return i.kind in ('valu', 'trans', 'permlane', 'readlane')


def vregs(s):
    return {x for x in s if x[0] in 'va' and x not in ('vcc',)}


def sregs(s):
    return {x for x in s if x[0] == 's' or x == 'vcc'}


def need(p, c):
    n = 0
    if is_valu(p):
        pw_v = vregs(p.w)
        pw_s = sregs(p.w)
        if c.kind == 'mfma' and pw_v & (c.srcA | c.srcB | c.srcC):
            n = max(n, 2)
        if c.kind == 'mfma' and 'exec' in p.w:
            n = max(n, 4)
        if p.kind == 'trans' and c.kind in ('valu', 'permlane', 'readlane') and pw_v & c.r:
            n = max(n, 1)
        if c.kind == 'readlane' and pw_v & c.r:
            n = max(n, 1)
        if c.kind == 'permlane' and pw_v & c.r:
            n = max(n, 2)
        if pw_s:
            if is_valu(c) and pw_s & c.constread:
                n = max(n, 2)
            if c.kind == 'readlane' and pw_s & c.lanesel:
                n = max(n, 4)
            if c.kind == 'vmem' and pw_s & c.r:
                n = max(n, 5)
            if c.kind in ('salu', 'smem') and pw_s & c.r:
                n = max(n, 1)
        if 'exec' in p.w and c.kind in ('readlane', 'permlane'):
            n = max(n, 4)
    if p.kind == 'mfma':
        D = p.w
        big = {4: 8, 8: 12}[p.passes]
        ovl = {4: 6, 8: 10}[p.passes]
        war = {4: 3, 8: 7}[p.passes]
        if c.kind == 'mfma':
            if D & (c.srcA | c.srcB):
                n = max(n, big)
            if D & c.srcC:
                if not (c.srcC == D and c.passes == p.passes):
                    n = max(n, ovl)
            elif D & c.w:
                n = max(n, ovl if c.passes < p.passes else 0)
        elif is_valu(c) or c.kind in ('vmem', 'ds'):
            if D & (c.r | c.w):
                n = max(n, big)
        if is_valu(c) and p.srcC & c.w:
            n = max(n, war)
    if p.kind == 'salu' and 'm0' in p.w and c.kind == 'vmem' and c.lds_dma:
        n = max(n, 1)
    if p.kind == 'vmem' and p.widestore and p.data & c.w:
        n = max(n, 2)
    return n


def build(lines):
    ins = [I(t) for t in lines]
    labels = {x.label: k for k, x in enumerate(ins) if x.kind == 'label'}
    succ = [[] for _ in ins]
    for k, x in enumerate(ins):
        if x.kind == 'end':
            continue
        if x.kind == 'branch':
            succ[k].append(labels[x.target])
            continue
        if x.kind == 'cbranch':
            succ[k].append(labels[x.target])
        if k + 1 < len(ins):
            succ[k].append(k + 1)
    pred = [[] for _ in ins]
    for k, ss in enumerate(succ):
        for s in ss:
            pred[s].append(k)
    return ins, succ, pred


MAXD = 14


def fix_hazards(lines, verbose=False):
    total = 0
    for it in range(300):
        ins, succ, pred = build(lines)
        add = {}
        for k, c in enumerate(ins):
            if c.kind in ('none', 'label', 'nop', 'wait', 'smisc', 'end', 'branch'):
                continue
            worst = 0
            seen = {}
            stack = [(p, 0) for p in pred[k]]
            while stack:
                p, d = stack.pop()
                if d >= MAXD:
                    continue
                if seen.get(p, 99) <= d:
                    continue
                seen[p] = d
                x = ins[p]
                if x.states:
                    n = need(x, c)
                    if n > d:
                        worst = max(worst, n - d)
                for q in pred[p]:
                    stack.append((q, d + x.states))
            if worst:
                add[k] = worst
        if not add:
            break
        lastk = -100
        for k in sorted(add):
            if k - lastk < 20:
                del add[k]
            else:
                lastk = k
        out = []
        for k, t in enumerate(lines):
            if k in add:
                n = add[k]
                total += n
                if verbose:
                    print('  nop %d before: %s' % (n, t.strip()))
                while n > 0:
                    m = min(n, 16)
                    out.append('    s_nop %d' % (m - 1))
                    n -= m
            out.append(t)
        lines = out
    else:
        raise RuntimeError('hazard fix did not converge')
    return lines, total


WAIT_RE = re.compile(r'(vmcnt|lgkmcnt|expcnt)\((\d+)\)')


def check_waits(lines):
    ins, succ, pred = build(lines)
    errs = []
    seen = set()
    stack = [(0, (), ())]
    nstates = 0
    while stack:
        k, lq, vq = stack.pop()
        while True:
            key = (k, lq, vq)
            if key in seen:
                break
            seen.add(key)
            nstates += 1
            if nstates > 3000000:
                raise RuntimeError('too many states')
            x = ins[k]
            if x.states or x.kind == 'wait':
                touched = x.r | x.w
                for q, nm in ((lq, 'lgkm'), (vq, 'vm')):
                    for (kind, regs) in q:
                        if regs & touched:
                            errs.append('line %d: %s touches %s with outstanding %s load' % (k, x.text.strip(), sorted(regs & touched), nm))
                if x.kind == 'wait':
                    for nm, n in WAIT_RE.findall(x.text.split(';')[0]):
                        n = int(n)
                        if nm == 'vmcnt':
                            vq = vq[len(vq) - n:] if n < len(vq) else vq
                            if n == 0:
                                vq = ()
                        elif nm == 'lgkmcnt':
                            if n == 0:
                                lq = ()
                            elif not any(kind == 's' for kind, _ in lq):
                                lq = lq[len(lq) - n:] if n < len(lq) else lq
                elif x.kind == 'ds':
                    lq = lq + (('d', frozenset(x.w)),)
                    if len(lq) > 40:
                        lq = lq[-40:]
                elif x.kind == 'smem':
                    lq = lq + (('s', frozenset(x.w)),)
                elif x.kind == 'vmem':
                    vq = vq + (('v', frozenset(x.w)),)
                    if len(vq) > 70:
                        vq = vq[-70:]
            ss = succ[k]
            if not ss:
                break
            for s in ss[1:]:
                stack.append((s, lq, vq))
            k = ss[0]
    return sorted(set(errs))
```

```python
import math
import struct
import sys

sys.path.insert(0, 'gen')
import chk

NAME = 'concat_heads__gqa_block_cached__mha_block_cached__near_ridge'
OUT = 'cdna_kernels/%s.s' % NAME


def f32(x):
    return '0x%08x' % struct.unpack('<I', struct.pack('<f', x))[0]


def vr(a, n=1):
    return 'v%d' % a if n == 1 else 'v[%d:%d]' % (a, a + n - 1)


def sr(a, n=1):
    return 's%d' % a if n == 1 else 's[%d:%d]' % (a, a + n - 1)


class P:
    def __init__(s):
        s.L = []

    def __call__(s, t):
        for x in t.strip('\n').split('\n'):
            x = x.strip()
            if x:
                s.L.append('    ' + x)

    def label(s, n):
        s.L.append(n + ':')

    def c(s, t):
        s.L.append('    ; ' + t)

    def ext(s, items):
        for x in items:
            if x.endswith(':'):
                s.L.append(x)
            else:
                s.L.append('    ' + x)


LDS_TOTAL = 163840
SLOT = 16384
STG = 32768
CHUNK = 25600
NBUF = 5
NCH = 18
OWS_B = 1179648
PART_OFF = 32 << 20

vO = 0
vOr = 64
vQ = 96
vQr = 128
vS = [144, 160]
vNM = 176
vSr = 192
vNMr = 200
vF = 204
vL0, vL1, vLr = 236, 237, 238
vKa = [239, 240]
vVa = 241
bKr, bVr = 242, [243, 244]
vT = [245, 246]
voffK, voffV = 247, 248
vMx, vA, vB, vC = 249, 250, 251, 252
vLane = 254
qSet = [144, 164]
qRem = 184
qBase = 196
qCur = 201
voffW, voffX, voffX9 = 206, 207, 208

sX, sW, sK, sV, sO = 4, 8, 12, 16, 20
sW8, sE, sWv, sB, sHP = 24, 25, 26, 27, 28
sCur, sPrev, sWr, sDelta = 30, 31, 32, 33
sSv, sSv1, sSk0, sSk1 = 34, 35, 36, 37
sCnt, sT0, sSel, sIsY = 38, 39, 42, 43
sEx = 40
sPtr = 44
sScale, sThr = 54, 55
sMb, sMw, sMx, sT1, sT2 = 56, 57, 58, 59, 60

LOOK = 6
THR = 8.0


def resolve_waits(items, ctxs):
    def is_lds(x):
        return (isinstance(x, tuple) and x[0] == 'R') or (isinstance(x, str) and x.startswith('ds_'))
    res = {}
    for ctx in ctxs:
        seq = list(ctx) + list(items)
        off = len(ctx)
        cnt = 0
        pos = {}
        for k, x in enumerate(seq):
            if is_lds(x):
                cnt += 1
                if isinstance(x, tuple):
                    pos[x[1]] = cnt
            elif isinstance(x, tuple) and x[0] == 'W' and k >= off:
                last = max(pos[i] for i in x[1])
                n = min(cnt - last, 15)
                res[k - off] = min(res.get(k - off, 99), n)
    out = []
    for k, x in enumerate(items):
        if isinstance(x, tuple):
            if x[0] == 'R':
                out.append(x[2])
            else:
                out.append('s_waitcnt lgkmcnt(%d)' % res[k])
        else:
            out.append(x)
    return out


def softmax_stream(S, n, lregs):
    st = []
    ops = []
    for i in range(0, n, 2):
        ops.append([('e', i), ('e', i + 1)])
    seq = []
    pend = []
    for grp in ops:
        seq.append(grp[0])
        seq += pend
        seq.append(grp[1])
        i = grp[0][1]
        pend = [('a', i), ('a', i + 1), ('c', i)]
    seq.append(('n', 0))
    seq += pend
    for k, i in seq:
        if k == 'e':
            st.append((2, 'v_exp_f32 %s, %s' % (vr(S + i), vr(S + i))))
        elif k == 'a':
            l = lregs[i % len(lregs)]
            st.append((1, 'v_add_f32 %s, %s, %s' % (vr(l), vr(l), vr(S + i))))
        elif k == 'c':
            dst = S + (i // 8) * 8 + (i % 8) // 2
            st.append((1, 'v_cvt_pk_bf16_f32 %s, %s, %s' % (vr(dst), vr(S + i), vr(S + i + 1))))
    return st


def max_stream(S, n, dst):
    st = [(1, 'v_max3_f32 %s, %s, %s, %s' % (vr(dst), vr(S), vr(S + 1), vr(S + 2)))]
    i = 3
    while i + 1 < n:
        st.append((1, 'v_max3_f32 %s, %s, %s, %s' % (vr(dst), vr(dst), vr(S + i), vr(S + i + 1))))
        i += 2
    if i < n:
        st.append((1, 'v_max_f32 %s, %s, %s' % (vr(dst), vr(dst), vr(S + i))))
    return st


def xhalf_max(x):
    return ['v_mov_b32 %s, %s' % (vr(vA), vr(x)), 'v_mov_b32 %s, %s' % (vr(vB), vr(x)),
            'v_permlane32_swap_b32 %s, %s' % (vr(vA), vr(vB)),
            'v_max_f32 %s, %s, %s' % (vr(x), vr(vA), vr(vB))]


def x16_op(x, op):
    return ['ds_swizzle_b32 %s, %s offset:0x401F' % (vr(vA), vr(x)), 's_waitcnt lgkmcnt(0)',
            '%s %s, %s, %s' % (op, vr(x), vr(x), vr(vA))]


def xhalf_op(x, op):
    return ['v_mov_b32 %s, %s' % (vr(vA), vr(x)), 'v_mov_b32 %s, %s' % (vr(vB), vr(x)),
            'v_permlane32_swap_b32 %s, %s' % (vr(vA), vr(vB)),
            '%s %s, %s, %s' % (op, vr(x), vr(vA), vr(vB))]


class Attn:
    def __init__(s, typ, heavy):
        s.typ, s.heavy = typ, heavy
        s.tag = ('A' if typ == 0 else 'B') + ('H' if heavy else 'L')
        s.D = 8 if typ == 0 else 3
        s.nd = 2 if typ == 0 else 4
        s.stride = SLOT if typ == 0 else 2 * SLOT
        s.rid = 0
        s.rare = []

    def pv_slots(s, par, init):
        So = vS[1 - par]
        out = []
        for us in range(2):
            for jt in range(4):
                def mk(f, us=us, jt=jt):
                    c = '0' if (init and us == 0) else vr(vO + 16 * jt, 16)
                    mf = 'v_mfma_f32_32x32x16_bf16 %s, %s, %s, %s' % (vr(vO + 16 * jt, 16), vr(f, 4), vr(So + 8 * us, 4), c)
                    rd = ['ds_read_b64_tr_b16 %s, %s offset:%d' % (vr(f + 2 * p, 2), vr(vVa), us * 4096 + p * 2048 + jt * 256) for p in range(2)]
                    return mf, rd
                out.append(('big', 'pv', mk))
        return out

    def qk_slots(s, par, czero=False):
        So = vS[1 - par]
        out = []
        for st in range(8):
            def mk(f, st=st):
                c = ('0' if czero else vr(vNM, 16)) if st == 0 else vr(So, 16)
                mf = 'v_mfma_f32_32x32x16_bf16 %s, %s, %s, %s' % (vr(So, 16), vr(f, 4), vr(vQ + 4 * st, 4), c)
                rd = ['ds_read_b128 %s, %s offset:%d' % (vr(f, 4), vr(vKa[st & 1]), (st >> 1) * 256)]
                return mf, rd
            out.append(('big', 'qk', mk))
        return out

    def rqk_slots(s, init):
        out = []
        for st in range(4):
            for z in range(2):
                def mk(f, st=st, z=z):
                    c = ('0' if init else vr(vNMr, 4)) if st == 0 else vr(vSr + 4 * z, 4)
                    mf = 'v_mfma_f32_16x16x32_bf16 %s, %s, %s, %s' % (vr(vSr + 4 * z, 4), vr(f, 4), vr(vQr + 4 * st, 4), c)
                    rd = ['ds_read_b128 %s, %s offset:%d' % (vr(f, 4), vr(vT[0]), z * 4096 + st * 256)]
                    return mf, rd
                out.append(('small', 'rqk', mk))
        return out

    def rpv_slots(s, init):
        out = []
        for T in range(8):
            def mk(f, T=T):
                c = '0' if init else vr(vOr + 4 * T, 4)
                mf = 'v_mfma_f32_16x16x32_bf16 %s, %s, %s, %s' % (vr(vOr + 4 * T, 4), vr(f, 4), vr(vSr, 4), c)
                rd = ['ds_read_b64_tr_b16 %s, %s offset:%d' % (vr(f + 2 * p, 2), vr(vT[T & 1]), p * 4096 + (T >> 1) * 256) for p in range(2)]
                return mf, rd
            out.append(('small', 'rpv', mk))
        return out

    def dma_items(s):
        g = []
        g.append(['s_add_u32 m0, %s, %s' % (sr(sWr), sr(sMb)), 's_nop 0',
                  'buffer_load_dwordx4 %s, %s, %s offen lds' % (vr(voffK), sr(sK, 4), sr(sSk0))])
        if s.typ == 1:
            g.append(['s_add_u32 m0, m0, 0x1000', 's_nop 0',
                      'buffer_load_dwordx4 %s, %s, %s offen lds' % (vr(voffK), sr(sK, 4), sr(sSk1))])
            g.append(['s_add_u32 m0, m0, 0x1000', 's_nop 0',
                      'buffer_load_dwordx4 %s, %s, %s offen lds' % (vr(voffV), sr(sV, 4), sr(sSv))])
            g.append(['s_add_u32 m0, m0, 0x1000', 's_nop 0',
                      'buffer_load_dwordx4 %s, %s, %s offen lds' % (vr(voffV), sr(sV, 4), sr(sSv1))])
        else:
            g.append(['s_add_u32 m0, m0, 0x2000', 's_nop 0',
                      'buffer_load_dwordx4 %s, %s, %s offen lds' % (vr(voffV), sr(sV, 4), sr(sSv))])
        return g

    def advance(s, nextpar):
        o = ['s_mov_b32 %s, %s' % (sr(sWr), sr(sPrev)),
             's_mov_b32 %s, %s' % (sr(sPrev), sr(sCur)),
             's_add_u32 %s, %s, 0x%x' % (sr(sCur), sr(sCur), s.stride),
             's_cmp_ge_u32 %s, 0x%x' % (sr(sCur), LDS_TOTAL),
             's_cselect_b32 %s, 0x%x, 0' % (sr(sT0), LDS_TOTAL),
             's_sub_u32 %s, %s, %s' % (sr(sCur), sr(sCur), sr(sT0)),
             's_sub_u32 %s, %s, %s' % (sr(sDelta), sr(sCur), sr(sPrev)),
             's_add_u32 %s, %s, 0x2000' % (sr(sSv), sr(sSv)),
             's_add_u32 %s, %s, 0x2000' % (sr(sSk0), sr(sSk0))]
        if s.typ == 1:
            o += ['s_add_u32 %s, %s, 0x2000' % (sr(sSv1), sr(sSv1)),
                  's_add_u32 %s, %s, 0x2000' % (sr(sSk1), sr(sSk1))]
        o += ['v_add_u32 %s, %s, %s' % (vr(vKa[0]), sr(sDelta), vr(vKa[0])),
              'v_add_u32 %s, %s, %s' % (vr(vKa[1]), sr(sDelta), vr(vKa[1]))]
        if s.heavy:
            o += ['s_cmp_eq_u32 %s, 0' % sr(sIsY),
                  's_cselect_b32 %s, %s, %s' % (sr(sSel), sr(sPrev), sr(sCur))]
            if nextpar == 0:
                o += ['v_add_u32 %s, %s, %s' % (vr(vT[0]), sr(sSel), vr(bKr))]
            else:
                o += ['v_add_u32 %s, %s, %s' % (vr(vT[0]), sr(sSel), vr(bVr[0])),
                      'v_add_u32 %s, %s, %s' % (vr(vT[1]), sr(sSel), vr(bVr[1]))]
        return o

    def pair(s, kind):
        first, last = kind == 'first', kind == 'last'
        slots = []
        starts = []
        for par in range(2):
            starts.append(len(slots))
            pv = s.pv_slots(par, init=(first and par == 1))
            if first and par == 0:
                pv = [None] * 8
            slots += pv
            if s.heavy:
                slots += s.rqk_slots(init=first) if par == 0 else s.rpv_slots(init=first)
            qk = s.qk_slots(par)
            if last and par == 1:
                qk = [None] * 8
            slots += qk
        n = len(slots)
        assert n % 8 == 0
        nxt = s.pv_slots(0, init=False)
        allslots = slots + nxt
        made = []
        for k, sl in enumerate(allslots):
            if sl is None:
                made.append(None)
            else:
                mf, rd = sl[2](vF + 4 * (k % 8))
                ids = ['%d_%d' % (k % n if k < n else k - n, i) for i in range(len(rd))]
                made.append((sl[0], sl[1], mf, rd, ids))
        items = []
        nread = 0 if first else LOOK
        rares = []

        def emit_reads(upto):
            nonlocal nread
            while nread <= upto and nread < n + LOOK:
                m = made[nread]
                if m is not None:
                    for i, t in zip(m[4], m[3]):
                        items.append(('R', i, t))
                nread += 1

        for par in range(2):
            a = starts[par]
            b = starts[1] if par == 0 else n
            S = vS[par]
            nocheck = first and par == 0
            if last and par == 1:
                nv = (s.D - 2) * s.nd
            else:
                nv = (s.D - 1) * s.nd
            items.append('s_waitcnt vmcnt(%d)' % nv)
            items.append('s_barrier')
            dma = [] if last else s.dma_items()
            mainq = []
            if not nocheck:
                mainq += max_stream(S, 16, vMx)
                mainq.append((1, 'v_cmp_lt_f32 vcc, %s, %s' % (sr(sThr), vr(vMx))))
                mainq.append((0, 'BR_MAIN'))
            mainq += softmax_stream(S, 16, [vL0, vL1])
            remq = []
            rem_ready = None
            if s.heavy and par == 0:
                remq += max_stream(vSr, 8, vC)
                if first:
                    blk = x16_op(vC, 'v_max_f32') + xhalf_op(vC, 'v_max_f32')
                    blk += ['v_sub_f32 %s, 0, %s' % (vr(vNMr + i), vr(vC)) for i in range(4)]
                    blk += ['v_sub_f32 %s, %s, %s' % (vr(vSr + i), vr(vSr + i), vr(vC)) for i in range(8)]
                    remq += [(1, t) for t in blk]
                else:
                    remq.append((1, 'v_cmp_lt_f32 vcc, %s, %s' % (sr(sThr), vr(vC))))
                    remq.append((0, 'BR_REM'))
                remq += softmax_stream(vSr, 8, [vLr])
                rem_ready = a + 17
            present = [k for k in range(a, b) if made[k] is not None]
            cap = {k: (6 if made[k][0] == 'big' else 2) for k in present}
            firstgap = present[2] if not nocheck else present[0]
            seg_start = None
            vva_done = False
            emit_reads(present[0] - 1 + LOOK)
            for k in range(a, b):
                m = made[k]
                if m is None:
                    emit_reads(k + LOOK)
                    if k == a + 7 and not vva_done:
                        items.append('v_add_u32 %s, %s, %s' % (vr(vVa), sr(sDelta), vr(vVa)))
                        vva_done = True
                    continue
                items.append(('W', m[4]))
                items.append(m[2])
                if k == a + 7 and seg_start is not None:
                    lab = 'REJ_%s_%s%d' % (s.tag, kind, par)
                    items.append(lab + ':')
                    rares.append(('main', seg_start, len(items) - 1, lab, par, kind))
                    seg_start = None
                emit_reads(k + LOOK)
                if nread > a + 7 and not vva_done:
                    items.append('v_add_u32 %s, %s, %s' % (vr(vVa), sr(sDelta), vr(vVa)))
                    vva_done = True
                if dma:
                    items += dma.pop(0)
                if k < firstgap:
                    continue
                remaining = sum(c for c, _ in mainq) + sum(c for c, _ in remq)
                capleft = sum(cap[j] for j in present if j >= k)
                bud = math.ceil(remaining * cap[k] / capleft)
                while bud > 0 and (mainq or remq):
                    use_rem = remq and k >= rem_ready and (not mainq or sum(c for c, _ in remq) * 2 >= sum(c for c, _ in mainq) or k >= b - 3)
                    q = remq if use_rem else mainq
                    if not q:
                        break
                    c, t = q.pop(0)
                    bud -= c
                    s.put(items, t, q, kind, par, rares)
                    if t == 'BR_MAIN':
                        seg_start = len(items)
                    elif q and q[0][1] in ('BR_MAIN', 'BR_REM'):
                        c, t = q.pop(0)
                        s.put(items, t, q, kind, par, rares)
                        if t == 'BR_MAIN':
                            seg_start = len(items)
            for g in dma:
                items += g
            for c, t in mainq + remq:
                assert not t.startswith('BR_')
                items.append(('V', t) if False else t)
            if not (last and par == 1):
                items += s.advance(1 - par)
                if par == 1 and kind == 'loop':
                    items += ['s_sub_u32 %s, %s, 1' % (sr(sCnt), sr(sCnt)), 's_cmp_lg_u32 %s, 0' % sr(sCnt),
                              's_cbranch_scc1 LOOP_%s' % s.tag]
        return items, rares, made[n:n + 8]

    def put(s, items, t, q, kind, par, rares):
        if t == 'BR_MAIN':
            items.append('s_cbranch_vccnz RARE_%s_%s%d' % (s.tag, kind, par))
        elif t == 'BR_REM':
            lab = 'RREJ_%s_%s' % (s.tag, kind)
            items.append('s_cbranch_vccnz RRARE_%s_%s' % (s.tag, kind))
            items.append(lab + ':')
            rares.append(('rem', lab, kind))
        else:
            items.append(t)

    def rare_blocks(s, text, rares):
        out = []
        for r in rares:
            if r[0] == 'main':
                _, a, b, lab, par, kind = r
                S = vS[par]
                seg = text[a:b]
                soft = [t for t in seg if t.startswith(('v_exp_f32', 'v_add_f32', 'v_cvt_pk'))]
                other = [t for t in seg if not t.startswith(('v_exp_f32', 'v_add_f32', 'v_cvt_pk'))]
                out.append('RARE_%s_%s%d:' % (s.tag, kind, par))
                out += other
                out += xhalf_max(vMx)
                out += ['v_max_f32 %s, 0, %s' % (vr(vMx), vr(vMx)),
                        'v_exp_f32 %s, -%s' % (vr(vA), vr(vMx))]
                out += ['v_sub_f32 %s, %s, %s' % (vr(S + i), vr(S + i), vr(vMx)) for i in range(16)]
                out += ['v_sub_f32 %s, %s, %s' % (vr(vNM + i), vr(vNM + i), vr(vMx)) for i in range(16)]
                out += ['v_mul_f32 %s, %s, %s' % (vr(x), vr(x), vr(vA)) for x in [vL0, vL1] + list(range(vO, vO + 64))]
                out += soft
                out.append('s_branch %s' % lab)
            else:
                _, lab, kind = r
                out.append('RRARE_%s_%s:' % (s.tag, kind))
                out += x16_op(vC, 'v_max_f32') + xhalf_op(vC, 'v_max_f32')
                out += ['v_max_f32 %s, 0, %s' % (vr(vC), vr(vC)),
                        'v_exp_f32 %s, -%s' % (vr(vA), vr(vC))]
                out += ['v_sub_f32 %s, %s, %s' % (vr(vSr + i), vr(vSr + i), vr(vC)) for i in range(8)]
                out += ['v_sub_f32 %s, %s, %s' % (vr(vNMr + i), vr(vNMr + i), vr(vC)) for i in range(4)]
                out += ['v_mul_f32 %s, %s, %s' % (vr(x), vr(x), vr(vA)) for x in [vLr] + list(range(vOr, vOr + 32))]
                out.append('s_branch %s' % lab)
        return out

    def emit(s, p):
        tag = s.tag
        p.label('ATT_%s' % tag)
        if s.heavy:
            p('v_lshlrev_b32 %s, 4, %s' % (vr(vA), vr(vLane)))
            p('s_lshl_b32 %s, %s, 12' % (sr(sT0), sr(sE)))
            p('v_add_u32 %s, %s, %s' % (vr(vA), sr(sT0), vr(vA)))
            p('v_add_u32 %s, 0x%x, %s' % (vr(vA), 9 * SLOT, vr(vA)))
            for i in range(4):
                p('ds_read_b128 %s, %s offset:%d' % (vr(vQr + 4 * i, 4), vr(vA), i * 1024))
        qk0 = [sl[2](vF + 4 * k) for k, sl in enumerate(s.qk_slots(1, czero=True))]
        for mf, rd in qk0:
            p(rd[0])
        for k, (mf, rd) in enumerate(qk0):
            p('s_waitcnt lgkmcnt(%d)' % (7 - k))
            p(mf)
        p('v_mov_b32 %s, 0' % vr(vL0))
        p('v_mov_b32 %s, 0' % vr(vL1))
        p('v_mov_b32 %s, 0' % vr(vLr))
        for c, t in max_stream(vS[0], 16, vMx):
            p(t)
        p.ext(xhalf_max(vMx))
        for i in range(16):
            p('v_sub_f32 %s, 0, %s' % (vr(vNM + i), vr(vMx)))
        for i in range(16):
            p('v_sub_f32 %s, %s, %s' % (vr(vS[0] + i), vr(vS[0] + i), vr(vMx)))
        p.ext(s.advance(0))
        p('s_mov_b32 %s, 14' % sr(sCnt))
        fi, fr, _ = s.pair('first')
        li, lr, _ = s.pair('loop')
        la, lar, ep = s.pair('last')
        ft = resolve_waits(fi, [[]])
        lt = resolve_waits(li, [fi, li])
        lat = resolve_waits(la, [li])
        epi = []
        nread = LOOK
        for k in range(8):
            m = ep[k]
            epi.append(('W', m[4]))
            epi.append(m[2])
            if nread < 8:
                mm = ep[nread]
                for i, t in zip(mm[4], mm[3]):
                    epi.append(('R', i, t))
                nread += 1
        et = resolve_waits(epi, [la])
        p.ext(ft)
        p.label('LOOP_%s' % tag)
        p.ext(lt)
        p.ext(lat)
        p.ext(et)
        p('v_add_f32 %s, %s, %s' % (vr(vL0), vr(vL0), vr(vL1)))
        p.ext(xhalf_op(vL0, 'v_add_f32'))
        p('v_rcp_f32 %s, %s' % (vr(vL0), vr(vL0)))
        p('v_bfe_u32 %s, %s, 4, 1' % (vr(vA), vr(vLane)))
        p('v_lshlrev_b32 %s, 10, %s' % (vr(vA), vr(vA)))
        p('v_lshrrev_b32 %s, 5, %s' % (vr(vB), vr(vLane)))
        p('v_lshl_add_u32 %s, %s, 8, %s' % (vr(vA), vr(vB), vr(vA)))
        p('v_and_b32 %s, 15, %s' % (vr(vB), vr(vLane)))
        p('v_lshl_add_u32 %s, %s, 4, %s' % (vr(vA), vr(vB), vr(vA)))
        p('s_mul_i32 %s, %s, 36864' % (sr(sT0), sr(sE)))
        p('s_lshl_b32 %s, %s, 11' % (sr(sT1), sr(sWv)))
        p('s_add_u32 %s, %s, %s' % (sr(sT1), sr(sT1), sr(sT0)))
        p('v_add_u32 %s, %s, %s' % (vr(vC), sr(sT1), vr(vA)))
        for jt in range(4):
            o = vO + 16 * jt
            for i in range(16):
                p('v_mul_f32 %s, %s, %s' % (vr(o + i), vr(o + i), vr(vL0)))
            for half in range(2):
                d = vS[0] + 8 * (jt & 1) + 4 * half + 16 * (jt >> 1)
                src = [4 * half, 4 * half + 2, 8 + 4 * half, 8 + 4 * half + 2]
                for i, x in enumerate(src):
                    p('v_cvt_pk_bf16_f32 %s, %s, %s' % (vr(d + i), vr(o + x), vr(o + x + 1)))
            p('s_mov_b32 %s, %d' % (sr(sT2), jt * 9216))
            for half in range(2):
                d = vS[0] + 8 * (jt & 1) + 4 * half + 16 * (jt >> 1)
                p('buffer_store_dwordx4 %s, %s, %s, %s offen offset:%d' % (vr(d, 4), vr(vC), sr(sO, 4), sr(sT2), 512 * half))
        p('s_waitcnt vmcnt(0) lgkmcnt(0)')
        p('s_barrier')
        if s.heavy:
            p.ext(x16_op(vLr, 'v_add_f32'))
            p.ext(xhalf_op(vLr, 'v_add_f32'))
            p('v_lshlrev_b32 %s, 4, %s' % (vr(vC), vr(vLane)))
            p('s_lshl_b32 %s, %s, 14' % (sr(sT1), sr(sE)))
            p('v_add_u32 %s, %s, %s' % (vr(vC), sr(sT1), vr(vC)))
            p('s_cmp_eq_u32 %s, 0' % sr(sIsY))
            p('s_cbranch_scc1 MX_%s' % tag)
            for i in range(8):
                p('ds_write_b128 %s, %s offset:%d' % (vr(vC), vr(vOr + 4 * i, 4), i * 1024))
            p('v_mov_b32 %s, %s' % (vr(vNMr + 1), vr(vLr)))
            p('ds_write_b128 %s, %s offset:%d' % (vr(vC), vr(vNMr, 4), 8192))
            p('s_waitcnt lgkmcnt(0)')
            p('s_barrier')
            p('s_endpgm')
            p.label('MX_%s' % tag)
            p('s_barrier')
            for i in range(8):
                p('ds_read_b128 %s, %s offset:%d' % (vr(vO + 4 * i, 4), vr(vC), i * 1024))
            p('ds_read_b128 %s, %s offset:%d' % (vr(vO + 32, 4), vr(vC), 8192))
            p('s_waitcnt lgkmcnt(0)')
            ym, yl = vO + 32, vO + 33
            p('v_min_f32 %s, %s, %s' % (vr(vMx), vr(vNMr), vr(ym)))
            p('v_sub_f32 %s, %s, %s' % (vr(vA), vr(vMx), vr(vNMr)))
            p('v_sub_f32 %s, %s, %s' % (vr(vB), vr(vMx), vr(ym)))
            p('v_exp_f32 %s, %s' % (vr(vA), vr(vA)))
            p('v_exp_f32 %s, %s' % (vr(vB), vr(vB)))
            p('v_mul_f32 %s, %s, %s' % (vr(vLr), vr(vLr), vr(vA)))
            p('v_fmac_f32 %s, %s, %s' % (vr(vLr), vr(yl), vr(vB)))
            p('v_rcp_f32 %s, %s' % (vr(vLr), vr(vLr)))
            p('v_mul_f32 %s, %s, %s' % (vr(vA), vr(vA), vr(vLr)))
            p('v_mul_f32 %s, %s, %s' % (vr(vB), vr(vB), vr(vLr)))
            for i in range(32):
                p('v_mul_f32 %s, %s, %s' % (vr(vOr + i), vr(vOr + i), vr(vA)))
                p('v_fmac_f32 %s, %s, %s' % (vr(vOr + i), vr(vO + i), vr(vB)))
            p('v_lshlrev_b32 %s, 4, %s' % (vr(vC), vr(vLane)))
            p('s_mul_i32 %s, %s, 36864' % (sr(sT0), sr(sE)))
            p('s_add_u32 %s, %s, 8192' % (sr(sT0), sr(sT0)))
            p('v_add_u32 %s, %s, %s' % (vr(vC), sr(sT0), vr(vC)))
            for jt in range(4):
                d = vS[0] + 4 * jt
                for i in range(4):
                    p('v_cvt_pk_bf16_f32 %s, %s, %s' % (vr(d + i), vr(vOr + 8 * jt + 2 * i), vr(vOr + 8 * jt + 2 * i + 1)))
                p('s_mov_b32 %s, %d' % (sr(sT2), jt * 9216))
                p('buffer_store_dwordx4 %s, %s, %s, %s offen' % (vr(d, 4), vr(vC), sr(sO, 4), sr(sT2)))
            p('s_endpgm')
        else:
            p('s_barrier')
            p('s_endpgm')
        p.ext(s.rare_blocks(ft, fr) + s.rare_blocks(lt, lr) + s.rare_blocks(lat, lar))


def k1_type(p, typ):
    T = 'A' if typ == 0 else 'B'
    p.label('K1_%s' % T)
    p('s_load_dwordx8 %s, s[0:1], 0x%x' % (sr(sPtr, 8), typ * 40))
    p('s_load_dwordx2 %s, s[0:1], 0x60' % sr(sPtr + 8, 2))
    L = vLane
    t = [1, 2, 3, 4, 5, 6, 7, 8, 9, 10]
    q4, r4, u, h, a_, blk, key, tA, tB, tC = t
    p('v_lshrrev_b32 %s, 4, %s' % (vr(q4), vr(L)))
    p('v_bfe_u32 %s, %s, 2, 2' % (vr(r4), vr(L)))
    p('v_and_b32 %s, 3, %s' % (vr(u), vr(L)))
    p('v_lshrrev_b32 %s, 5, %s' % (vr(h), vr(L)))
    p('v_bfe_u32 %s, %s, 4, 1' % (vr(a_), vr(L)))
    p('v_lshlrev_b32 %s, 8, %s' % (vr(blk), vr(r4)))
    p('v_lshl_add_u32 %s, %s, 6, %s' % (vr(blk), vr(q4), vr(blk)))
    p('s_lshl_b32 %s, %s, 10' % (sr(sMb), sr(sW8 if typ == 0 else sWv)))
    p('v_xor_b32 %s, %s, %s' % (vr(tA), sr(sWv), vr(u)))
    p('v_lshl_add_u32 %s, %s, 4, %s' % (vr(tA), vr(tA), vr(blk)))
    p('v_add_u32 %s, %s, %s' % (vr(voffK), sr(sMb), vr(tA)))
    p('s_and_b32 %s, %s, 1' % (sr(sT0), sr(sWv)))
    p('s_lshl_b32 %s, %s, 1' % (sr(sT0), sr(sT0)))
    p('v_xor_b32 %s, %s, %s' % (vr(tA), sr(sT0), vr(u)))
    p('v_lshl_add_u32 %s, %s, 4, %s' % (vr(tA), vr(tA), vr(blk)))
    p('v_add_u32 %s, %s, %s' % (vr(voffV), sr(sMb), vr(tA)))
    p('s_and_b32 %s, %s, 2' % (sr(sT0), sr(sWv)))
    p('v_xor_b32 %s, %s, %s' % (vr(tA), sr(sT0), vr(u)))
    p('v_lshlrev_b32 %s, 4, %s' % (vr(tA), vr(tA)))
    p('v_lshl_add_u32 %s, %s, 6, %s' % (vr(tA), vr(q4), vr(tA)))
    p('v_lshl_add_u32 %s, %s, 13, %s' % (vr(tA), vr(r4), vr(tA)))
    p('s_lshl_b32 %s, %s, 15' % (sr(sT0), sr(sWv)))
    p('s_lshl_b32 %s, %s, 8' % (sr(sT1), sr(sE)))
    p('s_add_u32 %s, %s, %s' % (sr(sT0), sr(sT0), sr(sT1)))
    p('v_add_u32 %s, %s, %s' % (vr(voffW), sr(sT0), vr(tA)))
    p('v_lshrrev_b32 %s, 2, %s' % (vr(tA), vr(L)))
    p('v_mul_u32_u24 %s, 0x480, %s' % (vr(tA), vr(tA)))
    p('v_xor_b32 %s, %s, %s' % (vr(tB), vr(u), vr(q4)))
    p('v_lshl_add_u32 %s, %s, 4, %s' % (vr(tA), vr(tB), vr(tA)))
    p('s_mul_i32 %s, %s, 18432' % (sr(sT0), sr(sW8)))
    p('v_add_u32 %s, %s, %s' % (vr(voffX), sr(sT0), vr(tA)))
    p('v_add_u32 %s, 0x%x, %s' % (vr(voffX9), 128 * 1152, vr(tA)))
    if typ == 1:
        p('s_lshl_b32 %s, %s, 14' % (sr(sCur), sr(sE)))
        p('s_add_u32 %s, %s, 0x%x' % (sr(sPrev), sr(sCur), 8 * SLOT))
    else:
        p('s_mov_b32 %s, 0' % sr(sCur))
        p('s_mov_b32 %s, 0x%x' % (sr(sPrev), 9 * SLOT))
    p('v_bfe_u32 %s, %s, 2, 3' % (vr(tA), vr(L)))
    p('v_lshlrev_b32 %s, 10, %s' % (vr(tA), vr(tA)))
    p('v_lshl_add_u32 %s, %s, 6, %s' % (vr(tA), vr(u), vr(tA)))
    p('v_add_u32 %s, %s, %s' % (vr(tA), sr(sCur), vr(tA)))
    p('v_xor_b32 %s, %s, %s' % (vr(tB), vr(h), vr(r4)))
    p('v_lshl_add_u32 %s, %s, 4, %s' % (vr(vKa[0]), vr(tB), vr(tA)))
    p('v_xor_b32 %s, 2, %s' % (vr(tB), vr(tB)))
    p('v_lshl_add_u32 %s, %s, 4, %s' % (vr(vKa[1]), vr(tB), vr(tA)))
    p('v_lshrrev_b32 %s, 1, %s' % (vr(tA), vr(u)))
    p('v_and_b32 %s, 1, %s' % (vr(tC), vr(u)))
    p('v_xor_b32 %s, %s, %s' % (vr(tB), vr(a_), vr(h)))
    p('v_lshl_add_u32 %s, %s, 1, %s' % (vr(tB), vr(tB), vr(tA)))
    p('v_lshlrev_b32 %s, 4, %s' % (vr(tB), vr(tB)))
    p('v_lshl_add_u32 %s, %s, 3, %s' % (vr(tB), vr(tC), vr(tB)))
    p('v_lshl_add_u32 %s, %s, 6, %s' % (vr(tB), vr(r4), vr(tB)))
    p('v_lshl_add_u32 %s, %s, 10, %s' % (vr(tB), vr(h), vr(tB)))
    p('v_add_u32 %s, 0x2000, %s' % (vr(tB), vr(tB)))
    p('v_add_u32 %s, %s, %s' % (vr(vVa), sr(sCur), vr(tB)))
    p('v_xor_b32 %s, %s, %s' % (vr(tB), vr(q4), vr(r4)))
    p('v_lshlrev_b32 %s, 4, %s' % (vr(tB), vr(tB)))
    p('v_lshl_add_u32 %s, %s, 6, %s' % (vr(tB), vr(u), vr(tB)))
    p('v_lshl_add_u32 %s, %s, 10, %s' % (vr(bKr), vr(r4), vr(tB)))
    p('v_lshl_add_u32 %s, %s, 1, %s' % (vr(tB), vr(a_), vr(tA)))
    p('v_lshlrev_b32 %s, 4, %s' % (vr(tB), vr(tB)))
    p('v_lshl_add_u32 %s, %s, 3, %s' % (vr(tB), vr(tC), vr(tB)))
    p('v_lshl_add_u32 %s, %s, 6, %s' % (vr(tB), vr(r4), vr(tB)))
    p('v_lshl_add_u32 %s, %s, 10, %s' % (vr(tB), vr(q4), vr(tB)))
    p('v_add_u32 %s, 0x2000, %s' % (vr(bVr[0]), vr(tB)))
    p('v_xor_b32 %s, 32, %s' % (vr(bVr[1]), vr(bVr[0])))
    vWm, vWr, vXm0, vXm1, vXr = [qBase + i for i in range(5)]
    p('v_xor_b32 %s, %s, %s' % (vr(tB), vr(a_), vr(h)))
    p('v_lshl_add_u32 %s, %s, 1, %s' % (vr(tB), vr(tB), vr(tC)))
    p('v_lshlrev_b32 %s, 4, %s' % (vr(tB), vr(tB)))
    p('v_lshl_add_u32 %s, %s, 3, %s' % (vr(tB), vr(tA), vr(tB)))
    p('v_lshl_add_u32 %s, %s, 6, %s' % (vr(tB), vr(r4), vr(tB)))
    p('v_lshl_add_u32 %s, %s, 11, %s' % (vr(tB), vr(h), vr(tB)))
    p('s_lshl_b32 %s, %s, 13' % (sr(sT0), sr(sE)))
    p('v_add_u32 %s, %s, %s' % (vr(vWm), sr(sT0), vr(tB)))
    p('v_lshlrev_b32 %s, 1, %s' % (vr(tB), vr(a_)))
    p('v_xor_b32 %s, %s, %s' % (vr(tB), vr(tB), vr(u)))
    p('v_lshlrev_b32 %s, 4, %s' % (vr(tB), vr(tB)))
    p('v_lshl_add_u32 %s, %s, 6, %s' % (vr(tB), vr(r4), vr(tB)))
    p('v_lshl_add_u32 %s, %s, 11, %s' % (vr(tB), vr(q4), vr(tB)))
    p('s_lshl_b32 %s, %s, 8' % (sr(sT1), sr(sWv)))
    p('s_add_u32 %s, %s, %s' % (sr(sT1), sr(sT1), sr(sT0)))
    p('v_add_u32 %s, %s, %s' % (vr(vWr), sr(sT1), vr(tB)))
    p('v_and_b32 %s, 31, %s' % (vr(tA), vr(L)))
    p('v_lshlrev_b32 %s, 6, %s' % (vr(tA), vr(tA)))
    p('s_lshl_b32 %s, %s, 11' % (sr(sT1), sr(sWv)))
    p('s_add_u32 %s, %s, 0x4000' % (sr(sT1), sr(sT1)))
    p('v_add_u32 %s, %s, %s' % (vr(tA), sr(sT1), vr(tA)))
    p('v_xor_b32 %s, %s, %s' % (vr(tB), vr(h), vr(r4)))
    p('v_lshl_add_u32 %s, %s, 4, %s' % (vr(vXm0), vr(tB), vr(tA)))
    p('v_xor_b32 %s, 32, %s' % (vr(vXm1), vr(vXm0)))
    p('v_and_b32 %s, 15, %s' % (vr(tA), vr(L)))
    p('v_lshlrev_b32 %s, 6, %s' % (vr(tA), vr(tA)))
    p('v_xor_b32 %s, %s, %s' % (vr(tB), vr(q4), vr(r4)))
    p('v_lshl_add_u32 %s, %s, 4, %s' % (vr(tA), vr(tB), vr(tA)))
    p('v_add_u32 %s, 0x%x, %s' % (vr(vXr), 16384 + 8192, vr(tA)))
    p('s_lshl_b32 %s, %s, 13' % (sr(sMw), sr(sE)))
    p('s_lshl_b32 %s, %s, 10' % (sr(sT0), sr(sWv)))
    p('s_add_u32 %s, %s, %s' % (sr(sMw), sr(sMw), sr(sT0)))
    p('s_lshl_b32 %s, %s, 10' % (sr(sMx), sr(sW8)))
    p('s_lshl_b32 %s, %s, 3' % (sr(sT0), sr(sW8)))
    p('s_mov_b64 %s, 0xff' % sr(sEx, 2))
    p('s_lshl_b64 %s, %s, %s' % (sr(sEx, 2), sr(sEx, 2), sr(sT0)))
    p('s_and_b32 %s, %s, 1' % (sr(sIsY), sr(sW8)))
    p('s_mov_b32 %s, %s' % (sr(sScale), f32(math.log2(math.e) / math.sqrt(128.0))))
    p('s_mov_b32 %s, %s' % (sr(sThr), f32(THR)))
    p('s_waitcnt lgkmcnt(0)')
    p('s_mul_i32 %s, %s, 165888' % (sr(sT0), sr(sB)))
    p('s_add_u32 %s, %s, %s' % (sr(sX), sr(sPtr), sr(sT0)))
    p('s_addc_u32 %s, %s, 0' % (sr(sX + 1), sr(sPtr + 1)))
    p('s_mov_b32 %s, 165888' % sr(sX + 2))
    p('s_mov_b32 %s, 0x20000' % sr(sX + 3))
    p('s_lshl_b32 %s, %s, 9' % (sr(sT0), sr(sHP)))
    p('s_add_u32 %s, %s, %s' % (sr(sW), sr(sPtr + 6), sr(sT0)))
    p('s_addc_u32 %s, %s, 0' % (sr(sW + 1), sr(sPtr + 7)))
    p('s_sub_u32 %s, %d, %s' % (sr(sW + 2), 576 * 8192, sr(sT0)))
    p('s_mov_b32 %s, 0x20000' % sr(sW + 3))
    if typ == 0:
        p('s_lshl_b32 %s, %s, 4' % (sr(sT0), sr(sB)))
        p('s_add_u32 %s, %s, %s' % (sr(sT0), sr(sT0), sr(sHP)))
    else:
        p('s_lshl_b32 %s, %s, 5' % (sr(sT0), sr(sB)))
        p('s_lshl_b32 %s, %s, 1' % (sr(sT1), sr(sHP)))
        p('s_add_u32 %s, %s, %s' % (sr(sT0), sr(sT0), sr(sT1)))
        p('s_add_u32 %s, %s, %s' % (sr(sT0), sr(sT0), sr(sE)))
    p('s_lshl_b32 %s, %s, 18' % (sr(sT0), sr(sT0)))
    for srd, ptr in ((sK, sPtr + 2), (sV, sPtr + 4)):
        p('s_add_u32 %s, %s, %s' % (sr(srd), sr(ptr), sr(sT0)))
        p('s_addc_u32 %s, %s, 0' % (sr(srd + 1), sr(ptr + 1)))
        p('s_mov_b32 %s, 0x40000' % sr(srd + 2))
        p('s_mov_b32 %s, 0x20000' % sr(srd + 3))
    p('s_add_u32 %s, %s, %d' % (sr(sT0), sr(sB), typ * 8))
    p('s_mul_i32 %s, %s, %d' % (sr(sT0), sr(sT0), OWS_B))
    p('s_mul_i32 %s, %s, 73728' % (sr(sT1), sr(sHP)))
    p('s_add_u32 %s, %s, %s' % (sr(sT0), sr(sT0), sr(sT1)))
    p('s_add_u32 %s, %s, %s' % (sr(sO), sr(sPtr + 8), sr(sT0)))
    p('s_addc_u32 %s, %s, 0' % (sr(sO + 1), sr(sPtr + 9)))
    p('s_mov_b32 %s, 73728' % sr(sO + 2))
    p('s_mov_b32 %s, 0x20000' % sr(sO + 3))

    def chunk_dma(c):
        buf = STG + (c % NBUF) * CHUNK
        return ['s_add_u32 m0, %s, 0x%x' % (sr(sMw), buf),
                's_mov_b32 %s, 0x%x' % (sr(sT0), c * 262144),
                'buffer_load_dwordx4 %s, %s, %s offen lds' % (vr(voffW), sr(sW, 4), sr(sT0)),
                's_add_u32 m0, m0, 0x1000',
                's_mov_b32 %s, 0x%x' % (sr(sT0), c * 262144 + 131072),
                'buffer_load_dwordx4 %s, %s, %s offen lds' % (vr(voffW), sr(sW, 4), sr(sT0)),
                's_add_u32 m0, %s, 0x%x' % (sr(sMx), buf + 16384),
                's_mov_b32 %s, 0x%x' % (sr(sT0), c * 64),
                'buffer_load_dwordx4 %s, %s, %s offen lds' % (vr(voffX), sr(sX, 4), sr(sT0)),
                's_mov_b32 m0, 0x%x' % (buf + 16384 + 8192),
                's_mov_b64 exec, %s' % sr(sEx, 2),
                'buffer_load_dwordx4 %s, %s, %s offen lds' % (vr(voffX9), sr(sX, 4), sr(sT0)),
                's_mov_b64 exec, -1']

    vm_after = []
    nvm = 0
    issued_at = {}
    for c in range(4):
        p.ext(chunk_dma(c))
        nvm += 4
        issued_at[c] = nvm
        if c == 0:
            p('s_add_u32 m0, %s, %s' % (sr(sCur), sr(sMb)))
            p('s_nop 0')
            p('buffer_load_dwordx4 %s, %s, 0 offen lds' % (vr(voffK), sr(sK, 4)))
            nvm += 1
            if typ == 1:
                p('s_add_u32 m0, m0, 0x1000')
                p('s_movk_i32 %s, 0x1000' % sr(sT0))
                p('buffer_load_dwordx4 %s, %s, %s offen lds' % (vr(voffK), sr(sK, 4), sr(sT0)))
                nvm += 1
            k0_at = nvm

    cW, cWr, cX0, cX1, cXr = [qCur + i for i in range(5)]

    def rd_set(ks):
        S = qSet[ks]
        o = []
        for jt in range(4):
            for pp in range(2):
                o.append('ds_read_b64_tr_b16 %s, %s offset:%d' % (vr(S + 4 * jt + 2 * pp, 2), vr(cW), ks * 4096 + pp * 1024 + jt * 256))
        o.append('ds_read_b128 %s, %s' % (vr(S + 16, 4), vr(cX0 if ks == 0 else cX1)))
        return o

    def rd_rem():
        o = []
        for Ts in range(2):
            for pp in range(2):
                o.append('ds_read_b64_tr_b16 %s, %s offset:%d' % (vr(qRem + 4 * Ts + 2 * pp, 2), vr(cWr), pp * 1024 + 8 * Ts))
        o.append('ds_read_b128 %s, %s' % (vr(qRem + 8, 4), vr(cXr)))
        return o

    def mf_set(ks, init):
        S = qSet[ks]
        return ['v_mfma_f32_32x32x16_bf16 %s, %s, %s, %s' % (vr(16 * jt, 16), vr(S + 4 * jt, 4), vr(S + 16, 4), '0' if init else vr(16 * jt, 16)) for jt in range(4)]

    def mf_rem(init):
        return ['v_mfma_f32_16x16x32_bf16 %s, %s, %s, %s' % (vr(64 + 4 * Ts, 4), vr(qRem + 4 * Ts, 4), vr(qRem + 8, 4), '0' if init else vr(64 + 4 * Ts, 4)) for Ts in range(2)]

    for c in range(NCH):
        buf = STG + (c % NBUF) * CHUNK
        p.c('---- qproj chunk %d' % c)
        for i in range(5):
            p('v_add_u32 %s, 0x%x, %s' % (vr(qCur + i), buf, vr(qBase + i)))
        p('s_waitcnt vmcnt(%d) lgkmcnt(0)' % (nvm - issued_at[c]))
        p('s_barrier')
        p.ext(rd_set(0))
        dm = chunk_dma(c + 4) if c + 4 < NCH else []
        if dm:
            nvm += 4
            issued_at[c + 4] = nvm
        parts = [dm[0:3], dm[3:6], dm[6:9], dm[9:]]
        if c > 0:
            m1 = mf_set(1, False) + mf_rem(c == 1)
            for i, m in enumerate(m1):
                p(m)
                if i < 4:
                    p.ext(parts[i])
        else:
            p.ext(dm)
        r1 = rd_set(1) + rd_rem()
        p.ext(r1[:6])
        p('s_waitcnt lgkmcnt(6)')
        m0 = mf_set(0, c == 0)
        rest = r1[6:]
        for i, m in enumerate(m0):
            p(m)
            p.ext(rest[3 * i:3 * i + 3])
    p('s_waitcnt lgkmcnt(0)')
    p('s_barrier')
    D = 8 if typ == 0 else 3
    fill = []
    for un in range(D):
        if typ == 1:
            base = 2 * (un + 1) * SLOT
            fill.append(['s_add_u32 m0, %s, 0x%x' % (sr(sT1), base), 's_mov_b32 %s, 0x%x' % (sr(sT0), (un + 1) * 8192),
                         'buffer_load_dwordx4 %s, %s, %s offen lds' % (vr(voffK), sr(sK, 4), sr(sT0)),
                         's_add_u32 m0, m0, 0x1000', 's_mov_b32 %s, 0x%x' % (sr(sT0), (un + 1) * 8192 + 4096),
                         'buffer_load_dwordx4 %s, %s, %s offen lds' % (vr(voffK), sr(sK, 4), sr(sT0)),
                         's_add_u32 m0, m0, 0x1000', 's_mov_b32 %s, 0x%x' % (sr(sT0), un * 8192),
                         'buffer_load_dwordx4 %s, %s, %s offen lds' % (vr(voffV), sr(sV, 4), sr(sT0)),
                         's_add_u32 m0, m0, 0x1000', 's_mov_b32 %s, 0x%x' % (sr(sT0), un * 8192 + 4096),
                         'buffer_load_dwordx4 %s, %s, %s offen lds' % (vr(voffV), sr(sV, 4), sr(sT0))])
            nvm += 4
        else:
            base = (un + 1) * SLOT
            fill.append(['s_add_u32 m0, %s, 0x%x' % (sr(sT1), base), 's_mov_b32 %s, 0x%x' % (sr(sT0), (un + 1) * 8192),
                         'buffer_load_dwordx4 %s, %s, %s offen lds' % (vr(voffK), sr(sK, 4), sr(sT0)),
                         's_add_u32 m0, m0, 0x2000', 's_mov_b32 %s, 0x%x' % (sr(sT0), un * 8192),
                         'buffer_load_dwordx4 %s, %s, %s offen lds' % (vr(voffV), sr(sV, 4), sr(sT0))])
            nvm += 2
    p('s_add_u32 %s, %s, %s' % (sr(sT1), sr(sCur), sr(sMb)))
    for m in mf_set(1, False) + mf_rem(False):
        p(m)
    for f in fill:
        p.ext(f)
    p('s_mov_b32 %s, 0x%x' % (sr(sSv), (D - 1) * 8192))
    p('s_mov_b32 %s, 0x%x' % (sr(sSk0), D * 8192))
    p('s_mov_b32 %s, 0x%x' % (sr(sSv1), (D - 1) * 8192 + 4096))
    p('s_mov_b32 %s, 0x%x' % (sr(sSk1), D * 8192 + 4096))
    for i in range(72):
        p('v_mul_f32 %s, %s, %s' % (vr(i), sr(sScale), vr(i)))
    for i in range(32):
        p('v_cvt_pk_bf16_f32 %s, %s, %s' % (vr(vQ + i), vr(2 * i), vr(2 * i + 1)))
    for i in range(4):
        p('v_cvt_pk_bf16_f32 %s, %s, %s' % (vr(vQr + i), vr(64 + 2 * i), vr(64 + 2 * i + 1)))
    p('v_lshlrev_b32 %s, 4, %s' % (vr(vA), vr(vLane)))
    p('v_add_u32 %s, %s, %s' % (vr(vA), sr(sMx), vr(vA)))
    p('v_add_u32 %s, 0x%x, %s' % (vr(vA), 9 * SLOT, vr(vA)))
    p('ds_write_b128 %s, %s' % (vr(vA), vr(vQr, 4)))
    p('s_waitcnt vmcnt(%d) lgkmcnt(0)' % min(63, nvm - k0_at))
    p('s_barrier')
    p('s_add_u32 %s, %s, 2' % (sr(sT0), sr(sW8)))
    p('s_and_b32 %s, %s, 7' % (sr(sT0), sr(sT0)))
    p('s_cmp_lt_u32 %s, 4' % sr(sT0))
    p('s_cbranch_scc1 ATT_%sH' % T)
    Attn(typ, False).emit(p)
    Attn(typ, True).emit(p)


def kernel1():
    p = P()
    p('s_cmp_ge_u32 s2, 256')
    p('s_cbranch_scc1 K1_END')
    p('v_and_b32 %s, 63, v0' % vr(vLane))
    p('v_lshrrev_b32 v1, 6, v0')
    p('s_nop 0')
    p('v_readfirstlane_b32 %s, v1' % sr(sW8))
    p('s_and_b32 %s, s2, 7' % sr(sT0))
    p('s_lshr_b32 %s, s2, 3' % sr(sT1))
    p('s_and_b32 %s, %s, 7' % (sr(sB), sr(sT1)))
    p('s_lshr_b32 %s, %s, 4' % (sr(sHP), sr(sT1)))
    p('s_lshl_b32 %s, %s, 1' % (sr(sT0), sr(sT0)))
    p('s_add_u32 %s, %s, %s' % (sr(sHP), sr(sHP), sr(sT0)))
    p('s_lshr_b32 %s, %s, 2' % (sr(sE), sr(sW8)))
    p('s_and_b32 %s, %s, 3' % (sr(sWv), sr(sW8)))
    p('s_bitcmp1_b32 %s, 3' % sr(sT1))
    p('s_cbranch_scc1 K1_B')
    k1_type(p, 0)
    k1_type(p, 1)
    p.label('K1_END')
    p('s_endpgm')
    return p.L


K2_STG = 18432
K2_NST = 8


def kernel2():
    p = P()
    sA, sWo, sPt = 4, 8, 12
    sW9, sWm, sWn = 16, 17, 18
    sBr, sS, sBb, sJ = 19, 20, 21, 22
    sT0, sT1, sT2, sT3 = 23, 24, 25, 26
    sM, sSoA, sSoW, sRd, sCnt, sWrb = 27, 28, 29, 30, 31, 32
    acc = 0
    fr = [36, 60]
    vL, vOffA, vOffW, vRB, vRA, vCB, vCA, t0, t1, t2 = 84, 85, 86, 87, 88, 89, 90, 91, 92, 93
    p('s_cmp_ge_u32 s2, 256')
    p('s_cbranch_scc1 K2_END')
    p('s_load_dwordx2 s[36:37], s[0:1], 0x20')
    p('s_load_dwordx2 s[38:39], s[0:1], 0x48')
    p('s_load_dwordx2 s[40:41], s[0:1], 0x60')
    p('v_and_b32 %s, 63, v0' % vr(vL))
    p('v_lshrrev_b32 v1, 6, v0')
    p('s_nop 0')
    p('v_readfirstlane_b32 %s, v1' % sr(sW9))
    p('s_and_b32 %s, s2, 7' % sr(sT0))
    p('s_lshr_b32 %s, %s, 2' % (sr(sBr), sr(sT0)))
    p('s_and_b32 %s, %s, 3' % (sr(sS), sr(sT0)))
    p('s_lshr_b32 %s, s2, 3' % sr(sT1))
    p('s_and_b32 %s, %s, 7' % (sr(sBb), sr(sT1)))
    p('s_lshr_b32 %s, %s, 3' % (sr(sJ), sr(sT1)))
    p('s_mul_i32 %s, %s, 11' % (sr(sWm), sr(sW9)))
    p('s_lshr_b32 %s, %s, 5' % (sr(sWm), sr(sWm)))
    p('s_mul_i32 %s, %s, 3' % (sr(sT0), sr(sWm)))
    p('s_sub_u32 %s, %s, %s' % (sr(sWn), sr(sW9), sr(sT0)))
    p('s_lshl_b32 %s, %s, 10' % (sr(sM), sr(sW9)))
    p('v_lshlrev_b32 %s, 4, %s' % (vr(t0), vr(vL)))
    p('v_add_u32 %s, %s, %s' % (vr(vOffA), sr(sM), vr(t0)))
    p('v_mul_u32_u24 %s, 3641, v0' % vr(t1))
    p('v_lshrrev_b32 %s, 16, %s' % (vr(t1), vr(t1)))
    p('v_mul_u32_u24 %s, 18, %s' % (vr(t2), vr(t1)))
    p('v_sub_u32 %s, v0, %s' % (vr(t2), vr(t2)))
    p('v_mul_u32_u24 %s, 0x480, %s' % (vr(t1), vr(t1)))
    p('v_lshl_add_u32 %s, %s, 4, %s' % (vr(vOffW), vr(t2), vr(t1)))
    p('s_mul_i32 %s, %s, 3072' % (sr(sT0), sr(sWm)))
    p('v_add_u32 %s, %s, %s' % (vr(vRB), sr(sT0), vr(t0)))
    p('v_lshrrev_b32 %s, 2, %s' % (vr(t1), vr(vL)))
    p('v_mul_u32_u24 %s, 288, %s' % (vr(t1), vr(t1)))
    p('v_and_b32 %s, 3, %s' % (vr(t2), vr(vL)))
    p('v_lshl_add_u32 %s, %s, 3, %s' % (vr(t1), vr(t2), vr(t1)))
    p('s_mul_i32 %s, %s, 96' % (sr(sT0), sr(sWn)))
    p('s_add_u32 %s, %s, 9216' % (sr(sT0), sr(sT0)))
    p('v_add_u32 %s, %s, %s' % (vr(vRA), sr(sT0), vr(t1)))
    p('s_waitcnt lgkmcnt(0)')
    p('s_lshl_b32 %s, %s, 3' % (sr(sT0), sr(sBr)))
    p('s_add_u32 %s, %s, %s' % (sr(sT0), sr(sT0), sr(sBb)))
    p('s_mul_i32 %s, %s, %d' % (sr(sT1), sr(sT0), OWS_B))
    p('s_mul_i32 %s, %s, %d' % (sr(sT2), sr(sS), 32 * 9216))
    p('s_add_u32 %s, %s, %s' % (sr(sT1), sr(sT1), sr(sT2)))
    p('s_add_u32 %s, s40, %s' % (sr(sA), sr(sT1)))
    p('s_addc_u32 %s, s41, 0' % sr(sA + 1))
    p('s_mov_b32 %s, %d' % (sr(sA + 2), 32 * 9216))
    p('s_mov_b32 %s, 0x20000' % sr(sA + 3))
    p('s_cmp_eq_u32 %s, 0' % sr(sBr))
    p('s_cselect_b32 %s, s36, s38' % sr(sWo))
    p('s_cselect_b32 %s, s37, s39' % sr(sWo + 1))
    p('s_mul_i32 %s, %s, %d' % (sr(sT1), sr(sS), 1024 * 1152))
    p('s_mul_i32 %s, %s, 288' % (sr(sT2), sr(sJ)))
    p('s_add_u32 %s, %s, %s' % (sr(sT1), sr(sT1), sr(sT2)))
    p('s_add_u32 %s, %s, %s' % (sr(sWo), sr(sWo), sr(sT1)))
    p('s_addc_u32 %s, %s, 0' % (sr(sWo + 1), sr(sWo + 1)))
    p('s_sub_u32 %s, %d, %s' % (sr(sWo + 2), 1024 * 1152, sr(sT2)))
    p('s_mov_b32 %s, 0x20000' % sr(sWo + 3))
    p('s_lshl_b32 %s, %s, 2' % (sr(sT0), sr(sT0)))
    p('s_add_u32 %s, %s, %s' % (sr(sT0), sr(sT0), sr(sJ)))
    p('s_mul_i32 %s, %s, 331776' % (sr(sT0), sr(sT0)))
    p('s_mul_i32 %s, %s, 82944' % (sr(sT1), sr(sS)))
    p('s_add_u32 %s, %s, %s' % (sr(sT0), sr(sT0), sr(sT1)))
    p('s_add_u32 %s, %s, 0x%x' % (sr(sT0), sr(sT0), PART_OFF))
    p('s_add_u32 %s, s40, %s' % (sr(sPt), sr(sT0)))
    p('s_addc_u32 %s, s41, 0' % sr(sPt + 1))
    p('s_mov_b32 %s, 82944' % sr(sPt + 2))
    p('s_mov_b32 %s, 0x20000' % sr(sPt + 3))

    def dma(ks):
        st = (ks % K2_NST) * K2_STG
        return ['s_add_u32 m0, %s, 0x%x' % (sr(sM), st),
                's_mov_b32 %s, 0x%x' % (sr(sT0), ks * 9216),
                'buffer_load_dwordx4 %s, %s, %s offen lds' % (vr(vOffA), sr(sA, 4), sr(sT0)),
                's_add_u32 m0, m0, 9216',
                's_mov_b32 %s, 0x%x' % (sr(sT0), ks * 36864),
                'buffer_load_dwordx4 %s, %s, %s offen lds' % (vr(vOffW), sr(sWo, 4), sr(sT0))]

    def reads(ks):
        st = (ks % K2_NST) * K2_STG
        F = fr[ks & 1]
        o = ['v_add_u32 %s, 0x%x, %s' % (vr(vCA), st, vr(vRA)), 'v_add_u32 %s, 0x%x, %s' % (vr(vCB), st, vr(vRB))]
        for i in range(3):
            for pp in range(2):
                o.append('ds_read_b64_tr_b16 %s, %s offset:%d' % (vr(F + 4 * i + 2 * pp, 2), vr(vCA), pp * 4608 + i * 32))
            o.append('ds_read_b128 %s, %s offset:%d' % (vr(F + 12 + 4 * i, 4), vr(vCB), i * 1024))
        return o

    def mfs(ks):
        F = fr[ks & 1]
        return ['v_mfma_f32_16x16x32_bf16 %s, %s, %s, %s' % (vr(acc + 4 * (3 * ni + qi), 4), vr(F + 4 * ni, 4), vr(F + 12 + 4 * qi, 4),
                                                            '0' if ks == 0 else vr(acc + 4 * (3 * ni + qi), 4))
                for ni in range(3) for qi in range(3)]

    NK = 32
    AHEAD = K2_NST - 1
    for ks in range(AHEAD):
        p.ext(dma(ks))
    issued = AHEAD
    for ks in range(NK + 1):
        if ks < NK:
            p('s_waitcnt vmcnt(%d) lgkmcnt(0)' % (2 * (issued - ks - 1)))
            p('s_barrier')
            p.ext(reads(ks))
            dm = dma(issued) if issued < NK else []
            if dm and ks >= 1:
                issued += 1
            else:
                dm = []
        else:
            p('s_waitcnt lgkmcnt(0)')
            dm = []
        if ks >= 1:
            for i, m in enumerate(mfs(ks - 1)):
                p(m)
                if i == 1:
                    p.ext(dm[:3])
                if i == 3:
                    p.ext(dm[3:])
    p('s_mul_i32 %s, %s, 9216' % (sr(sT0), sr(sW9)))
    p('v_add_u32 %s, %s, %s' % (vr(t1), sr(sT0), vr(t0)))
    for i in range(9):
        p('s_mov_b32 %s, %d' % (sr(sT1), i * 1024))
        p('buffer_store_dwordx4 %s, %s, %s, %s offen' % (vr(acc + 4 * i, 4), vr(t1), sr(sPt, 4), sr(sT1)))
    p.label('K2_END')
    p('s_endpgm')
    return p.L


def kernel3():
    p = P()
    p('s_cmp_ge_u32 s2, 1296')
    p('s_cbranch_scc1 K3_END')
    p('s_load_dwordx2 s[4:5], s[0:1], 0x60')
    p('s_load_dwordx2 s[8:9], s[0:1], 0x50')
    p('v_and_b32 v1, 63, v0')
    p('v_lshrrev_b32 v2, 6, v0')
    p('s_nop 0')
    p('v_readfirstlane_b32 s12, v2')
    p('s_lshl_b32 s13, s2, 2')
    p('s_add_u32 s13, s13, s12')
    p('s_mov_b32 s14, 0x%x' % ((1 << 32) // 81 + 1))
    p('s_mul_hi_u32 s15, s13, s14')
    p('s_mul_i32 s16, s15, 81')
    p('s_sub_u32 s16, s13, s16')
    p('s_mul_i32 s17, s16, 57')
    p('s_lshr_b32 s17, s17, 9')
    p('s_mul_i32 s18, s17, 9')
    p('s_sub_u32 s18, s16, s18')
    p('s_mul_i32 s19, s17, 11')
    p('s_lshr_b32 s19, s19, 5')
    p('s_mul_i32 s20, s19, 3')
    p('s_sub_u32 s20, s17, s20')
    p('s_mul_i32 s21, s18, 11')
    p('s_lshr_b32 s21, s21, 5')
    p('s_mul_i32 s22, s21, 3')
    p('s_sub_u32 s22, s18, s22')
    p('s_mul_i32 s23, s15, 331776')
    p('s_lshl_b32 s24, s16, 10')
    p('s_add_u32 s23, s23, s24')
    p('v_lshlrev_b32 v3, 4, v1')
    p('v_add_u32 v3, s23, v3')
    p('s_waitcnt lgkmcnt(0)')
    p('s_add_u32 s4, s4, 0x%x' % PART_OFF)
    p('s_addc_u32 s5, s5, 0')
    p('s_mov_b32 s6, %d' % (64 * 331776))
    p('s_mov_b32 s7, 0x20000')
    p('s_mov_b32 s10, %d' % (1152 * 1152 * 2))
    p('s_mov_b32 s11, 0x20000')
    for s in range(4):
        p('s_mov_b32 s25, %d' % (s * 82944))
        p('buffer_load_dwordx4 %s, v3, s[4:7], s25 offen' % vr(8 + 4 * s, 4))
    p('s_and_b32 s26, s15, 3')
    p('s_lshr_b32 s27, s15, 2')
    p('s_and_b32 s28, s27, 7')
    p('s_lshr_b32 s29, s27, 3')
    p('s_mul_i32 s30, s19, 3')
    p('s_add_u32 s30, s30, s22')
    p('s_lshl_b32 s30, s30, 4')
    p('s_mul_i32 s31, s28, 144')
    p('s_add_u32 s30, s30, s31')
    p('s_mul_i32 s31, s20, 3')
    p('s_add_u32 s31, s31, s21')
    p('s_lshl_b32 s31, s31, 4')
    p('s_mul_i32 s32, s26, 144')
    p('s_add_u32 s31, s31, s32')
    p('s_mul_i32 s32, s29, 576')
    p('s_add_u32 s31, s31, s32')
    p('s_mul_i32 s30, s30, 2304')
    p('s_lshl_b32 s31, s31, 1')
    p('s_add_u32 s30, s30, s31')
    p('v_and_b32 v4, 15, v1')
    p('v_mul_u32_u24 v4, 0x900, v4')
    p('v_lshrrev_b32 v5, 4, v1')
    p('v_lshl_add_u32 v4, v5, 3, v4')
    p('v_add_u32 v4, s30, v4')
    p('s_waitcnt vmcnt(2)')
    for i in range(4):
        p('v_add_f32 v%d, v%d, v%d' % (8 + i, 8 + i, 12 + i))
    p('s_waitcnt vmcnt(0)')
    for i in range(4):
        p('v_add_f32 v%d, v%d, v%d' % (16 + i, 16 + i, 20 + i))
    for i in range(4):
        p('v_add_f32 v%d, v%d, v%d' % (8 + i, 8 + i, 16 + i))
    p('v_cvt_pk_bf16_f32 v6, v8, v9')
    p('v_cvt_pk_bf16_f32 v7, v10, v11')
    p('buffer_store_dwordx2 v[6:7], v4, s[8:11], 0 offen')
    p.label('K3_END')
    p('s_endpgm')
    return p.L


def desc(name, vg, sg=102):
    return """.amdhsa_kernel %s
  .amdhsa_next_free_vgpr %d
  .amdhsa_next_free_sgpr %d
  .amdhsa_accum_offset %d
  .amdhsa_group_segment_fixed_size 0
  .amdhsa_kernarg_size 104
  .amdhsa_user_sgpr_count 2
  .amdhsa_user_sgpr_kernarg_segment_ptr 1
  .amdhsa_system_sgpr_workgroup_id_x 1
.end_amdhsa_kernel
""" % (name, vg, sg, (vg + 3) // 4 * 4)


def main():
    ks = [('k1_attn_kernel', kernel1(), 256, 72, (256, 512, LDS_TOTAL)),
          ('k2_oproj_kernel', kernel2(), 96, 48, (256, 576, K2_STG * K2_NST)),
          ('k3_reduce_kernel', kernel3(), 24, 40, (1296, 256, 0))]
    hdr = open(OUT + '.ref').read().split('; Override launch')[0]
    out = [hdr.rstrip('\n')]
    for n, _, _, _, (g, b, l) in ks:
        out.append('; @launch kernel=%s grid=(%d,1,1) block=(%d,1,1) lds=%d' % (n, g, b, l))
    out.append('.amdgcn_target "amdgcn-amd-amdhsa--gfx950"')
    out.append('.text')
    for n, L, _, _, _ in ks:
        L2, tot = chk.fix_hazards(L, verbose='-v' in sys.argv)
        errs = chk.check_waits(L2)
        print('%s: %d lines, %d nop states inserted, %d wait errors' % (n, len(L2), tot, len(errs)))
        for e in errs[:20]:
            print('   ', e)
        out += ['.globl %s' % n, '.p2align 8', '.type %s,@function' % n, '%s:' % n] + L2
    out.append('.section .rodata,"a"')
    for n, _, vg, sg, _ in ks:
        out.append('.p2align 6')
        out.append(desc(n, vg, sg))
    open(OUT, 'w').write('\n'.join(out) + '\n')


if __name__ == '__main__':
    main()
```

```python
import re
import sys

sys.setrecursionlimit(1000000)

REG_RE = re.compile(r'^(-?)(abs\()?([vsa])(?:(\d+)|\[(\d+):(\d+)\])\)?$')
TRANS = ('v_exp_f32', 'v_log_f32', 'v_rcp_f32', 'v_rsq_f32', 'v_sqrt_f32', 'v_sin_f32', 'v_cos_f32', 'v_rcp_iflag_f32')


def regs_of(tok):
    tok = tok.strip()
    if tok in ('vcc', 'vcc_lo', 'vcc_hi'):
        return {'vcc'}
    if tok in ('exec', 'exec_lo', 'exec_hi'):
        return {'exec'}
    if tok == 'm0':
        return {'m0'}
    m = REG_RE.match(tok)
    if not m:
        return set()
    f = m.group(3)
    if m.group(4) is not None:
        return {f + m.group(4)}
    return {f + str(i) for i in range(int(m.group(5)), int(m.group(6)) + 1)}


def split_ops(s):
    out, depth, cur = [], 0, ''
    for ch in s:
        if ch in '[(':
            depth += 1
        if ch in '])':
            depth -= 1
        if ch == ',' and depth == 0:
            out.append(cur.strip())
            cur = ''
        else:
            cur += ch
    if cur.strip():
        out.append(cur.strip())
    return out


class I:
    __slots__ = ('text', 'op', 'ops', 'mods', 'kind', 'w', 'r', 'passes', 'srcA', 'srcB', 'srcC', 'states',
                 'target', 'label', 'lds_dma', 'data', 'widestore', 'lanesel', 'constread')

    def __init__(self, text):
        self.text = text
        self.label = None
        self.op = None
        self.kind = None
        self.w = set()
        self.r = set()
        self.passes = 0
        self.srcA = self.srcB = self.srcC = set()
        self.states = 1
        self.target = None
        self.lds_dma = False
        self.data = set()
        self.widestore = False
        self.lanesel = set()
        self.constread = set()
        body = text.split(';')[0].strip()
        if not body:
            self.kind = 'none'
            self.states = 0
            return
        if body.endswith(':'):
            self.kind = 'label'
            self.label = body[:-1]
            self.states = 0
            return
        if body.startswith('.'):
            self.kind = 'none'
            self.states = 0
            return
        parts = body.split(None, 1)
        op = parts[0]
        self.op = op
        rest = parts[1] if len(parts) > 1 else ''
        ops = split_ops(rest)
        mods = []
        if ops:
            lastw = ops[-1].split()
            ops[-1] = lastw[0]
            mods = lastw[1:]
        self.ops = ops
        self.mods = mods
        R = [regs_of(o) for o in ops]
        base = re.sub(r'_e(32|64)$', '', op)
        if base.startswith('v_mfma'):
            self.kind = 'mfma'
            self.passes = 8 if '32x32x16' in base else 4 if '16x16x32' in base else None
            assert self.passes, text
            self.w = R[0]
            self.srcA, self.srcB, self.srcC = R[1], R[2], R[3]
            self.r = R[1] | R[2] | R[3] | {'exec'}
        elif base.startswith('v_'):
            self.kind = 'trans' if base in TRANS else 'valu'
            self.r = {'exec'}
            if base.startswith('v_permlane') and base.endswith('swap_b32'):
                self.w = R[0] | R[1]
                self.r |= R[0] | R[1]
                self.kind = 'permlane'
            elif base in ('v_add_co_u32', 'v_sub_co_u32', 'v_subrev_co_u32'):
                self.w = R[0] | R[1]
                for x in R[2:]:
                    self.r |= x
            elif base in ('v_addc_co_u32', 'v_subb_co_u32'):
                self.w = R[0] | R[1]
                for x in R[2:]:
                    self.r |= x
            elif base in ('v_readfirstlane_b32', 'v_readlane_b32'):
                self.w = R[0]
                self.r |= R[1]
                self.kind = 'readlane'
                if len(R) > 2:
                    self.lanesel = R[2]
                    self.r |= R[2]
            else:
                self.w = R[0]
                for x in R[1:]:
                    self.r |= x
                if base in ('v_fmac_f32', 'v_pk_fmac_f16', 'v_dot2c_f32_bf16'):
                    self.r |= R[0]
                if base.startswith('v_cmpx'):
                    self.w |= {'exec'}
            self.constread = {x for x in self.r if x[0] == 's' or x == 'vcc'}
        elif base.startswith('ds_'):
            self.kind = 'ds'
            self.r = {'exec'}
            if base.startswith('ds_read') or base.startswith('ds_swizzle'):
                self.w = R[0]
                self.r |= R[1]
            elif base.startswith('ds_bpermute') or base.startswith('ds_permute'):
                self.w = R[0]
                self.r |= R[1] | R[2]
            elif base.startswith('ds_write'):
                for x in R:
                    self.r |= x
            else:
                raise ValueError('unknown ds ' + text)
        elif base.startswith('buffer_') or base.startswith('global_'):
            self.kind = 'vmem'
            self.r = {'exec'}
            if base in ('buffer_wbl2', 'buffer_inv'):
                pass
            elif 'lds' in mods or '_lds_' in base:
                self.lds_dma = True
                for x in R:
                    self.r |= x
                self.r |= {'m0'}
            elif base.startswith('buffer_load'):
                self.w = R[0]
                for x in R[1:]:
                    self.r |= x
            elif base.startswith('global_load'):
                self.w = R[0]
                for x in R[1:]:
                    self.r |= x
            elif base.startswith('buffer_store'):
                for x in R:
                    self.r |= x
                self.data = R[0]
                self.widestore = base.endswith('x4') or base.endswith('x3')
            elif base.startswith('global_store'):
                for x in R:
                    self.r |= x
                self.data = R[1]
                self.widestore = base.endswith('x4') or base.endswith('x3')
            elif base.startswith('buffer_atomic'):
                for x in R:
                    self.r |= x
                if 'sc0' in mods:
                    self.w = R[0]
            elif base.startswith('global_atomic'):
                if 'sc0' in mods:
                    self.w = R[0]
                    for x in R[1:]:
                        self.r |= x
                else:
                    for x in R:
                        self.r |= x
            else:
                raise ValueError('unknown vmem ' + text)
        elif base.startswith('s_load') or base.startswith('s_buffer_load') or base in ('s_memtime', 's_memrealtime'):
            self.kind = 'smem'
            self.w = R[0]
            for x in R[1:]:
                self.r |= x
        elif base == 's_nop':
            self.kind = 'nop'
            self.states = int(ops[0], 0) + 1
        elif base == 's_waitcnt':
            self.kind = 'wait'
        elif base in ('s_barrier', 's_setprio', 's_sleep'):
            self.kind = 'smisc'
        elif base == 's_endpgm':
            self.kind = 'end'
        elif base == 's_branch':
            self.kind = 'branch'
            self.target = ops[0]
        elif base.startswith('s_cbranch'):
            self.kind = 'cbranch'
            self.target = ops[0]
            if 'vcc' in base:
                self.r = {'vcc'}
            elif 'exec' in base:
                self.r = {'exec'}
        elif base.startswith('s_cmp') or base.startswith('s_bitcmp'):
            self.kind = 'salu'
            for x in R:
                self.r |= x
        elif base.startswith('s_'):
            self.kind = 'salu'
            self.w = R[0]
            for x in R[1:]:
                self.r |= x
            if 'saveexec' in base:
                self.w |= {'exec'}
                self.r |= {'exec'}
            if base in ('s_addk_i32', 's_mulk_i32', 's_bitset0_b32', 's_bitset1_b32'):
                self.r |= R[0]
        else:
            raise ValueError('unknown instruction ' + text)


def is_valu(i):
    return i.kind in ('valu', 'trans', 'permlane', 'readlane')


def vregs(s):
    return {x for x in s if x[0] in 'va' and x not in ('vcc',)}


def sregs(s):
    return {x for x in s if x[0] == 's' or x == 'vcc'}


def need(p, c):
    n = 0
    if is_valu(p):
        pw_v = vregs(p.w)
        pw_s = sregs(p.w)
        if c.kind == 'mfma' and pw_v & (c.srcA | c.srcB | c.srcC):
            n = max(n, 2)
        if c.kind == 'mfma' and 'exec' in p.w:
            n = max(n, 4)
        if p.kind == 'trans' and c.kind in ('valu', 'permlane', 'readlane') and pw_v & c.r:
            n = max(n, 1)
        if c.kind == 'readlane' and pw_v & c.r:
            n = max(n, 1)
        if c.kind == 'permlane' and pw_v & c.r:
            n = max(n, 2)
        if pw_s:
            if is_valu(c) and pw_s & c.constread:
                n = max(n, 2)
            if c.kind == 'readlane' and pw_s & c.lanesel:
                n = max(n, 4)
            if c.kind == 'vmem' and pw_s & c.r:
                n = max(n, 5)
            if c.kind in ('salu', 'smem') and pw_s & c.r:
                n = max(n, 1)
        if 'exec' in p.w and c.kind in ('readlane', 'permlane'):
            n = max(n, 4)
    if p.op and p.op.startswith('v_dot') and vregs(p.w) & (c.r | c.w):
        if c.op == p.op and len(c.ops) == 4 and not (vregs(p.w) & (regs_of(c.ops[1]) | regs_of(c.ops[2]))):
            pass
        else:
            n = max(n, 3)
    if p.kind == 'mfma':
        D = p.w
        big = {4: 8, 8: 12}[p.passes]
        ovl = {4: 6, 8: 10}[p.passes]
        war = {4: 3, 8: 7}[p.passes]
        if c.kind == 'mfma':
            if D & (c.srcA | c.srcB):
                n = max(n, big)
            if D & c.srcC:
                if not (c.srcC == D and c.passes == p.passes):
                    n = max(n, ovl)
            elif D & c.w:
                n = max(n, ovl if c.passes < p.passes else 0)
        elif is_valu(c) or c.kind in ('vmem', 'ds'):
            if D & (c.r | c.w):
                n = max(n, big)
        if is_valu(c) and p.srcC & c.w:
            n = max(n, war)
    if p.kind == 'salu' and 'm0' in p.w and c.kind == 'vmem' and c.lds_dma:
        n = max(n, 1)
    if p.kind == 'vmem' and p.widestore and p.data & c.w:
        n = max(n, 2)
    return n


def build(lines):
    ins = [I(t) for t in lines]
    labels = {x.label: k for k, x in enumerate(ins) if x.kind == 'label'}
    succ = [[] for _ in ins]
    for k, x in enumerate(ins):
        if x.kind == 'end':
            continue
        if x.kind == 'branch':
            succ[k].append(labels[x.target])
            continue
        if x.kind == 'cbranch':
            succ[k].append(labels[x.target])
        if k + 1 < len(ins):
            succ[k].append(k + 1)
    pred = [[] for _ in ins]
    for k, ss in enumerate(succ):
        for s in ss:
            pred[s].append(k)
    return ins, succ, pred


MAXD = 14


def fix_hazards(lines, verbose=False):
    total = 0
    for it in range(300):
        ins, succ, pred = build(lines)
        add = {}
        for k, c in enumerate(ins):
            if c.kind in ('none', 'label', 'nop', 'wait', 'smisc', 'end', 'branch'):
                continue
            worst = 0
            seen = {}
            stack = [(p, 0) for p in pred[k]]
            while stack:
                p, d = stack.pop()
                if d >= MAXD:
                    continue
                if seen.get(p, 99) <= d:
                    continue
                seen[p] = d
                x = ins[p]
                if x.states:
                    n = need(x, c)
                    if n > d:
                        worst = max(worst, n - d)
                for q in pred[p]:
                    stack.append((q, d + x.states))
            if worst:
                add[k] = worst
        if not add:
            break
        lastk = -100
        for k in sorted(add):
            if k - lastk < 20:
                del add[k]
            else:
                lastk = k
        out = []
        for k, t in enumerate(lines):
            if k in add:
                n = add[k]
                total += n
                if verbose:
                    print('  nop %d before: %s' % (n, t.strip()))
                while n > 0:
                    m = min(n, 16)
                    out.append('    s_nop %d' % (m - 1))
                    n -= m
            out.append(t)
        lines = out
    else:
        raise RuntimeError('hazard fix did not converge')
    return lines, total


WAIT_RE = re.compile(r'(vmcnt|lgkmcnt|expcnt)\((\d+)\)')


def check_waits(lines):
    ins, succ, pred = build(lines)
    errs = []
    seen = set()
    stack = [(0, (), ())]
    nstates = 0
    while stack:
        k, lq, vq = stack.pop()
        while True:
            key = (k, lq, vq)
            if key in seen:
                break
            seen.add(key)
            nstates += 1
            if nstates > 3000000:
                raise RuntimeError('too many states')
            x = ins[k]
            if x.states or x.kind == 'wait':
                touched = x.r | x.w
                for q, nm in ((lq, 'lgkm'), (vq, 'vm')):
                    for (kind, regs) in q:
                        if regs & touched:
                            errs.append('line %d: %s touches %s with outstanding %s load' % (k, x.text.strip(), sorted(regs & touched), nm))
                if x.kind == 'wait':
                    for nm, n in WAIT_RE.findall(x.text.split(';')[0]):
                        n = int(n)
                        if nm == 'vmcnt':
                            vq = vq[len(vq) - n:] if n < len(vq) else vq
                            if n == 0:
                                vq = ()
                        elif nm == 'lgkmcnt':
                            if n == 0:
                                lq = ()
                            elif not any(kind == 's' for kind, _ in lq):
                                lq = lq[len(lq) - n:] if n < len(lq) else lq
                elif x.kind == 'ds':
                    lq = lq + (('d', frozenset(x.w)),)
                    if len(lq) > 40:
                        lq = lq[-40:]
                elif x.kind == 'smem':
                    lq = lq + (('s', frozenset(x.w)),)
                elif x.kind == 'vmem':
                    vq = vq + (('v', frozenset(x.w)),)
                    if len(vq) > 70:
                        vq = vq[-70:]
            ss = succ[k]
            if not ss:
                break
            for s in ss[1:]:
                stack.append((s, lq, vq))
            k = ss[0]
    return sorted(set(errs))
```

```python
import math
import struct
import sys

sys.path.insert(0, 'gen')
import chk

NAME = 'concat_heads__gqa_block_cached__mha_block_cached__near_ridge'
ARGS = sys.argv[1:]


def opt(name, default):
    for a in ARGS:
        if a.startswith('--%s=' % name):
            return type(default)(a.split('=')[1])
    return default


def f32(x):
    return '0x%08x' % struct.unpack('<I', struct.pack('<f', x))[0]


def vr(a, n=1):
    return 'v%d' % a if n == 1 else 'v[%d:%d]' % (a, a + n - 1)


def sr(a, n=1):
    return 's%d' % a if n == 1 else 's[%d:%d]' % (a, a + n - 1)


class P:
    def __init__(s):
        s.L = []

    def __call__(s, t):
        for x in t.strip('\n').split('\n'):
            x = x.strip()
            if x:
                s.L.append('    ' + x)

    def label(s, n):
        s.L.append(n + ':')

    def c(s, t):
        s.L.append('    ; ' + t)

    def ext(s, items):
        for x in items:
            if x.endswith(':'):
                s.L.append(x)
            else:
                s.L.append('    ' + x)


LDS_TOTAL = 163840
SLOT = 16384
PART_B = 165888
LDS_DROP = 0x30000

vO = 0
vOr = 64
vQ = 96
vQr = 128
vS = [144, 160]
vNM = 176
vSr = 192
vNMr = 200
vF = 204
vL0, vLr = 236, 237
vKa = [238, 239, 240, 241]
vVa = [242, 243]
bKr, bVr = 244, 245
vT = [246, 247]
voffK, voffV = 248, 249
vMx, vA, vB, vC = 250, 251, 252, 253
vLane = 254
vDum = 255
voffWo = voffK
qSet = [144, 164]
qRem = 184
qBase = 196
qCur = 200
voffW, voffX, voffX9, voffT = 206, 207, 208, 209
WBUF, XBUF, XSTG = 16384, 18432, 6 * 16384
tOB = 64
tRB = 128
tAcc = [160, 0]
tRac = [48, 56]
tF = 208
tRm, tRr, tCm, tCr, tPm, tPr = 240, 241, 242, 243, 244, 245

sX, sW, sK, sV, sWo, sPt, sTc, sG = 4, 8, 12, 16, 20, 24, 28, 32
sW8, sE, sWv, sB, sHP, sTyp = 36, 37, 38, 39, 40, 41
sCur, sQx, sWr, sDelta = 42, 43, 44, 45
sSv, sSv1, sSk0, sSk1 = 46, 47, 48, 49
sCnt, sT0, sT1, sT2 = 50, 51, 52, 53
sEx = 54
sScale, sThr = 56, 58
sMb, sMw, sMx = 59, 60, 61
sCv, sRot = 62, 63
sR = 64
sBufR, sBufW, sSoW, sSoX, sTo = 69, 70, 71, 72, 73
sXR, sXW = 46, 47
sWs, sOut, sDbg = 74, 76, 78
sKA = 80

LOOK = opt('look', 6)
THR = 8.0
NT = ' nt'
STAMP = '--stamp' in ARGS
STAMP_OFF = 64 << 20
BA, BB = opt('ba', 3), opt('bb', 5)
ONEBAR = '--onebar' in ARGS
DDA = opt('dda', 4)


def stamp(i):
    if not STAMP:
        return []
    r = 100 if i == 0 else 80 + 2 * (i - 1)
    return ['s_memtime s[%d:%d]' % (r, r + 1), 's_waitcnt lgkmcnt(0)']


def stamp_flush(p, n):
    if not STAMP:
        return
    p('s_mul_i32 %s, s2, 8' % sr(sT0))
    p('s_add_u32 %s, %s, %s' % (sr(sT0), sr(sT0), sr(sW8)))
    p('s_lshl_b32 %s, %s, 6' % (sr(sT0), sr(sT0)))
    p('s_add_u32 %s, %s, 0x%x' % (sr(sT0), sr(sT0), STAMP_OFF))
    p('s_add_u32 %s, %s, %s' % (sr(sG), sr(sWs), sr(sT0)))
    p('s_addc_u32 %s, %s, 0' % (sr(sG + 1), sr(sWs + 1)))
    p('s_mov_b32 %s, 64' % sr(sG + 2))
    p('s_mov_b32 %s, 0x20000' % sr(sG + 3))
    p('v_mov_b32 v1, 0')
    for i in range(n):
        p('v_mov_b32 v2, s%d' % (100 if i == 0 else 80 + 2 * (i - 1)))
        p('buffer_store_dword v2, v1, %s, 0 offen offset:%d' % (sr(sG, 4), 4 * i))
    p('s_waitcnt vmcnt(0)')


def resolve_waits(items, ctxs):
    def is_lds(x):
        return (isinstance(x, tuple) and x[0] == 'R') or (isinstance(x, str) and x.startswith('ds_'))
    res = {}
    for ctx in ctxs:
        seq = list(ctx) + list(items)
        off = len(ctx)
        cnt = 0
        pos = {}
        done = 0
        for k, x in enumerate(seq):
            if is_lds(x):
                cnt += 1
                if isinstance(x, tuple):
                    pos[x[1]] = cnt
            elif isinstance(x, str) and x.startswith('s_waitcnt') and 'lgkmcnt(0)' in x:
                done = cnt
            elif isinstance(x, tuple) and x[0] == 'W':
                last = max(pos[i] for i in x[1]) if all(i in pos for i in x[1]) else None
                if last is None:
                    assert k < off
                    continue
                n = min(cnt - last, 15)
                skip = last <= done
                done = max(done, last)
                if k >= off:
                    old = res.get(k - off, (99, True))
                    res[k - off] = (min(old[0], n), old[1] and skip)
    out = []
    for k, x in enumerate(items):
        if isinstance(x, tuple):
            if x[0] == 'R':
                out.append(x[2])
            else:
                n, skip = res[k]
                out.append('; (wait implied)' if skip else 's_waitcnt lgkmcnt(%d)' % n)
        else:
            out.append(x)
    return out


def softmax_stream(S, n, lregs):
    seq = []
    pend = []
    for i in range(0, n, 2):
        seq.append(('e', i))
        seq += pend
        seq.append(('e', i + 1))
        pend = [('a', i), ('a', i + 1), ('c', i)]
    seq += pend
    st = []
    for k, i in seq:
        if k == 'e':
            st.append((2, 'v_exp_f32 %s, %s' % (vr(S + i), vr(S + i))))
        elif k == 'a':
            l = lregs[i % len(lregs)]
            st.append((1, 'v_add_f32 %s, %s, %s' % (vr(l), vr(l), vr(S + i))))
        elif k == 'c':
            dst = S + (i // 8) * 8 + (i % 8) // 2
            st.append((1, 'v_cvt_pk_bf16_f32 %s, %s, %s' % (vr(dst), vr(S + i), vr(S + i + 1))))
    return st


def max_stream(S, n, dst):
    st = [(1, 'v_max3_f32 %s, %s, %s, %s' % (vr(dst), vr(S), vr(S + 1), vr(S + 2)))]
    i = 3
    while i + 1 < n:
        st.append((1, 'v_max3_f32 %s, %s, %s, %s' % (vr(dst), vr(dst), vr(S + i), vr(S + i + 1))))
        i += 2
    if i < n:
        st.append((1, 'v_max_f32 %s, %s, %s' % (vr(dst), vr(dst), vr(S + i))))
    return st


def x16_op(x, op):
    return ['ds_swizzle_b32 %s, %s offset:0x401F' % (vr(vA), vr(x)), 's_waitcnt lgkmcnt(0)',
            '%s %s, %s, %s' % (op, vr(x), vr(x), vr(vA))]


def xhalf_op(x, op):
    return ['v_mov_b32 %s, %s' % (vr(vA), vr(x)), 'v_mov_b32 %s, %s' % (vr(vB), vr(x)),
            'v_permlane32_swap_b32 %s, %s' % (vr(vA), vr(vB)),
            '%s %s, %s, %s' % (op, vr(x), vr(vA), vr(vB))]


def tile_off(dst, c, add):
    return ['s_add_u32 %s, %s, 0x%x' % (sr(sT0), sr(c), add),
            's_add_u32 %s, %s, %s' % (sr(dst), sr(sT0), sr(sRot)),
            's_and_b32 %s, %s, 0x3ffff' % (sr(dst), sr(dst)),
            's_and_b32 %s, %s, 0x40000' % (sr(sT0), sr(sT0)),
            's_or_b32 %s, %s, %s' % (sr(dst), sr(dst), sr(sT0))]


def wo_stage_dma(st):
    G, kq = st // 4, st % 4
    g = []
    for i in range(3):
        g.append(['s_add_u32 m0, %s, %s' % (sr(sR + st % 5), sr(sMx)) if i == 0 else 's_add_u32 m0, m0, 0x400',
                  's_mov_b32 %s, 0x%x' % (sr(sT2), kq * 64 * 1152 + G * 384 + i * 128),
                  'buffer_load_dwordx4 %s, %s, %s offen lds' % (vr(voffWo), sr(sWo, 4), sr(sT2))])
    return g


def voffwo_code():
    return ['v_lshrrev_b32 %s, 3, %s' % (vr(vA), vr(vLane)),
            'v_mul_u32_u24 %s, 0x480, %s' % (vr(vA), vr(vA)),
            'v_bfe_u32 %s, %s, 4, 1' % (vr(vB), vr(vLane)),
            'v_lshlrev_b32 %s, 2, %s' % (vr(vB), vr(vB)),
            'v_xor_b32 %s, %s, %s' % (vr(vB), vr(vB), vr(vLane)),
            'v_and_b32 %s, 7, %s' % (vr(vB), vr(vB)),
            'v_lshl_add_u32 %s, %s, 4, %s' % (vr(vA), vr(vB), vr(vA)),
            's_mul_i32 %s, %s, 9216' % (sr(sT0), sr(sW8)),
            'v_add_u32 %s, %s, %s' % (vr(voffWo), sr(sT0), vr(vA))]


class Attn:
    def __init__(s, typ, role):
        s.typ, s.role = typ, role
        s.heavy = role != 'L'
        s.tag = ('A' if typ == 0 else 'B') + role
        s.DD = DDA if typ == 0 else 4
        s.onebar = ONEBAR or (typ == 0 and DDA < 9)
        s.early = typ == 0 and DDA < 9
        s.nd = 2 if typ == 0 else 4
        s.stride = SLOT if typ == 0 else 2 * SLOT

    def pv_slots(s, par, init):
        So = vS[1 - par]
        out = []
        for us in range(2):
            for jt in range(4):
                def mk(f, us=us, jt=jt):
                    c = '0' if (init and us == 0) else vr(vO + 16 * jt, 16)
                    mf = 'v_mfma_f32_32x32x16_bf16 %s, %s, %s, %s' % (vr(vO + 16 * jt, 16), vr(f, 4), vr(So + 8 * us, 4), c)
                    rd = ['ds_read_b64_tr_b16 %s, %s offset:%d' % (vr(f + 2 * p, 2), vr(vVa[jt & 1]), us * 4096 + p * 2048 + (jt >> 1) * 512) for p in range(2)]
                    return mf, rd
                out.append(('big', 'pv', mk))
        return out

    def qk_slots(s, par, czero=False):
        So = vS[1 - par]
        out = []
        for st in range(8):
            def mk(f, st=st):
                c = ('0' if czero else vr(vNM, 16)) if st == 0 else vr(So, 16)
                mf = 'v_mfma_f32_32x32x16_bf16 %s, %s, %s, %s' % (vr(So, 16), vr(f, 4), vr(vQ + 4 * st, 4), c)
                rd = ['ds_read_b128 %s, %s offset:%d' % (vr(f, 4), vr(vKa[st & 3]), (st >> 2) * 512)]
                return mf, rd
            out.append(('big', 'qk', mk))
        return out

    def rqk_slots(s, init):
        out = []
        for st in range(4):
            for z in range(2):
                def mk(f, st=st, z=z):
                    c = ('0' if init else vr(vNMr, 4)) if st == 0 else vr(vSr + 4 * z, 4)
                    mf = 'v_mfma_f32_16x16x32_bf16 %s, %s, %s, %s' % (vr(vSr + 4 * z, 4), vr(f, 4), vr(vQr + 4 * st, 4), c)
                    rd = ['ds_read_b128 %s, %s offset:%d' % (vr(f, 4), vr(vT[st & 1]), z * 4096 + (st >> 1) * 512)]
                    return mf, rd
                out.append(('small', 'rqk', mk))
        return out

    def rpv_slots(s):
        out = []
        for T in range(8):
            def mk(f, T=T):
                mf = 'v_mfma_f32_16x16x32_bf16 %s, %s, %s, %s' % (vr(vOr + 4 * T, 4), vr(f, 4), vr(vSr, 4), vr(vOr + 4 * T, 4))
                rd = ['ds_read_b64_tr_b16 %s, %s offset:%d' % (vr(f + 2 * p, 2), vr(vT[(T >> 1) & 1]), p * 4096 + (T >> 2) * 512 + (T & 1) * 32) for p in range(2)]
                return mf, rd
            out.append(('small', 'rpv', mk))
        return out

    def rem_kind(s, par):
        if not s.heavy:
            return None
        return 'rqk' if (par == 0) == (s.role == 'X') else 'rpv'

    def dma_items(s):
        g = [['s_add_u32 m0, %s, %s' % (sr(sWr), sr(sMb)), 's_nop 0',
              'buffer_load_dwordx4 %s, %s, %s offen%s lds' % (vr(voffK), sr(sK, 4), sr(sSk0), NT)]]
        if s.typ == 1:
            for vo, srd, so in ((voffK, sK, sSk1), (voffV, sV, sSv), (voffV, sV, sSv1)):
                g.append(['s_add_u32 m0, m0, 0x1000', 's_nop 0',
                          'buffer_load_dwordx4 %s, %s, %s offen%s lds' % (vr(vo), sr(srd, 4), sr(so), NT)])
        else:
            g.append(['s_add_u32 m0, m0, 0x2000', 's_nop 0',
                      'buffer_load_dwordx4 %s, %s, %s offen%s lds' % (vr(voffV), sr(sV, 4), sr(sSv), NT)])
        return g

    def adv_scalar(s, dma):
        o = ['s_mov_b32 %s, %s' % (sr(sWr), sr(sCur)),
             's_add_u32 %s, %s, 0x%x' % (sr(sCur), sr(sCur), s.stride),
             's_cmp_ge_u32 %s, 0x%x' % (sr(sCur), LDS_TOTAL),
             's_cselect_b32 %s, 0x%x, 0' % (sr(sT0), LDS_TOTAL),
             's_sub_u32 %s, %s, %s' % (sr(sCur), sr(sCur), sr(sT0)),
             's_sub_u32 %s, %s, %s' % (sr(sDelta), sr(sCur), sr(sWr))]
        if dma and s.early:
            o += ['s_add_u32 %s, %s, 0x%x' % (sr(sWr), sr(sCur), s.DD * SLOT),
                  's_cmp_ge_u32 %s, 0x%x' % (sr(sWr), LDS_TOTAL),
                  's_cselect_b32 %s, 0x%x, 0' % (sr(sT0), LDS_TOTAL),
                  's_sub_u32 %s, %s, %s' % (sr(sWr), sr(sWr), sr(sT0))]
        if dma:
            o += ['s_add_u32 %s, %s, 0x2000' % (sr(sCv), sr(sCv)),
                  's_cmp_lt_u32 %s, 0x40000' % sr(sCv),
                  's_cselect_b32 %s, %s, 0x%x' % (sr(sWr), sr(sWr), LDS_DROP)]
            o += tile_off(sSv, sCv, 0) + tile_off(sSk0, sCv, 0x2000)
            if s.typ == 1:
                o += ['s_add_u32 %s, %s, 0x1000' % (sr(sSv1), sr(sSv)),
                      's_add_u32 %s, %s, 0x1000' % (sr(sSk1), sr(sSk0))]
        return o

    def rem_addr(s, par):
        k = s.rem_kind(par)
        if not k:
            return []
        return ['v_add_u32 %s, %s, %s' % (vr(vT[0]), sr(sCur), vr(bKr if k == 'rqk' else bVr)),
                'v_xor_b32 %s, 64, %s' % (vr(vT[1]), vr(vT[0]))]

    def adv_vector(s, nextpar):
        o = ['v_add_u32 %s, %s, %s' % (vr(x), sr(sDelta), vr(x)) for x in vKa + vVa]
        return o + s.rem_addr(nextpar)

    def iter_slots(s, par, kind):
        first, last = kind == 'first', kind == 'last'
        sl = []
        k = s.rem_kind(par)
        if k == 'rqk':
            sl += s.rqk_slots(init=first)
        elif k == 'rpv':
            sl += [None] * 8 if (first and par == 0) else s.rpv_slots()
        npv = len(sl)
        sl += [None] * 8 if (first and par == 0) else s.pv_slots(par, init=(first and par == 1))
        sl += [None] * 8 if (last and par == 1) else s.qk_slots(par)
        return sl, npv

    def epi_slots(s):
        sl = s.rpv_slots() if s.rem_kind(0) == 'rpv' else []
        return sl + s.pv_slots(0, init=False)

    def pair(s, kind):
        first, last = kind == 'first', kind == 'last'
        slots, starts, pvs = [], [], []
        for par in range(2):
            starts.append(len(slots))
            sl, npv = s.iter_slots(par, kind)
            pvs.append(len(slots) + npv)
            slots += sl
        n = len(slots)
        assert n % 8 == 0
        nxt = s.epi_slots() if last else s.iter_slots(0, 'loop')[0]
        made = []
        for k, sl in enumerate(slots + nxt):
            if sl is None:
                made.append(None)
            else:
                mf, rd = sl[2](vF + 4 * (k % 8))
                ids = ['%d_%d' % (k if k < n else k - n, i) for i in range(len(rd))]
                made.append((sl[0], sl[1], mf, rd, ids))
        items = []
        nread = 0 if first else LOOK
        gate = [pvs[0] + 8]
        rares = []

        def emit_reads(upto):
            nonlocal nread
            while nread <= upto and nread < n + LOOK and nread < gate[0]:
                m = made[nread]
                if m is not None:
                    for i, t in zip(m[4], m[3]):
                        items.append(('R', i, t))
                nread += 1

        for par in range(2):
            a = starts[par]
            b = starts[1] if par == 0 else n
            pv0 = pvs[par]
            S = vS[par]
            gate[0] = pv0 + 8
            nocheck = first and par == 0
            if last:
                dma = (wo_stage_dma(0) + wo_stage_dma(1) + wo_stage_dma(2)) if par == 0 else []
                nv = (s.DD - 1 - par) * s.nd + 9
            else:
                dma = s.dma_items()
                nv = s.DD * s.nd
            mainq = []
            if not nocheck:
                mainq += max_stream(S, 16, vMx)
                mainq.append((1, 'v_cmp_lt_f32 vcc, %s, %s' % (sr(sThr), vr(vMx))))
                mainq.append((0, 'BR_MAIN'))
            mainq += softmax_stream(S, 16, [vL0])
            remq = []
            if s.rem_kind(par) == 'rqk':
                remq += max_stream(vSr, 8, vC)
                if first:
                    blk = x16_op(vC, 'v_max_f32') + xhalf_op(vC, 'v_max_f32')
                    blk += ['v_sub_f32 %s, 0, %s' % (vr(vNMr + i), vr(vC)) for i in range(4)]
                    blk += ['v_sub_f32 %s, %s, %s' % (vr(vSr + i), vr(vSr + i), vr(vC)) for i in range(8)]
                    remq += [(1, t) for t in blk]
                else:
                    remq.append((1, 'v_cmp_lt_f32 vcc, %s, %s' % (sr(sThr), vr(vC))))
                    remq.append((0, 'BR_REM'))
                remq += softmax_stream(vSr, 8, [vLr])
            rem_ready = pv0 + 7
            present = [k for k in range(a, b) if made[k] is not None]
            cap = {k: (6 if made[k][0] == 'big' else 2) for k in present}
            firstgap = present[1] if not nocheck else present[0]
            seg_start = None
            misc = s.adv_scalar(not last)
            emit_reads(present[0] - 1 + LOOK)

            def bar_a(k):
                nonlocal misc
                items.extend(misc)
                misc = []
                assert nread >= gate[0] or all(made[j] is None for j in range(nread, gate[0]))
                items.extend(s.adv_vector(1 - par))
                if s.onebar:
                    if s.early and not last:
                        for g in dma:
                            items.extend(g)
                        del dma[:]
                    items.append('s_waitcnt vmcnt(%d) lgkmcnt(0)' % (nv - len(dma)))
                    items.append('s_barrier')
                    gate[0] = 10 ** 6
                    emit_reads(k + LOOK)
                else:
                    items.append('s_waitcnt lgkmcnt(0)')
                    items.append('s_barrier')

            def bar_b(k):
                for g in dma:
                    items.extend(g)
                del dma[:]
                if s.onebar:
                    return
                items.append('s_waitcnt vmcnt(%d)' % nv)
                items.append('s_barrier')
                gate[0] = 10 ** 6
                emit_reads(k + LOOK)

            for k in range(a, b):
                m = made[k]
                if m is not None:
                    items.append(('W', m[4]))
                    items.append(m[2])
                    if k == pv0 + 7 and seg_start is not None:
                        lab = 'REJ_%s_%s%d' % (s.tag, kind, par)
                        items.append(lab + ':')
                        rares.append(('main', seg_start, len(items) - 1, lab, par, kind))
                        seg_start = None
                emit_reads(k + LOOK)
                if k == pv0 + BA - 1:
                    bar_a(k)
                if pv0 + BA - 1 <= k < pv0 + BB - 1 and m is not None:
                    nper = -(-len(dma) // (pv0 + BB - 1 - k)) if dma else 0
                    for _ in range(nper):
                        items.extend(dma.pop(0))
                if k == pv0 + BB - 1:
                    bar_b(k)
                if m is None:
                    continue
                if misc and k < pv0 + BA - 1:
                    take = 6
                    items.extend(misc[:take])
                    misc = misc[take:]
                if k < firstgap:
                    continue
                remaining = sum(c for c, _ in mainq) + sum(c for c, _ in remq)
                capleft = sum(cap[j] for j in present if j >= k)
                bud = math.ceil(remaining * cap[k] / capleft)
                while bud > 0 and (mainq or remq):
                    use_rem = remq and k >= rem_ready and (not mainq or sum(c for c, _ in remq) * 2 >= sum(c for c, _ in mainq) or k >= b - 3)
                    q = remq if use_rem else mainq
                    if not q:
                        break
                    c, t = q.pop(0)
                    bud -= c
                    s.put(items, t, kind, par, rares)
                    if t == 'BR_MAIN':
                        seg_start = len(items)
                    elif q and q[0][1] in ('BR_MAIN', 'BR_REM'):
                        c, t = q.pop(0)
                        s.put(items, t, kind, par, rares)
                        if t == 'BR_MAIN':
                            seg_start = len(items)
            assert seg_start is None
            for c, t in mainq + remq:
                s.put(items, t, kind, par, rares)
            if par == 1 and kind == 'loop':
                items += ['s_cmp_lg_u32 %s, %d' % (sr(sCnt), opt('wot', 3)), 's_cbranch_scc1 NOT_%s' % s.tag,
                          'v_lshlrev_b32 %s, 7, %s' % (vr(vA), vr(vLane)),
                          's_mul_i32 %s, %s, 4608' % (sr(sT0), sr(sW8)),
                          's_mul_i32 %s, %s, 36864' % (sr(sT1), sr(sB)),
                          's_add_u32 %s, %s, %s' % (sr(sT0), sr(sT0), sr(sT1)),
                          'buffer_load_dword %s, %s, %s, %s offen' % (vr(vDum), vr(vA), sr(sWo, 4), sr(sT0)),
                          'NOT_%s:' % s.tag]
                items += ['s_sub_u32 %s, %s, 1' % (sr(sCnt), sr(sCnt)), 's_cmp_lg_u32 %s, 0' % sr(sCnt),
                          's_cbranch_scc1 LOOP_%s' % s.tag]
        return items, rares, made[n:]

    def put(s, items, t, kind, par, rares):
        if t == 'BR_MAIN':
            items.append('s_cbranch_vccnz RARE_%s_%s%d' % (s.tag, kind, par))
        elif t == 'BR_REM':
            lab = 'RREJ_%s_%s' % (s.tag, kind)
            items.append('s_cbranch_vccnz RRARE_%s_%s' % (s.tag, kind))
            items.append(lab + ':')
            rares.append(('rem', lab, kind))
        else:
            items.append(t)

    def rare_blocks(s, text, rares):
        out = []
        for r in rares:
            if r[0] == 'main':
                _, a, b, lab, par, kind = r
                S = vS[par]
                seg = text[a:b]
                issoft = lambda t: t.startswith(('v_exp_f32', 'v_add_f32', 'v_cvt_pk'))
                assert not any(t.endswith(':') for t in seg)
                out.append('RARE_%s_%s%d:' % (s.tag, kind, par))
                out += [t for t in seg if not issoft(t)]
                out += xhalf_op(vMx, 'v_max_f32')
                out += ['v_max_f32 %s, 0, %s' % (vr(vMx), vr(vMx)),
                        'v_exp_f32 %s, -%s' % (vr(vA), vr(vMx))]
                out += ['v_sub_f32 %s, %s, %s' % (vr(S + i), vr(S + i), vr(vMx)) for i in range(16)]
                out += ['v_sub_f32 %s, %s, %s' % (vr(vNM + i), vr(vNM + i), vr(vMx)) for i in range(16)]
                out += ['v_mul_f32 %s, %s, %s' % (vr(x), vr(x), vr(vA)) for x in [vL0] + list(range(vO, vO + 64))]
                out += [t for t in seg if issoft(t)]
                out.append('s_branch %s' % lab)
            else:
                _, lab, kind = r
                out.append('RRARE_%s_%s:' % (s.tag, kind))
                out += x16_op(vC, 'v_max_f32') + xhalf_op(vC, 'v_max_f32')
                out += ['v_max_f32 %s, 0, %s' % (vr(vC), vr(vC)),
                        'v_exp_f32 %s, -%s' % (vr(vA), vr(vC))]
                out += ['v_sub_f32 %s, %s, %s' % (vr(vSr + i), vr(vSr + i), vr(vC)) for i in range(8)]
                out += ['v_sub_f32 %s, %s, %s' % (vr(vNMr + i), vr(vNMr + i), vr(vC)) for i in range(4)]
                out += ['v_mul_f32 %s, %s, %s' % (vr(x), vr(x), vr(vA)) for x in [vLr] + list(range(vOr, vOr + 32))]
                out.append('s_branch %s' % lab)
        return out

    def emit(s, p):
        tag = s.tag
        p.label('ATT_%s' % tag)
        if s.heavy:
            p('v_lshlrev_b32 %s, 4, %s' % (vr(vA), vr(vLane)))
            p('v_add_u32 %s, %s, %s' % (vr(vA), sr(sQx), vr(vA)))
            for i in range(4):
                p('ds_read_b128 %s, %s offset:%d' % (vr(vQr + 4 * i, 4), vr(vA), i * 1024))
        qk0 = [sl[2](vF + 4 * k) for k, sl in enumerate(s.qk_slots(1, czero=True))]
        for mf, rd in qk0:
            p(rd[0])
        for k, (mf, rd) in enumerate(qk0):
            p('s_waitcnt lgkmcnt(%d)' % (7 - k))
            p(mf)
        for x in [vL0, vLr] + (list(range(vOr, vOr + 32)) if s.heavy else []):
            p('v_mov_b32 %s, 0' % vr(x))
        if s.role == 'X':
            p.ext(s.rem_addr(0))
        for c, t in max_stream(vS[0], 16, vMx):
            p(t)
        p.ext(xhalf_op(vMx, 'v_max_f32'))
        for i in range(16):
            p('v_sub_f32 %s, 0, %s' % (vr(vNM + i), vr(vMx)))
        for i in range(16):
            p('v_sub_f32 %s, %s, %s' % (vr(vS[0] + i), vr(vS[0] + i), vr(vMx)))
        p('s_mov_b32 %s, 14' % sr(sCnt))
        fi, fr, _ = s.pair('first')
        li, lr, _ = s.pair('loop')
        la, lar, ep = s.pair('last')
        ft = resolve_waits(fi, [[]])
        lt = resolve_waits(li, [fi, li])
        lat = resolve_waits(la, [li])
        epi = []
        nread = LOOK
        for k, m in enumerate(ep):
            epi.append(('W', m[4]))
            epi.append(m[2])
            if nread < len(ep):
                for i, t in zip(ep[nread][4], ep[nread][3]):
                    epi.append(('R', i, t))
                nread += 1
        et = resolve_waits(epi, [la])
        p.ext(stamp(3))
        p.ext(ft)
        p.ext(stamp(4))
        p.label('LOOP_%s' % tag)
        if '--nocompute' in ARGS:
            p.ext([t for t in lt if not t.startswith(('v_', 'ds_', 's_cbranch_vcc', 's_waitcnt lgkm'))])
        elif '--nomem' in ARGS:
            p.ext([t for t in lt if not t.startswith(('buffer_load', 's_waitcnt vmcnt'))])
        else:
            p.ext(lt)
        p.ext(stamp(5))
        p.ext(voffwo_code())
        p.ext(lat)
        p.ext(et)
        p.ext(stamp(6))
        p('s_branch TAIL_%s' % s.role)
        p.ext(s.rare_blocks(ft, fr) + s.rare_blocks(lt, lr) + s.rare_blocks(lat, lar))


def tail(p, role):
    heavy = role != 'L'
    p.label('TAIL_%s' % role)
    p.ext(xhalf_op(vL0, 'v_add_f32'))
    p('v_rcp_f32 %s, %s' % (vr(vL0), vr(vL0)))
    p('v_lshlrev_b32 %s, 4, %s' % (vr(vC), vr(vLane)))
    if heavy:
        p.ext(x16_op(vLr, 'v_add_f32'))
        p.ext(xhalf_op(vLr, 'v_add_f32'))
        p('s_cmp_eq_u32 %s, 0' % sr(sE))
        p('s_cselect_b32 %s, %s, %s' % (sr(sT0), sr(sR), sr(sR + 1)))
        p('s_add_u32 %s, %s, 24576' % (sr(sT0), sr(sT0)))
        p('v_add_u32 %s, %s, %s' % (vr(vT[0]), sr(sT0), vr(vC)))
        p('s_lshl_b32 %s, %s, 10' % (sr(sT1), sr(sE)))
        p('s_add_u32 %s, %s, %s' % (sr(sT1), sr(sT1), sr(sR + 2)))
        p('s_add_u32 %s, %s, 24576' % (sr(sT1), sr(sT1)))
        p('v_add_u32 %s, %s, %s' % (vr(vT[1]), sr(sT1), vr(vC)))
        if role == 'Y':
            for i in range(8):
                p('ds_write_b128 %s, %s offset:%d' % (vr(vT[0]), vr(vOr + 4 * i, 4), i * 1024))
            p('v_mov_b32 %s, %s' % (vr(vNMr + 1), vr(vLr)))
            p('ds_write_b128 %s, %s' % (vr(vT[1]), vr(vNMr, 4)))
    for i in range(64):
        p('v_mul_f32 %s, %s, %s' % (vr(vO + i), vr(vO + i), vr(vL0)))
    for i in range(32):
        p('v_cvt_pk_bf16_f32 %s, %s, %s' % (vr(vS[0] + i), vr(vO + 2 * i), vr(vO + 2 * i + 1)))
    p('s_lshl_b32 %s, %s, 13' % (sr(sT0), sr(sW8)))
    p('s_add_u32 %s, %s, %s' % (sr(sT0), sr(sT0), sr(sR + 3)))
    p('v_add_u32 %s, %s, %s' % (vr(vA), sr(sT0), vr(vC)))
    p('s_waitcnt vmcnt(0) lgkmcnt(0)')
    p('s_barrier')
    for i in range(8):
        p('ds_write_b128 %s, %s offset:%d' % (vr(vA), vr(vS[0] + 4 * i, 4), i * 1024))
    if role == 'X':
        for i in range(8):
            p('ds_read_b128 %s, %s offset:%d' % (vr(vO + 4 * i, 4), vr(vT[0]), i * 1024))
        p('ds_read_b128 %s, %s' % (vr(vO + 32, 4), vr(vT[1])))
        p('s_waitcnt lgkmcnt(0)')
        ym, yl = vO + 32, vO + 33
        p('v_min_f32 %s, %s, %s' % (vr(vMx), vr(vNMr), vr(ym)))
        p('v_sub_f32 %s, %s, %s' % (vr(vA), vr(vMx), vr(vNMr)))
        p('v_sub_f32 %s, %s, %s' % (vr(vB), vr(vMx), vr(ym)))
        p('v_exp_f32 %s, %s' % (vr(vA), vr(vA)))
        p('v_exp_f32 %s, %s' % (vr(vB), vr(vB)))
        p('s_nop 0')
        p('v_mul_f32 %s, %s, %s' % (vr(vLr), vr(vLr), vr(vA)))
        p('v_fmac_f32 %s, %s, %s' % (vr(vLr), vr(yl), vr(vB)))
        p('v_rcp_f32 %s, %s' % (vr(vLr), vr(vLr)))
        p('s_nop 0')
        p('v_mul_f32 %s, %s, %s' % (vr(vA), vr(vA), vr(vLr)))
        p('v_mul_f32 %s, %s, %s' % (vr(vB), vr(vB), vr(vLr)))
        for i in range(32):
            p('v_mul_f32 %s, %s, %s' % (vr(vOr + i), vr(vOr + i), vr(vA)))
            p('v_fmac_f32 %s, %s, %s' % (vr(vOr + i), vr(vO + i), vr(vB)))
        for i in range(16):
            p('v_cvt_pk_bf16_f32 %s, %s, %s' % (vr(vO + 40 + i), vr(vOr + 2 * i), vr(vOr + 2 * i + 1)))
        for jt in range(4):
            p('ds_write_b128 %s, %s offset:%d' % (vr(vT[0]), vr(vO + 40 + 4 * jt, 4), jt * 1024))
    L = vLane
    ta, tb, tc = 1 + 100, 2 + 100, 3 + 100
    p('v_bfe_u32 %s, %s, 2, 2' % (vr(ta), vr(L)))
    p('v_lshrrev_b32 %s, 5, %s' % (vr(tb), vr(L)))
    p('v_lshl_add_u32 %s, %s, 2, %s' % (vr(tb), vr(tb), vr(ta)))
    p('v_lshlrev_b32 %s, 7, %s' % (vr(tb), vr(tb)))
    p('v_lshrrev_b32 %s, 1, %s' % (vr(ta), vr(ta)))
    p('v_lshlrev_b32 %s, 6, %s' % (vr(ta), vr(ta)))
    p('v_bfe_u32 %s, %s, 1, 1' % (vr(tc), vr(L)))
    p('v_lshl_add_u32 %s, %s, 4, %s' % (vr(ta), vr(tc), vr(ta)))
    p('v_and_b32 %s, 1, %s' % (vr(tc), vr(L)))
    p('v_lshl_add_u32 %s, %s, 3, %s' % (vr(ta), vr(tc), vr(ta)))
    p('v_bfe_u32 %s, %s, 4, 1' % (vr(tc), vr(L)))
    p('v_lshl_add_u32 %s, %s, 5, %s' % (vr(tb), vr(tc), vr(tb)))
    p('v_add_u32 %s, %s, %s' % (vr(tb), vr(tb), vr(ta)))
    p('s_lshl_b32 %s, %s, 6' % (sr(sT0), sr(sE)))
    p('v_xor_b32 %s, %s, %s' % (vr(tRm), sr(sT0), vr(tb)))
    if heavy:
        p('s_and_b32 %s, %s, 1' % (sr(sT1), sr(sW8)))
        p('s_add_u32 %s, %s, 4' % (sr(sT0), sr(sE)))
    else:
        p('s_mov_b32 %s, 0' % sr(sT1))
        p('s_sub_u32 %s, %s, 2' % (sr(sT0), sr(sW8)))
    p('v_bfe_u32 %s, %s, 2, 3' % (vr(tb), vr(L)))
    p('v_lshlrev_b32 %s, 7, %s' % (vr(tb), vr(tb)))
    p('v_lshrrev_b32 %s, 5, %s' % (vr(tc), vr(L)))
    p('v_mul_u32_u24 %s, 0xc00, %s' % (vr(tc), vr(tc)))
    p('v_add3_u32 %s, %s, %s, %s' % (vr(tb), vr(tb), vr(tc), vr(ta)))
    p('s_and_b32 %s, %s, 1' % (sr(sT2), sr(sT0)))
    p('s_lshl_b32 %s, %s, 6' % (sr(sT2), sr(sT2)))
    p('v_xor_b32 %s, %s, %s' % (vr(tb), sr(sT2), vr(tb)))
    p('s_lshr_b32 %s, %s, 1' % (sr(sT2), sr(sT0)))
    p('s_lshl_b32 %s, %s, 10' % (sr(sT2), sr(sT2)))
    p('s_lshl_b32 %s, %s, 5' % (sr(sCnt), sr(sT1)))
    p('s_add_u32 %s, %s, %s' % (sr(sT2), sr(sT2), sr(sCnt)))
    p('v_add_u32 %s, %s, %s' % (vr(tRr), sr(sT2), vr(tb)))
    p('s_lshl_b32 %s, %s, 10' % (sr(sT0), sr(sT0)))
    p('s_lshl_b32 %s, %s, 3' % (sr(sT1), sr(sT1)))
    p('s_add_u32 %s, %s, %s' % (sr(sT0), sr(sT0), sr(sT1)))
    p('s_add_u32 %s, %s, 147456' % (sr(sT0), sr(sT0)))
    p('v_add_u32 %s, %s, %s' % (vr(tPr), sr(sT0), vr(vC)))
    p('s_lshl_b32 %s, %s, 13' % (sr(sT0), sr(sE)))
    p('s_lshl_b32 %s, %s, 11' % (sr(sT1), sr(sWv)))
    p('s_add_u32 %s, %s, %s' % (sr(sT0), sr(sT0), sr(sT1)))
    p('v_add_u32 %s, %s, %s' % (vr(tPm), sr(sT0), vr(vC)))
    p('s_lshl_b32 %s, %s, 13' % (sr(sT0), sr(sWv)))
    p('s_add_u32 %s, %s, %s' % (sr(sT0), sr(sT0), sr(sR + 3)))
    p('v_add_u32 %s, %s, %s' % (vr(vA), sr(sT0), vr(vC)))
    p('v_add_u32 %s, %s, %s' % (vr(vB), sr(sR), vr(vC)))
    p('v_add_u32 %s, %s, %s' % (vr(vMx), sr(sR + 1), vr(vC)))
    p('s_waitcnt lgkmcnt(0)')
    p('s_barrier')
    for i in range(16):
        p('ds_read_b128 %s, %s offset:%d' % (vr(tOB + 4 * i, 4), vr(vA), (i // 8) * 32768 + (i % 8) * 1024))
        if i == 7:
            p('s_waitcnt lgkmcnt(0)')
    p('s_waitcnt lgkmcnt(0)')
    for i in range(8):
        p('ds_read_b128 %s, %s offset:%d' % (vr(tRB + 4 * i, 4), vr(vB if i < 4 else vMx), 24576 + (i % 4) * 1024))
    if role != 'Y':
        p('s_branch OUTP_%s' % ('H' if heavy else 'L'))


def outproj(p, heavy):
    p.label('OUTP_%s' % ('H' if heavy else 'L'))
    nrt = 1 if heavy else 2
    slots = []
    first_of = {}
    for st in range(12):
        G, kq = st // 4, st % 4
        A = tAcc[G & 1]
        RA = tRac[G & 1]
        first_of[st] = len(slots)
        for ksl in range(4):
            kk = 4 * kq + ksl
            for i in range(3):
                def mk(f, ksl=ksl, i=i, kk=kk, A=A):
                    c = '0' if kk == 0 else vr(A + 16 * i, 16)
                    mf = 'v_mfma_f32_32x32x16_bf16 %s, %s, %s, %s' % (vr(A + 16 * i, 16), vr(f, 4), vr(tOB + 4 * kk, 4), c)
                    rd = ['ds_read_b64_tr_b16 %s, %s offset:%d' % (vr(f + 2 * pp, 2), vr(tCm), (ksl * 6 + pp * 3 + i) * 1024) for pp in range(2)]
                    return mf, rd
                slots.append((st, 'big', mk))
            if ksl & 1:
                m = ksl >> 1
                mm = 2 * kq + m
                for T in range(nrt):
                    def mk(f, m=m, mm=mm, T=T, RA=RA):
                        c = '0' if mm == 0 else vr(RA + 4 * T, 4)
                        mf = 'v_mfma_f32_16x16x32_bf16 %s, %s, %s, %s' % (vr(RA + 4 * T, 4), vr(f, 4), vr(tRB + 4 * mm, 4), c)
                        rd = ['ds_read_b64_tr_b16 %s, %s offset:%d' % (vr(f + 2 * pp, 2), vr(tCr), (2 * m + pp) * 6144 + T * 32) for pp in range(2)]
                        return mf, rd
                    slots.append((st, 'small', mk))
    n = len(slots)
    made = []
    for k, (st, cls, mk) in enumerate(slots):
        mf, rd = mk(tF + 4 * (k % 8))
        made.append((st, cls, mf, rd, ['o%d_%d' % (k, i) for i in range(len(rd))]))
    items = []
    vmq = []
    nread = 0
    opened = -1

    def emit_reads(upto):
        nonlocal nread
        while nread <= upto and nread < n and made[nread][0] <= opened:
            for i, t in zip(made[nread][4], made[nread][3]):
                items.append(('R', i, t))
            nread += 1

    def vm(lines, tag):
        for t in lines:
            items.append(t)
            if t.startswith('buffer_'):
                vmq.append(tag)

    pend_dma = []
    pend_cvt = []

    def open_stage(st, k):
        nonlocal opened
        w = 's_waitcnt lgkmcnt(0)'
        if st >= 3:
            last = max(i for i, t in enumerate(vmq) if t == ('st', st))
            w = 's_waitcnt vmcnt(%d) lgkmcnt(0)' % (len(vmq) - 1 - last)
        items.append('v_add_u32 %s, %s, %s' % (vr(tCm), sr(sR + st % 5), vr(tRm)))
        items.append('v_add_u32 %s, %s, %s' % (vr(tCr), sr(sR + st % 5), vr(tRr)))
        items.append(w)
        items.append('s_barrier')
        opened = st
        emit_reads(k + LOOK)
        if st == 0:
            for s2 in (3, 4):
                pend_dma.extend((g, ('st', s2)) for g in wo_stage_dma(s2))
        elif st + 4 < 12:
            pend_dma.extend((g, ('st', st + 4)) for g in wo_stage_dma(st + 4))

    def group_out(G):
        A, RA = tAcc[G & 1], tRac[G & 1]
        o = []
        for i in range(3):
            for hh in range(2):
                b = A + 16 * i + 8 * hh
                o += [['v_cvt_pk_bf16_f32 %s, %s, %s' % (vr(b + j), vr(b + 2 * j), vr(b + 2 * j + 1)) for j in range(4)] +
                      ['s_mov_b32 %s, 0x%x' % (sr(sT1), (6 * G + 2 * i) * 8192),
                       'buffer_store_dwordx4 %s, %s, %s, %s offen offset:%d sc1' % (vr(b, 4), vr(tPm), sr(sPt, 4), sr(sT1), hh * 1024)]]
        o += [['v_cvt_pk_bf16_f32 %s, %s, %s' % (vr(RA + j), vr(RA + 2 * j), vr(RA + 2 * j + 1)) for j in range(2 * nrt)] +
              ['s_mov_b32 %s, 0x%x' % (sr(sT1), G * 6144),
               'buffer_store_dwordx%d %s, %s, %s, %s offen sc1' % (2 * nrt, vr(RA, 2 * nrt), vr(tPr), sr(sPt, 4), sr(sT1))]]
        return o

    open_stage(0, -1)
    BG = 3
    for k in range(n):
        st, cls, mf, rd, ids = made[k]
        items.append(('W', ids))
        items.append(mf)
        emit_reads(k + LOOK)
        if st + 1 < 12 and k == first_of[st + 1] - 1 - BG:
            open_stage(st + 1, k)
        elif pend_dma:
            g, tag = pend_dma.pop(0)
            vm(g, tag)
        elif pend_cvt and cls == 'big':
            vm(pend_cvt.pop(0), 'out')
        if st == 7 and k == first_of[st] + 1:
            pend_cvt.extend(group_out(0))
        if st == 8 and k == first_of[st] + 1:
            pend_cvt.extend(group_out(1))
    assert not pend_dma and not pend_cvt
    for g in group_out(2):
        vm(g, 'out')
    p.ext(resolve_waits(items, [[]]))
    p('s_branch SYNC')


def sync_reduce(p):
    p.label('SYNC')
    p.ext(stamp(7))
    p('s_waitcnt vmcnt(0)')
    p('s_barrier')
    p.ext(stamp(8))
    p('s_cmp_lg_u32 %s, 0' % sr(sW8))
    p('s_cbranch_scc1 SY_WAIT')
    p('s_mov_b32 %s, %s' % (sr(sG), sr(sDbg)))
    p('s_mov_b32 %s, %s' % (sr(sG + 1), sr(sDbg + 1)))
    p('s_mov_b32 %s, 256' % sr(sG + 2))
    p('s_mov_b32 %s, 0x20000' % sr(sG + 3))
    p('s_lshl_b32 %s, %s, 3' % (sr(sT0), sr(sTyp)))
    p('s_add_u32 %s, %s, %s' % (sr(sT0), sr(sT0), sr(sB)))
    p('s_lshl_b32 %s, %s, 4' % (sr(sT0), sr(sT0)))
    p('v_mov_b32 v1, %s' % sr(sT0))
    p('v_mov_b32 v2, 1')
    p('s_lshl_b32 %s, 1, %s' % (sr(sCv), sr(sHP)))
    p('s_mov_b64 exec, 1')
    p('buffer_atomic_add v2, v1, %s, 0 offen sc0 sc1' % sr(sG, 4))
    p('s_waitcnt vmcnt(0)')
    p('v_readfirstlane_b32 %s, v2' % sr(sT0))
    p('s_and_b32 %s, %s, 0xff' % (sr(sT1), sr(sT0)))
    p('s_cmp_eq_u32 %s, 15' % sr(sT1))
    p('s_cbranch_scc0 SY_POLL0')
    p('s_lshr_b32 %s, %s, 16' % (sr(sT0), sr(sT0)))
    p('s_or_b32 %s, %s, %s' % (sr(sCv), sr(sCv), sr(sT0)))
    p('s_branch SY_GO')
    p.label('SY_POLL0')
    p('s_mov_b32 %s, 40000' % sr(sCnt))
    p.label('SY_POLL')
    p('buffer_load_dword v2, v1, %s, 0 offen sc1' % sr(sG, 4))
    p('s_waitcnt vmcnt(0)')
    p('v_readfirstlane_b32 %s, v2' % sr(sT0))
    p('s_and_b32 %s, %s, 0xff' % (sr(sT1), sr(sT0)))
    p('s_cmp_eq_u32 %s, 16' % sr(sT1))
    p('s_cbranch_scc1 SY_GO')
    p('s_sleep 1')
    p('s_sub_u32 %s, %s, 1' % (sr(sCnt), sr(sCnt)))
    p('s_cmp_lg_u32 %s, 0' % sr(sCnt))
    p('s_cbranch_scc1 SY_POLL')
    p('s_lshl_b32 %s, %s, 16' % (sr(sT0), sr(sCv)))
    p('v_mov_b32 v2, %s' % sr(sT0))
    p('buffer_atomic_or v2, v1, %s, 0 offen sc0 sc1' % sr(sG, 4))
    p('s_waitcnt vmcnt(0)')
    p('v_readfirstlane_b32 %s, v2' % sr(sT0))
    p('s_and_b32 %s, %s, 0xff' % (sr(sT1), sr(sT0)))
    p('s_cmp_eq_u32 %s, 16' % sr(sT1))
    p('s_cselect_b32 %s, %s, 0' % (sr(sCv), sr(sCv)))
    p.label('SY_GO')
    p('v_mov_b32 v1, 0')
    p('v_mov_b32 v2, %s' % sr(sCv))
    p('ds_write_b32 v1, v2')
    p('s_mov_b64 exec, -1')
    p('s_waitcnt lgkmcnt(0)')
    p.label('SY_WAIT')
    p('s_barrier')
    p('v_mov_b32 v1, 0')
    p('ds_read_b32 v2, v1')
    p('s_lshl_b32 %s, %s, 3' % (sr(sT0), sr(sTyp)))
    p('s_add_u32 %s, %s, %s' % (sr(sT0), sr(sT0), sr(sB)))
    p('s_mul_i32 %s, %s, %d' % (sr(sT0), sr(sT0), 16 * PART_B))
    p('s_add_u32 %s, %s, %s' % (sr(sG), sr(sWs), sr(sT0)))
    p('s_addc_u32 %s, %s, 0' % (sr(sG + 1), sr(sWs + 1)))
    p('s_mov_b32 %s, %d' % (sr(sG + 2), 16 * PART_B))
    p('s_mov_b32 %s, 0x20000' % sr(sG + 3))
    p('s_mul_i32 %s, %s, %d' % (sr(sT0), sr(sB), 144 * 2304))
    p('s_mul_i32 %s, %s, 1152' % (sr(sT1), sr(sTyp)))
    p('s_add_u32 %s, %s, %s' % (sr(sT0), sr(sT0), sr(sT1)))
    p('s_add_u32 %s, %s, %s' % (sr(sX), sr(sOut), sr(sT0)))
    p('s_addc_u32 %s, %s, 0' % (sr(sX + 1), sr(sOut + 1)))
    p('s_sub_u32 %s, %d, %s' % (sr(sX + 2), 144 * 2304, sr(sT1)))
    p('s_mov_b32 %s, 0x20000' % sr(sX + 3))
    p('s_waitcnt lgkmcnt(0)')
    p('v_readfirstlane_b32 %s, v2' % sr(sCv))
    p.ext(stamp(9))
    p.label('RED_LOOP')
    p('s_cmp_eq_u32 %s, 0' % sr(sCv))
    p('s_cbranch_scc1 RED_DONE')
    p('s_ff1_i32_b32 %s, %s' % (sr(sT0), sr(sCv)))
    p('s_bitset0_b32 %s, %s' % (sr(sCv), sr(sT0)))
    p('s_mul_i32 %s, %s, 648' % (sr(sT0), sr(sT0)))
    p('s_mul_i32 %s, %s, 81' % (sr(sT1), sr(sW8)))
    p('s_add_u32 %s, %s, %s' % (sr(sT0), sr(sT0), sr(sT1)))
    U = [128, 129]; VO = [130, 131]; A0 = [132, 134]; acc = [136, 144]; t = [152, 153, 154, 155, 156, 157]
    p('v_add_u32 %s, %s, %s' % (vr(U[0]), sr(sT0), vr(vLane)))
    p('v_add_u32 %s, 64, %s' % (vr(U[1]), vr(U[0])))
    p('v_lshlrev_b32 %s, 4, %s' % (vr(VO[0]), vr(U[0])))
    p('v_lshlrev_b32 %s, 4, %s' % (vr(VO[1]), vr(U[1])))
    p('v_mov_b32 %s, 0x7f000000' % vr(t[0]))
    p('v_cmp_gt_u32 vcc, 17, %s' % vr(vLane))
    p('v_cndmask_b32 %s, %s, %s, vcc' % (vr(VO[1]), vr(t[0]), vr(VO[1])))
    p('s_mov_b64 %s, vcc' % sr(sEx, 2))
    for u in range(2):
        for h in range(16):
            p('s_mov_b32 %s, %d' % (sr(sT1), h * PART_B))
            p('buffer_load_dwordx4 %s, %s, %s, %s offen sc1' % (vr(64 * u + 4 * h, 4), vr(VO[u]), sr(sG, 4), sr(sT1)))
    for u in range(2):
        f, ln, q, n0, d1, x = t
        p('v_lshrrev_b32 %s, 6, %s' % (vr(f), vr(U[u])))
        p('v_and_b32 %s, 63, %s' % (vr(ln), vr(U[u])))
        p('v_bfe_u32 %s, %s, 1, 2' % (vr(q), vr(f)))
        p('v_and_b32 %s, 31, %s' % (vr(x), vr(ln)))
        p('v_lshl_add_u32 %s, %s, 5, %s' % (vr(q), vr(q), vr(x)))
        p('v_lshrrev_b32 %s, 3, %s' % (vr(n0), vr(f)))
        p('v_lshlrev_b32 %s, 5, %s' % (vr(n0), vr(n0)))
        p('v_and_b32 %s, 1, %s' % (vr(x), vr(f)))
        p('v_lshl_add_u32 %s, %s, 4, %s' % (vr(n0), vr(x), vr(n0)))
        p('v_lshrrev_b32 %s, 5, %s' % (vr(x), vr(ln)))
        p('v_lshl_add_u32 %s, %s, 2, %s' % (vr(n0), vr(x), vr(n0)))
        p('v_mul_u32_u24 %s, 0x900, %s' % (vr(q), vr(q)))
        p('v_lshl_add_u32 %s, %s, 1, %s' % (vr(A0[u]), vr(n0), vr(q)))
        p('v_and_b32 %s, 15, %s' % (vr(q), vr(ln)))
        p('v_add_u32 %s, 0x80, %s' % (vr(q), vr(q)))
        p('v_mul_u32_u24 %s, 0x900, %s' % (vr(q), vr(q)))
        p('v_subrev_u32 %s, 0x90, %s' % (vr(n0), vr(f)))
        p('v_lshlrev_b32 %s, 5, %s' % (vr(n0), vr(n0)))
        p('v_lshrrev_b32 %s, 4, %s' % (vr(x), vr(ln)))
        p('v_lshl_add_u32 %s, %s, 2, %s' % (vr(n0), vr(x), vr(n0)))
        p('v_lshl_add_u32 %s, %s, 1, %s' % (vr(q), vr(n0), vr(q)))
        p('v_cmp_gt_u32 vcc, 0x90, %s' % vr(f))
        p('v_cndmask_b32 %s, %s, %s, vcc' % (vr(A0[u]), vr(q), vr(A0[u])))
        p('v_mov_b32 %s, 32' % vr(x))
        p('v_mov_b32 %s, 16' % vr(d1))
        p('v_cndmask_b32 %s, %s, %s, vcc' % (vr(d1), vr(x), vr(d1)))
        if u == 1:
            p('v_mov_b32 %s, 0x7f000000' % vr(x))
            p('v_cndmask_b32 %s, %s, %s, %s' % (vr(A0[u]), vr(x), vr(A0[u]), sr(sEx, 2)))
        p('v_add_u32 %s, %s, %s' % (vr(A0[u] + 1), vr(A0[u]), vr(d1)))
    p('s_mov_b32 %s, 0x3f80' % sr(sT1))
    p('s_mov_b32 %s, 0x3f800000' % sr(sT2))
    for u in range(2):
        for h in range(16):
            p('s_waitcnt vmcnt(%d)' % (31 - 16 * u - h + (2 if u == 1 else 0)))
            for j in range(4):
                src = 64 * u + 4 * h + j
                for hi, sel in ((0, sT1), (1, sT2)):
                    a = acc[u] + 2 * j + hi
                    p('v_dot2_f32_bf16 %s, %s, %s, %s' % (vr(a), vr(src), sr(sel), '0' if h == 0 else vr(a)))
        for j in range(4):
            p('v_cvt_pk_bf16_f32 %s, %s, %s' % (vr(acc[u] + j), vr(acc[u] + 2 * j), vr(acc[u] + 2 * j + 1)))
        p('buffer_store_dwordx2 %s, %s, %s, 0 offen' % (vr(acc[u], 2), vr(A0[u]), sr(sX, 4)))
        p('buffer_store_dwordx2 %s, %s, %s, 0 offen' % (vr(acc[u] + 2, 2), vr(A0[u] + 1), sr(sX, 4)))
    p('s_waitcnt vmcnt(0)')
    p('s_branch RED_LOOP')
    p.label('RED_DONE')
    p.ext(stamp(10))
    stamp_flush(p, 11)
    p.label('K_END')
    p('s_endpgm')


def kernel():
    p = P()
    p('s_cmp_ge_u32 s2, 256')
    p('s_cbranch_scc1 K_END')
    p('s_load_dwordx16 %s, s[0:1], 0x0' % sr(sKA, 16))
    p('s_load_dwordx4 %s, s[0:1], 0x40' % sr(sKA + 16, 4))
    p('s_load_dwordx4 %s, s[0:1], 0x50' % sr(sOut, 4))
    p('s_load_dwordx2 %s, s[0:1], 0x60' % sr(sWs, 2))
    if STAMP:
        p('s_memtime s[100:101]')
    L = vLane
    p('v_and_b32 %s, 63, v0' % vr(L))
    p('v_lshrrev_b32 v1, 6, v0')
    p('s_and_b32 %s, s2, 7' % sr(sT0))
    p('v_readfirstlane_b32 %s, v1' % sr(sW8))
    p('s_lshr_b32 %s, s2, 3' % sr(sT1))
    p('s_and_b32 %s, %s, 7' % (sr(sB), sr(sT1)))
    p('s_lshr_b32 %s, %s, 4' % (sr(sT2), sr(sT1)))
    p('s_lshl_b32 %s, %s, 1' % (sr(sT0), sr(sT0)))
    p('s_add_u32 %s, %s, %s' % (sr(sHP), sr(sT2), sr(sT0)))
    p('s_bfe_u32 %s, %s, 0x10003' % (sr(sTyp), sr(sT1)))
    p('s_lshr_b32 %s, %s, 2' % (sr(sE), sr(sW8)))
    p('s_and_b32 %s, %s, 3' % (sr(sWv), sr(sW8)))
    q4, r4, u, h, a_, c7, rd, tA, tB, tC, tV = range(1, 12)
    p('v_lshrrev_b32 %s, 4, %s' % (vr(q4), vr(L)))
    p('v_bfe_u32 %s, %s, 2, 2' % (vr(r4), vr(L)))
    p('v_and_b32 %s, 3, %s' % (vr(u), vr(L)))
    p('v_lshrrev_b32 %s, 5, %s' % (vr(h), vr(L)))
    p('v_bfe_u32 %s, %s, 4, 1' % (vr(a_), vr(L)))
    p('v_and_b32 %s, 7, %s' % (vr(c7), vr(L)))
    p('v_bfe_u32 %s, %s, 3, 2' % (vr(rd), vr(L)))
    p('v_lshlrev_b32 %s, 2, %s' % (vr(tA), vr(a_)))
    p('v_xor_b32 %s, %s, %s' % (vr(tA), vr(tA), vr(c7)))
    p('v_lshlrev_b32 %s, 4, %s' % (vr(tA), vr(tA)))
    p('v_lshl_add_u32 %s, %s, 7, %s' % (vr(tV), vr(h), vr(tA)))
    p('v_lshl_add_u32 %s, %s, 13, %s' % (vr(tA), vr(rd), vr(tV)))
    p('s_lshl_b32 %s, %s, 15' % (sr(sT0), sr(sWv)))
    p('s_lshl_b32 %s, %s, 8' % (sr(sT1), sr(sE)))
    p('s_add_u32 %s, %s, %s' % (sr(sT0), sr(sT0), sr(sT1)))
    p('v_add_u32 %s, %s, %s' % (vr(voffW), sr(sT0), vr(tA)))
    p('v_lshrrev_b32 %s, 3, %s' % (vr(tC), vr(L)))
    p('v_mul_u32_u24 %s, 0x480, %s' % (vr(tC), vr(tC)))
    p('v_xor_b32 %s, %s, %s' % (vr(tB), vr(c7), vr(q4)))
    p('v_lshl_add_u32 %s, %s, 4, %s' % (vr(tA), vr(tB), vr(tC)))
    p('s_and_b32 %s, %s, 1' % (sr(sT0), sr(sW8)))
    p('s_lshl_b32 %s, %s, 2' % (sr(sT0), sr(sT0)))
    p('v_xor_b32 %s, %s, %s' % (vr(tA), sr(sT0), vr(tB)))
    p('v_lshl_add_u32 %s, %s, 4, %s' % (vr(tA), vr(tA), vr(tC)))
    p('s_mul_i32 %s, %s, 9216' % (sr(sT0), sr(sW8)))
    p('v_add_u32 %s, %s, %s' % (vr(voffX), sr(sT0), vr(tA)))
    p('s_lshl_b32 %s, %s, 2' % (sr(sT0), sr(sE)))
    p('v_xor_b32 %s, %s, %s' % (vr(tA), sr(sT0), vr(tB)))
    p('v_lshl_add_u32 %s, %s, 4, %s' % (vr(tA), vr(tA), vr(tC)))
    p('s_mul_i32 %s, %s, 9216' % (sr(sT0), sr(sE)))
    p('s_add_u32 %s, %s, %d' % (sr(sT0), sr(sT0), 128 * 1152))
    p('v_add_u32 %s, %s, %s' % (vr(voffX9), sr(sT0), vr(tA)))
    p('s_lshl_b32 %s, %s, 13' % (sr(sMw), sr(sE)))
    p('s_lshl_b32 %s, %s, 10' % (sr(sT0), sr(sWv)))
    p('s_add_u32 %s, %s, %s' % (sr(sMw), sr(sMw), sr(sT0)))
    p('s_lshl_b32 %s, %s, 10' % (sr(sMx), sr(sW8)))
    p('s_lshl_b32 %s, %s, 10' % (sr(sQx), sr(sE)))
    p('s_add_u32 %s, %s, 0x4000' % (sr(sQx), sr(sQx)))
    p('s_lshl_b32 %s, %s, 4' % (sr(sT0), sr(sWv)))
    p('s_mov_b64 %s, 0xffff' % sr(sEx, 2))
    p('s_lshl_b64 %s, %s, %s' % (sr(sEx, 2), sr(sEx, 2), sr(sT0)))
    p('v_lshlrev_b32 %s, 4, %s' % (vr(voffT), vr(L)))
    p('s_mul_i32 %s, s2, 5' % sr(sRot))
    p('s_lshr_b32 %s, s2, 5' % sr(sT0))
    p('s_add_u32 %s, %s, %s' % (sr(sRot), sr(sRot), sr(sT0)))
    p('s_lshl_b32 %s, %s, 4' % (sr(sT0), sr(sE)))
    p('s_mul_i32 %s, %s, %s' % (sr(sT0), sr(sT0), sr(sTyp)))
    p('s_add_u32 %s, %s, %s' % (sr(sRot), sr(sRot), sr(sT0)))
    p('s_and_b32 %s, %s, 31' % (sr(sRot), sr(sRot)))
    p('s_lshl_b32 %s, %s, 13' % (sr(sRot), sr(sRot)))
    p('s_waitcnt lgkmcnt(0)')
    p('s_cmp_eq_u32 %s, 0' % sr(sTyp))
    for i, srd in enumerate((sX, sK, sV, sW, sWo)):
        p('s_cselect_b64 %s, %s, %s' % (sr(srd, 2), sr(sKA + 2 * i, 2), sr(sKA + 10 + 2 * i, 2)))
    p('s_lshl_b32 %s, %s, 9' % (sr(sT0), sr(sHP)))
    p('s_add_u32 %s, %s, %s' % (sr(sW), sr(sW), sr(sT0)))
    p('s_addc_u32 %s, %s, 0' % (sr(sW + 1), sr(sW + 1)))
    p('s_sub_u32 %s, %d, %s' % (sr(sW + 2), 576 * 8192, sr(sT0)))
    p('s_mov_b32 %s, 0x20000' % sr(sW + 3))

    def w_static(n):
        return ['s_add_u32 m0, %s, 0x%x' % (sr(sMw), (n % 6) * WBUF),
                's_mov_b32 %s, 0x%x' % (sr(sT0), n * 262144),
                'buffer_load_dwordx4 %s, %s, %s offen lds' % (vr(voffW), sr(sW, 4), sr(sT0)),
                's_add_u32 m0, m0, 0x1000',
                's_mov_b32 %s, 0x%x' % (sr(sT0), n * 262144 + 131072),
                'buffer_load_dwordx4 %s, %s, %s offen lds' % (vr(voffW), sr(sW, 4), sr(sT0))]

    def x_static(T):
        buf = XSTG + (T % 3) * XBUF
        return ['s_add_u32 m0, %s, 0x%x' % (sr(sMx), buf),
                's_mov_b32 %s, 0x%x' % (sr(sT0), T * 128),
                'buffer_load_dwordx4 %s, %s, %s offen lds' % (vr(voffX), sr(sX, 4), sr(sT0)),
                's_add_u32 m0, m0, 0x2000',
                's_mov_b32 %s, 0x%x' % (sr(sT1), T * 128 + 73728),
                'buffer_load_dwordx4 %s, %s, %s offen lds' % (vr(voffX), sr(sX, 4), sr(sT1)),
                's_add_u32 m0, %s, 0x%x' % (sr(sQx), buf),
                's_mov_b64 exec, %s' % sr(sEx, 2),
                'buffer_load_dwordx4 %s, %s, %s offen lds' % (vr(voffX9), sr(sX, 4), sr(sT0)),
                's_mov_b64 exec, -1']

    def w_dyn():
        return [['s_add_u32 m0, %s, %s' % (sr(sMw), sr(sBufW)), 's_nop 0',
                 'buffer_load_dwordx4 %s, %s, %s offen lds' % (vr(voffW), sr(sW, 4), sr(sSoW))],
                ['s_add_u32 m0, m0, 0x1000', 's_add_u32 %s, %s, 0x20000' % (sr(sT0), sr(sSoW)),
                 'buffer_load_dwordx4 %s, %s, %s offen lds' % (vr(voffW), sr(sW, 4), sr(sT0))]]

    def x_dyn():
        return [['s_add_u32 m0, %s, %s' % (sr(sMx), sr(sXW)), 's_nop 0',
                 'buffer_load_dwordx4 %s, %s, %s offen lds' % (vr(voffX), sr(sX, 4), sr(sSoX))],
                ['s_add_u32 m0, m0, 0x2000', 's_add_u32 %s, %s, 73728' % (sr(sT0), sr(sSoX)),
                 'buffer_load_dwordx4 %s, %s, %s offen lds' % (vr(voffX), sr(sX, 4), sr(sT0))],
                ['s_add_u32 m0, %s, %s' % (sr(sQx), sr(sXW)), 's_mov_b64 exec, %s' % sr(sEx, 2),
                 'buffer_load_dwordx4 %s, %s, %s offen lds' % (vr(voffX9), sr(sX, 4), sr(sSoX)),
                 's_mov_b64 exec, -1']]

    def touch():
        return ['buffer_load_dword %s, %s, %s, %s offen' % (vr(vDum), vr(voffT), sr(sTc, 4), sr(sTo)),
                's_add_u32 %s, %s, 0x400' % (sr(sTo), sr(sTo)),
                's_and_b32 %s, %s, 0x3ffff' % (sr(sTo), sr(sTo))]

    p.ext(w_static(0))
    p.ext(w_static(1))
    p('s_mul_i32 %s, %s, 165888' % (sr(sT0), sr(sB)))
    p('s_add_u32 %s, %s, %s' % (sr(sX), sr(sX), sr(sT0)))
    p('s_addc_u32 %s, %s, 0' % (sr(sX + 1), sr(sX + 1)))
    p('s_mov_b32 %s, 165888' % sr(sX + 2))
    p('s_mov_b32 %s, 0x20000' % sr(sX + 3))
    p.ext(x_static(0))
    p('s_lshl_b32 %s, %s, 4' % (sr(sT0), sr(sB)))
    p('s_add_u32 %s, %s, %s' % (sr(sT0), sr(sT0), sr(sHP)))
    p('s_lshl_b32 %s, %s, 1' % (sr(sT1), sr(sT0)))
    p('s_add_u32 %s, %s, %s' % (sr(sT1), sr(sT1), sr(sE)))
    p('s_cmp_eq_u32 %s, 0' % sr(sTyp))
    p('s_cselect_b32 %s, %s, %s' % (sr(sT0), sr(sT0), sr(sT1)))
    p('s_cselect_b32 %s, %s, %s' % (sr(sMb), sr(sW8), sr(sWv)))
    p('s_lshl_b32 %s, %s, 10' % (sr(sMb), sr(sMb)))
    p('s_lshl_b32 %s, %s, 18' % (sr(sT0), sr(sT0)))
    for srd in (sK, sV):
        p('s_add_u32 %s, %s, %s' % (sr(srd), sr(srd), sr(sT0)))
        p('s_addc_u32 %s, %s, 0' % (sr(srd + 1), sr(srd + 1)))
        p('s_mov_b32 %s, 0x40000' % sr(srd + 2))
        p('s_mov_b32 %s, 0x20000' % sr(srd + 3))
    p('s_lshr_b32 %s, %s, 1' % (sr(sT0), sr(sWv)))
    p('s_and_b32 %s, %s, 1' % (sr(sT1), sr(sWv)))
    p('s_mul_i32 %s, %s, 18432' % (sr(sT1), sr(sT1)))
    p('s_mul_i32 %s, %s, 18432' % (sr(sCnt), sr(sWv)))
    p('s_cmp_eq_u32 %s, 0' % sr(sTyp))
    p('s_cselect_b32 %s, %s, %s' % (sr(sT0), sr(sE), sr(sT0)))
    p('s_cselect_b32 %s, %s, %s' % (sr(sTo), sr(sCnt), sr(sT1)))
    p('s_cmp_eq_u32 %s, 0' % sr(sT0))
    p('s_cselect_b64 %s, %s, %s' % (sr(sTc, 2), sr(sK, 2), sr(sV, 2)))
    p('s_mov_b32 %s, %s' % (sr(sTc + 2), '0' if '--notouch' in ARGS else '0x40000'))
    p('s_mov_b32 %s, 0x20000' % sr(sTc + 3))
    p('s_add_u32 %s, %s, %s' % (sr(sTo), sr(sTo), sr(sRot)))
    p('s_and_b32 %s, %s, 0x3ffff' % (sr(sTo), sr(sTo)))
    p.ext(touch())
    p.ext(w_static(2))
    p.ext(touch())
    p.ext(w_static(3))
    p.ext(x_static(1))
    p.ext(touch())
    p.ext(w_static(4))
    p.ext(touch())
    if '--wtouch' in ARGS:
        p('s_mul_i32 %s, %s, 36' % (sr(sT0), sr(sW8)))
        p('v_add_u32 %s, %s, %s' % (vr(tA), sr(sT0), vr(L)))
        p('v_lshrrev_b32 %s, 2, %s' % (vr(tB), vr(tA)))
        p('v_and_b32 %s, 3, %s' % (vr(tA), vr(tA)))
        p('v_lshlrev_b32 %s, 7, %s' % (vr(tA), vr(tA)))
        p('v_lshl_add_u32 %s, %s, 13, %s' % (vr(tA), vr(tB), vr(tA)))
        p('s_mul_i32 %s, %s, %d' % (sr(sT0), sr(sB), 72 * 8192))
        p('buffer_load_dword %s, %s, %s, %s offen' % (vr(vDum), vr(tA), sr(sW, 4), sr(sT0)))
        p('v_lshlrev_b32 %s, 7, %s' % (vr(tB), vr(L)))
        p('s_mul_i32 %s, %s, 82944' % (sr(sT0), sr(sT2)))
        p('s_mul_i32 %s, %s, 10368' % (sr(sT1), sr(sW8)))
        p('s_add_u32 %s, %s, %s' % (sr(sT0), sr(sT0), sr(sT1)))
        p('buffer_load_dword %s, %s, %s, %s offen' % (vr(vDum), vr(tB), sr(sX, 4), sr(sT0)))
        p('s_add_u32 %s, %s, 0x2000' % (sr(sT0), sr(sT0)))
        p('buffer_load_dword %s, %s, %s, %s offen' % (vr(vDum), vr(tB), sr(sX, 4), sr(sT0)))
    p('v_lshl_add_u32 %s, %s, 8, %s' % (vr(tA), vr(rd), vr(tV)))
    p('v_add_u32 %s, %s, %s' % (vr(voffV), sr(sMb), vr(tA)))
    p('s_lshl_b32 %s, %s, 1' % (sr(sT0), sr(sWv)))
    p('v_xor_b32 %s, %s, %s' % (vr(tA), vr(c7), vr(a_)))
    p('v_xor_b32 %s, %s, %s' % (vr(tA), sr(sT0), vr(tA)))
    p('v_lshlrev_b32 %s, 4, %s' % (vr(tA), vr(tA)))
    p('v_lshl_add_u32 %s, %s, 7, %s' % (vr(tA), vr(h), vr(tA)))
    p('v_lshl_add_u32 %s, %s, 8, %s' % (vr(tA), vr(rd), vr(tA)))
    p('v_add_u32 %s, %s, %s' % (vr(voffK), sr(sMb), vr(tA)))
    p('s_lshl_b32 %s, %s, 14' % (sr(sCur), sr(sE)))
    p('s_mul_i32 %s, %s, %s' % (sr(sCur), sr(sCur), sr(sTyp)))
    p('v_bfe_u32 %s, %s, 1, 1' % (vr(tC), vr(L)))
    p('v_lshl_add_u32 %s, %s, 1, %s' % (vr(tV), vr(r4), vr(tC)))
    p('v_bfe_u32 %s, %s, 2, 3' % (vr(tA), vr(L)))
    p('v_lshlrev_b32 %s, 10, %s' % (vr(tA), vr(tA)))
    p('v_lshl_add_u32 %s, %s, 7, %s' % (vr(tA), vr(u), vr(tA)))
    p('v_xor_b32 %s, %s, %s' % (vr(tB), vr(h), vr(tV)))
    p('v_lshl_add_u32 %s, %s, 4, %s' % (vr(tA), vr(tB), vr(tA)))
    p('v_add_u32 %s, %s, %s' % (vr(vKa[0]), sr(sCur), vr(tA)))
    for i in range(1, 4):
        p('v_xor_b32 %s, 0x%x, %s' % (vr(vKa[i]), 32 * i, vr(vKa[0])))
    p('v_xor_b32 %s, %s, %s' % (vr(tB), vr(q4), vr(tV)))
    p('v_lshlrev_b32 %s, 4, %s' % (vr(tB), vr(tB)))
    p('v_lshl_add_u32 %s, %s, 7, %s' % (vr(tB), vr(u), vr(tB)))
    p('v_lshl_add_u32 %s, %s, 10, %s' % (vr(bKr), vr(r4), vr(tB)))
    tR = c7
    p('v_lshrrev_b32 %s, 1, %s' % (vr(tB), vr(r4)))
    p('v_lshlrev_b32 %s, 6, %s' % (vr(tB), vr(tB)))
    p('v_lshl_add_u32 %s, %s, 7, %s' % (vr(tR), vr(r4), vr(tB)))
    c0 = rd
    p('v_and_b32 %s, 1, %s' % (vr(c0), vr(L)))
    p('v_lshl_add_u32 %s, %s, 4, %s' % (vr(tA), vr(tC), vr(tR)))
    p('v_lshl_add_u32 %s, %s, 3, %s' % (vr(tA), vr(c0), vr(tA)))
    p('v_add_u32 %s, 0x2000, %s' % (vr(tA), vr(tA)))
    p('v_lshl_add_u32 %s, %s, 10, %s' % (vr(bVr), vr(q4), vr(tA)))
    p('v_lshl_add_u32 %s, %s, 5, %s' % (vr(tA), vr(a_), vr(tA)))
    p('v_lshl_add_u32 %s, %s, 10, %s' % (vr(tA), vr(h), vr(tA)))
    p('v_add_u32 %s, %s, %s' % (vr(vVa[0]), sr(sCur), vr(tA)))
    p('v_xor_b32 %s, 64, %s' % (vr(vVa[1]), vr(vVa[0])))
    vWm, vWr, vXm, vXr = [qBase + i for i in range(4)]
    p('v_lshl_add_u32 %s, %s, 4, %s' % (vr(tA), vr(c0), vr(tR)))
    p('v_lshl_add_u32 %s, %s, 3, %s' % (vr(tA), vr(tC), vr(tA)))
    p('v_lshl_add_u32 %s, %s, 5, %s' % (vr(tA), vr(a_), vr(tA)))
    p('v_lshl_add_u32 %s, %s, 11, %s' % (vr(tA), vr(h), vr(tA)))
    p('s_lshl_b32 %s, %s, 13' % (sr(sT0), sr(sE)))
    p('v_add_u32 %s, %s, %s' % (vr(vWm), sr(sT0), vr(tA)))
    p('v_lshl_add_u32 %s, %s, 4, %s' % (vr(tA), vr(u), vr(tR)))
    p('s_and_b32 %s, %s, 1' % (sr(sT1), sr(sWv)))
    p('s_lshl_b32 %s, %s, 6' % (sr(sT1), sr(sT1)))
    p('v_xor_b32 %s, %s, %s' % (vr(tA), sr(sT1), vr(tA)))
    p('v_lshl_add_u32 %s, %s, 11, %s' % (vr(tA), vr(q4), vr(tA)))
    p('s_lshr_b32 %s, %s, 1' % (sr(sT1), sr(sWv)))
    p('s_lshl_b32 %s, %s, 9' % (sr(sT1), sr(sT1)))
    p('s_add_u32 %s, %s, %s' % (sr(sT1), sr(sT1), sr(sT0)))
    p('v_add_u32 %s, %s, %s' % (vr(vWr), sr(sT1), vr(tA)))
    p('v_bfe_u32 %s, %s, 1, 3' % (vr(tC), vr(L)))
    p('v_and_b32 %s, 31, %s' % (vr(tA), vr(L)))
    p('v_lshlrev_b32 %s, 7, %s' % (vr(tA), vr(tA)))
    p('v_xor_b32 %s, %s, %s' % (vr(tB), vr(h), vr(tC)))
    p('v_lshl_add_u32 %s, %s, 4, %s' % (vr(tA), vr(tB), vr(tA)))
    p('s_lshl_b32 %s, %s, 12' % (sr(sT1), sr(sWv)))
    p('v_add_u32 %s, %s, %s' % (vr(vXm), sr(sT1), vr(tA)))
    p('v_and_b32 %s, 15, %s' % (vr(tA), vr(L)))
    p('v_lshlrev_b32 %s, 7, %s' % (vr(tA), vr(tA)))
    p('v_xor_b32 %s, %s, %s' % (vr(tB), vr(q4), vr(tC)))
    p('v_lshl_add_u32 %s, %s, 4, %s' % (vr(tA), vr(tB), vr(tA)))
    p('v_add_u32 %s, 0x4000, %s' % (vr(vXr), vr(tA)))
    p('s_mov_b32 %s, %s' % (sr(sScale), f32(math.log2(math.e) / math.sqrt(128.0))))
    p('s_mov_b32 %s, %s' % (sr(sScale + 1), sr(sScale)))
    p('s_mov_b32 %s, %s' % (sr(sThr), f32(THR)))
    p('s_mul_i32 %s, %s, 294912' % (sr(sT0), sr(sHP)))
    p('s_add_u32 %s, %s, %s' % (sr(sWo), sr(sWo), sr(sT0)))
    p('s_addc_u32 %s, %s, 0' % (sr(sWo + 1), sr(sWo + 1)))
    p('s_mov_b32 %s, 294912' % sr(sWo + 2))
    p('s_mov_b32 %s, 0x20000' % sr(sWo + 3))
    p('s_lshl_b32 %s, %s, 3' % (sr(sT0), sr(sTyp)))
    p('s_add_u32 %s, %s, %s' % (sr(sT0), sr(sT0), sr(sB)))
    p('s_lshl_b32 %s, %s, 4' % (sr(sT0), sr(sT0)))
    p('s_add_u32 %s, %s, %s' % (sr(sT0), sr(sT0), sr(sHP)))
    p('s_mul_i32 %s, %s, %d' % (sr(sT0), sr(sT0), PART_B))
    p('s_add_u32 %s, %s, %s' % (sr(sPt), sr(sWs), sr(sT0)))
    p('s_addc_u32 %s, %s, 0' % (sr(sPt + 1), sr(sWs + 1)))
    p('s_mov_b32 %s, %d' % (sr(sPt + 2), PART_B))
    p('s_mov_b32 %s, 0x20000' % sr(sPt + 3))
    p('s_cmp_eq_u32 %s, 0' % sr(sTyp))
    for i, (ra, rb) in enumerate(zip([2, 3, 4, 0, 1], [3, 4, 0, 1, 2])):
        p('s_mov_b32 %s, 0x%x' % (sr(sT0), ra * 32768))
        p('s_cselect_b32 %s, %s, 0x%x' % (sr(sR + i), sr(sT0), rb * 32768))
    for i in range(8):
        p('v_mov_b32 %s, 0' % vr(64 + i))
    p('s_mov_b32 %s, 0' % sr(sBufR))
    p('s_mov_b32 %s, 0x%x' % (sr(sBufW), 5 * WBUF))
    p('s_mov_b32 %s, 0x%x' % (sr(sSoW), 5 * 262144))
    p('s_mov_b32 %s, 0x%x' % (sr(sXR), XSTG))
    p('s_mov_b32 %s, 0x%x' % (sr(sXW), XSTG + 2 * XBUF))
    p('s_mov_b32 %s, 0x%x' % (sr(sSoX), 2 * 128))
    p('s_mov_b32 %s, 8' % sr(sCnt))

    cW0, cW1, cWr, cX0, cX1, cXr = [qCur + i for i in range(6)]

    def rd_set(ks):
        S = qSet[ks]
        o = []
        for jt in range(4):
            for pp in range(2):
                o.append('ds_read_b64_tr_b16 %s, %s offset:%d' % (vr(S + 4 * jt + 2 * pp, 2), vr(cW1 if jt & 1 else cW0), ks * 4096 + pp * 1024 + (jt >> 1) * 512))
        o.append('ds_read_b128 %s, %s' % (vr(S + 16, 4), vr(cX0 if ks == 0 else cX1)))
        return o

    def rd_rem():
        o = []
        for Ts in range(2):
            for pp in range(2):
                o.append('ds_read_b64_tr_b16 %s, %s offset:%d' % (vr(qRem + 4 * Ts + 2 * pp, 2), vr(cWr), pp * 1024 + 8 * Ts))
        o.append('ds_read_b128 %s, %s' % (vr(qRem + 8, 4), vr(cXr)))
        return o

    def mf_set(ks, init):
        S = qSet[ks]
        return ['v_mfma_f32_32x32x16_bf16 %s, %s, %s, %s' % (vr(16 * jt, 16), vr(S + 4 * jt, 4), vr(S + 16, 4), '0' if init else vr(16 * jt, 16)) for jt in range(4)]

    def mf_rem():
        return ['v_mfma_f32_16x16x32_bf16 %s, %s, %s, %s' % (vr(64 + 4 * Ts, 4), vr(qRem + 4 * Ts, 4), vr(qRem + 8, 4), vr(64 + 4 * Ts, 4)) for Ts in range(2)]

    def sub(cp, first):
        p('v_add_u32 %s, %s, %s' % (vr(cW0), sr(sBufR), vr(vWm)))
        p('v_add_u32 %s, %s, %s' % (vr(cWr), sr(sBufR), vr(vWr)))
        p('v_xor_b32 %s, 64, %s' % (vr(cW1), vr(cW0)))
        if cp == 0:
            p('v_add_u32 %s, %s, %s' % (vr(cX0), sr(sXR), vr(vXm)))
            p('v_add_u32 %s, %s, %s' % (vr(cXr), sr(sXR), vr(vXr)))
        else:
            p('v_xor_b32 %s, 64, %s' % (vr(cX0), vr(cX0)))
            p('v_xor_b32 %s, 64, %s' % (vr(cXr), vr(cXr)))
        p('v_xor_b32 %s, 32, %s' % (vr(cX1), vr(cX0)))
        p('s_waitcnt vmcnt(13) lgkmcnt(0)' if cp == 0 else 's_waitcnt lgkmcnt(0)')
        p('s_barrier')
        if first:
            p.ext(stamp(1))
        p.ext(rd_set(0))
        parts = w_dyn() + (x_dyn() if cp == 0 else []) + [touch()]
        if not first:
            for i, m in enumerate(mf_set(1, False) + mf_rem()):
                p(m)
                if parts:
                    p.ext(parts.pop(0))
        for g in parts:
            p.ext(g)
        r1 = rd_set(1) + rd_rem()
        p.ext(r1[:6])
        p('s_waitcnt lgkmcnt(6)')
        rest = r1[6:]
        upd = ['s_mov_b32 %s, %s' % (sr(sBufW), sr(sBufR)),
               's_add_u32 %s, %s, 0x%x' % (sr(sBufR), sr(sBufR), WBUF),
               's_cmp_ge_u32 %s, 0x%x' % (sr(sBufR), 6 * WBUF),
               's_cselect_b32 %s, 0, %s' % (sr(sBufR), sr(sBufR)),
               's_add_u32 %s, %s, 0x40000' % (sr(sSoW), sr(sSoW)),
               's_cmp_ge_u32 %s, 0x%x' % (sr(sSoW), 18 * 262144),
               's_cselect_b32 %s, 0x%x, %s' % (sr(sBufW), LDS_DROP, sr(sBufW))]
        if cp == 1:
            upd += ['s_mov_b32 %s, %s' % (sr(sXW), sr(sXR)),
                    's_add_u32 %s, %s, 0x%x' % (sr(sXR), sr(sXR), XBUF),
                    's_cmp_ge_u32 %s, 0x%x' % (sr(sXR), XSTG + 3 * XBUF),
                    's_cselect_b32 %s, 0x%x, %s' % (sr(sXR), XSTG, sr(sXR)),
                    's_add_u32 %s, %s, 128' % (sr(sSoX), sr(sSoX)),
                    's_cmp_ge_u32 %s, 1152' % sr(sSoX),
                    's_cselect_b32 %s, 0x40000000, %s' % (sr(sSoX), sr(sSoX)),
                    's_cselect_b32 %s, 0x%x, %s' % (sr(sXW), LDS_DROP, sr(sXW))]
        for i, m in enumerate(mf_set(0, first)):
            p(m)
            p.ext(rest[3 * i:3 * i + 3])
            p.ext(upd[4 * i:4 * i + 4])

    sub(0, True)
    sub(1, False)
    p.label('QLOOP')
    sub(0, False)
    sub(1, False)
    p('s_sub_u32 %s, %s, 1' % (sr(sCnt), sr(sCnt)))
    p('s_cmp_lg_u32 %s, 0' % sr(sCnt))
    p('s_cbranch_scc1 QLOOP')
    p('s_waitcnt lgkmcnt(0)')
    p('s_barrier')
    p.ext(stamp(2))
    p('s_add_u32 %s, %s, %s' % (sr(sT1), sr(sCur), sr(sMb)))
    p('s_mul_i32 %s, %s, 3' % (sr(sMx), sr(sMx)))
    p('s_lshl_b32 %s, %s, 12' % (sr(sT0), sr(sE)))
    p('s_lshl_b32 %s, %s, 14' % (sr(sT2), sr(sE)))
    p('s_cmp_eq_u32 %s, 0' % sr(sTyp))
    p('s_cselect_b32 %s, %s, %s' % (sr(sQx), sr(sT0), sr(sT2)))
    p('s_add_u32 %s, %s, 0x2000' % (sr(sQx), sr(sQx)))

    def rot_off(dst, off):
        return ['s_add_u32 %s, %s, 0x%x' % (sr(dst), sr(sRot), off), 's_and_b32 %s, %s, 0x3ffff' % (sr(dst), sr(dst))]

    def packq(nv):
        for i in range(36):
            p('v_pk_mul_f32 %s, %s, %s' % (vr(2 * i, 2), vr(2 * i, 2), sr(sScale, 2)))
        for i in range(32):
            p('v_cvt_pk_bf16_f32 %s, %s, %s' % (vr(vQ + i), vr(2 * i), vr(2 * i + 1)))
        for i in range(4):
            p('v_cvt_pk_bf16_f32 %s, %s, %s' % (vr(vQr + i), vr(64 + 2 * i), vr(64 + 2 * i + 1)))
        p('v_lshlrev_b32 %s, 4, %s' % (vr(vA), vr(vLane)))
        p('s_lshl_b32 %s, %s, 10' % (sr(sT0), sr(sWv)))
        p('s_add_u32 %s, %s, %s' % (sr(sT0), sr(sT0), sr(sQx)))
        p('v_add_u32 %s, %s, %s' % (vr(vA), sr(sT0), vr(vA)))
        p('ds_write_b128 %s, %s' % (vr(vA), vr(vQr, 4)))
        p('s_waitcnt vmcnt(%d) lgkmcnt(0)' % nv)
        p('s_barrier')

    def dispatch(T):
        p('s_add_u32 %s, %s, 2' % (sr(sT0), sr(sW8)))
        p('s_and_b32 %s, %s, 7' % (sr(sT0), sr(sT0)))
        p('s_cmp_ge_u32 %s, 4' % sr(sT0))
        p('s_cbranch_scc1 ATT_%sL' % T)
        p('s_bitcmp1_b32 %s, 0' % sr(sW8))
        p('s_cbranch_scc1 ATT_%sY' % T)

    last_mf = mf_set(1, False) + mf_rem()
    p('s_cmp_eq_u32 %s, 0' % sr(sTyp))
    p('s_cbranch_scc0 FILL_B')
    p('s_mov_b32 m0, %s' % sr(sT1))
    p('s_nop 0')
    p('buffer_load_dwordx4 %s, %s, %s offen%s lds' % (vr(voffK), sr(sK, 4), sr(sRot), NT))
    for un in range(DDA):
        for m in last_mf[2 * un:2 * un + 2]:
            p(m)
        p.ext(['s_add_u32 m0, %s, 0x%x' % (sr(sT1), (un + 1) * SLOT)] + rot_off(sT0, (un + 1) * 8192) + [
            'buffer_load_dwordx4 %s, %s, %s offen%s lds' % (vr(voffK), sr(sK, 4), sr(sT0), NT),
            's_add_u32 m0, m0, 0x2000'] + rot_off(sT0, un * 8192) + [
            'buffer_load_dwordx4 %s, %s, %s offen%s lds' % (vr(voffV), sr(sV, 4), sr(sT0), NT)])
    p('s_mov_b32 %s, 0x%x' % (sr(sCv), (DDA - 1) * 8192))
    packq(2 * DDA)
    dispatch('A')
    for role in 'XLY':
        Attn(0, role).emit(p)
    p.label('FILL_B')
    p('s_mov_b32 m0, %s' % sr(sT1))
    p('s_nop 0')
    p('buffer_load_dwordx4 %s, %s, %s offen%s lds' % (vr(voffK), sr(sK, 4), sr(sRot), NT))
    p('s_add_u32 m0, m0, 0x1000')
    p('s_add_u32 %s, %s, 0x1000' % (sr(sT0), sr(sRot)))
    p('buffer_load_dwordx4 %s, %s, %s offen%s lds' % (vr(voffK), sr(sK, 4), sr(sT0), NT))
    for un in range(4):
        for m in last_mf[2 * un:2 * un + 2]:
            p(m)
        p.ext(['s_add_u32 m0, %s, 0x%x' % (sr(sT1), 2 * (un + 1) * SLOT)] + rot_off(sT0, (un + 1) * 8192) + [
            'buffer_load_dwordx4 %s, %s, %s offen%s lds' % (vr(voffK), sr(sK, 4), sr(sT0), NT),
            's_add_u32 m0, m0, 0x1000', 's_add_u32 %s, %s, 0x1000' % (sr(sT0), sr(sT0)),
            'buffer_load_dwordx4 %s, %s, %s offen%s lds' % (vr(voffK), sr(sK, 4), sr(sT0), NT),
            's_add_u32 m0, m0, 0x1000'] + rot_off(sT0, un * 8192) + [
            'buffer_load_dwordx4 %s, %s, %s offen%s lds' % (vr(voffV), sr(sV, 4), sr(sT0), NT),
            's_add_u32 m0, m0, 0x1000', 's_add_u32 %s, %s, 0x1000' % (sr(sT0), sr(sT0)),
            'buffer_load_dwordx4 %s, %s, %s offen%s lds' % (vr(voffV), sr(sV, 4), sr(sT0), NT)])
    p('s_mov_b32 %s, 0x%x' % (sr(sCv), 3 * 8192))
    packq(16)
    dispatch('B')
    for role in 'XLY':
        Attn(1, role).emit(p)
    tail(p, 'L')
    tail(p, 'X')
    tail(p, 'Y')
    outproj(p, True)
    outproj(p, False)
    sync_reduce(p)
    return p.L


def desc(name, vg, sg=102):
    return """.amdhsa_kernel %s
  .amdhsa_next_free_vgpr %d
  .amdhsa_next_free_sgpr %d
  .amdhsa_accum_offset %d
  .amdhsa_group_segment_fixed_size 0
  .amdhsa_kernarg_size 104
  .amdhsa_user_sgpr_count 2
  .amdhsa_user_sgpr_kernarg_segment_ptr 1
  .amdhsa_system_sgpr_workgroup_id_x 1
.end_amdhsa_kernel
""" % (name, vg, sg, (vg + 3) // 4 * 4)


def main():
    out_path = opt('o', 'cdna_kernels/%s.s' % NAME)
    kn = NAME + '_kernel'
    hdr = open('cdna_kernels/%s.s.ref' % NAME).read().split('; Override launch')[0]
    out = [hdr.rstrip('\n')]
    if '--list' in ARGS:
        out.append('; @launch kernel=%s grid=(256,1,1) block=(512,1,1) lds=%d' % (kn, LDS_TOTAL))
    else:
        out.append('; @launch grid=(256,1,1) block=(512,1,1) lds=%d' % LDS_TOTAL)
    out.append('.amdgcn_target "amdgcn-amd-amdhsa--gfx950"')
    out.append('.text')
    L2, tot = chk.fix_hazards(kernel(), verbose='-v' in ARGS)
    errs = [e for e in chk.check_waits(L2) if "['v%d']" % vDum not in e]
    print('%d lines, %d nop states inserted, %d wait errors' % (len(L2), tot, len(errs)))
    for e in errs[:20]:
        print('   ', e)
    out += ['.globl %s' % kn, '.p2align 8', '.type %s,@function' % kn, '%s:' % kn] + L2
    out.append('.section .rodata,"a"')
    out.append('.p2align 6')
    out.append(desc(kn, 256, 102))
    open(out_path, 'w').write('\n'.join(out) + '\n')


if __name__ == '__main__':
    main()
```

```python
import re
import sys

sys.setrecursionlimit(1000000)

REG_RE = re.compile(r'^(-?)(abs\()?([vsa])(?:(\d+)|\[(\d+):(\d+)\])\)?$')
TRANS = ('v_exp_f32', 'v_log_f32', 'v_rcp_f32', 'v_rsq_f32', 'v_sqrt_f32', 'v_sin_f32', 'v_cos_f32', 'v_rcp_iflag_f32')


def regs_of(tok):
    tok = tok.strip()
    if tok in ('vcc', 'vcc_lo', 'vcc_hi'):
        return {'vcc'}
    if tok in ('exec', 'exec_lo', 'exec_hi'):
        return {'exec'}
    if tok == 'm0':
        return {'m0'}
    m = REG_RE.match(tok)
    if not m:
        return set()
    f = m.group(3)
    if m.group(4) is not None:
        return {f + m.group(4)}
    return {f + str(i) for i in range(int(m.group(5)), int(m.group(6)) + 1)}


def split_ops(s):
    out, depth, cur = [], 0, ''
    for ch in s:
        if ch in '[(':
            depth += 1
        if ch in '])':
            depth -= 1
        if ch == ',' and depth == 0:
            out.append(cur.strip())
            cur = ''
        else:
            cur += ch
    if cur.strip():
        out.append(cur.strip())
    return out


class I:
    __slots__ = ('text', 'op', 'ops', 'mods', 'kind', 'w', 'r', 'passes', 'srcA', 'srcB', 'srcC', 'states',
                 'target', 'label', 'lds_dma', 'data', 'widestore', 'lanesel', 'constread')

    def __init__(self, text):
        self.text = text
        self.label = None
        self.op = None
        self.kind = None
        self.w = set()
        self.r = set()
        self.passes = 0
        self.srcA = self.srcB = self.srcC = set()
        self.states = 1
        self.target = None
        self.lds_dma = False
        self.data = set()
        self.widestore = False
        self.lanesel = set()
        self.constread = set()
        body = text.split(';')[0].strip()
        if not body:
            self.kind = 'none'
            self.states = 0
            return
        if body.endswith(':'):
            self.kind = 'label'
            self.label = body[:-1]
            self.states = 0
            return
        if body.startswith('.'):
            self.kind = 'none'
            self.states = 0
            return
        parts = body.split(None, 1)
        op = parts[0]
        self.op = op
        rest = parts[1] if len(parts) > 1 else ''
        ops = split_ops(rest)
        mods = []
        if ops:
            lastw = ops[-1].split()
            ops[-1] = lastw[0]
            mods = lastw[1:]
        self.ops = ops
        self.mods = mods
        R = [regs_of(o) for o in ops]
        base = re.sub(r'_e(32|64)$', '', op)
        if base.startswith('v_mfma'):
            self.kind = 'mfma'
            self.passes = 8 if '32x32x16' in base else 4 if '16x16x32' in base else None
            assert self.passes, text
            self.w = R[0]
            self.srcA, self.srcB, self.srcC = R[1], R[2], R[3]
            self.r = R[1] | R[2] | R[3] | {'exec'}
        elif base.startswith('v_'):
            self.kind = 'trans' if base in TRANS else 'valu'
            self.r = {'exec'}
            if base.startswith('v_permlane') and base.endswith('swap_b32'):
                self.w = R[0] | R[1]
                self.r |= R[0] | R[1]
                self.kind = 'permlane'
            elif base in ('v_add_co_u32', 'v_sub_co_u32', 'v_subrev_co_u32'):
                self.w = R[0] | R[1]
                for x in R[2:]:
                    self.r |= x
            elif base in ('v_addc_co_u32', 'v_subb_co_u32'):
                self.w = R[0] | R[1]
                for x in R[2:]:
                    self.r |= x
            elif base in ('v_readfirstlane_b32', 'v_readlane_b32'):
                self.w = R[0]
                self.r |= R[1]
                self.kind = 'readlane'
                if len(R) > 2:
                    self.lanesel = R[2]
                    self.r |= R[2]
            else:
                self.w = R[0]
                for x in R[1:]:
                    self.r |= x
                if base in ('v_fmac_f32', 'v_pk_fmac_f16', 'v_dot2c_f32_bf16'):
                    self.r |= R[0]
                if base.startswith('v_cmpx'):
                    self.w |= {'exec'}
            self.constread = {x for x in self.r if x[0] == 's' or x == 'vcc'}
        elif base.startswith('ds_'):
            self.kind = 'ds'
            self.r = {'exec'}
            if base.startswith('ds_read') or base.startswith('ds_swizzle'):
                self.w = R[0]
                self.r |= R[1]
            elif base.startswith('ds_bpermute') or base.startswith('ds_permute'):
                self.w = R[0]
                self.r |= R[1] | R[2]
            elif base.startswith('ds_write'):
                for x in R:
                    self.r |= x
            else:
                raise ValueError('unknown ds ' + text)
        elif base.startswith('buffer_') or base.startswith('global_'):
            self.kind = 'vmem'
            self.r = {'exec'}
            if base in ('buffer_wbl2', 'buffer_inv'):
                pass
            elif 'lds' in mods or '_lds_' in base:
                self.lds_dma = True
                for x in R:
                    self.r |= x
                self.r |= {'m0'}
            elif base.startswith('buffer_load'):
                self.w = R[0]
                for x in R[1:]:
                    self.r |= x
            elif base.startswith('global_load'):
                self.w = R[0]
                for x in R[1:]:
                    self.r |= x
            elif base.startswith('buffer_store'):
                for x in R:
                    self.r |= x
                self.data = R[0]
                self.widestore = base.endswith('x4') or base.endswith('x3')
            elif base.startswith('global_store'):
                for x in R:
                    self.r |= x
                self.data = R[1]
                self.widestore = base.endswith('x4') or base.endswith('x3')
            elif base.startswith('buffer_atomic'):
                for x in R:
                    self.r |= x
                if 'sc0' in mods:
                    self.w = R[0]
            elif base.startswith('global_atomic'):
                if 'sc0' in mods:
                    self.w = R[0]
                    for x in R[1:]:
                        self.r |= x
                else:
                    for x in R:
                        self.r |= x
            else:
                raise ValueError('unknown vmem ' + text)
        elif base.startswith('s_load') or base.startswith('s_buffer_load') or base in ('s_memtime', 's_memrealtime'):
            self.kind = 'smem'
            self.w = R[0]
            for x in R[1:]:
                self.r |= x
        elif base == 's_nop':
            self.kind = 'nop'
            self.states = int(ops[0], 0) + 1
        elif base == 's_waitcnt':
            self.kind = 'wait'
        elif base in ('s_barrier', 's_setprio', 's_sleep'):
            self.kind = 'smisc'
        elif base == 's_endpgm':
            self.kind = 'end'
        elif base == 's_branch':
            self.kind = 'branch'
            self.target = ops[0]
        elif base.startswith('s_cbranch'):
            self.kind = 'cbranch'
            self.target = ops[0]
            if 'vcc' in base:
                self.r = {'vcc'}
            elif 'exec' in base:
                self.r = {'exec'}
        elif base == 's_getreg_b32':
            self.kind = 'salu'
            self.w = R[0]
        elif base.startswith('s_cmp') or base.startswith('s_bitcmp'):
            self.kind = 'salu'
            for x in R:
                self.r |= x
        elif base.startswith('s_'):
            self.kind = 'salu'
            self.w = R[0]
            for x in R[1:]:
                self.r |= x
            if 'saveexec' in base:
                self.w |= {'exec'}
                self.r |= {'exec'}
            if base in ('s_addk_i32', 's_mulk_i32', 's_bitset0_b32', 's_bitset1_b32'):
                self.r |= R[0]
        else:
            raise ValueError('unknown instruction ' + text)


def is_valu(i):
    return i.kind in ('valu', 'trans', 'permlane', 'readlane')


def vregs(s):
    return {x for x in s if x[0] in 'va' and x not in ('vcc',)}


def sregs(s):
    return {x for x in s if x[0] == 's' or x == 'vcc'}


def need(p, c):
    n = 0
    if is_valu(p):
        pw_v = vregs(p.w)
        pw_s = sregs(p.w)
        if c.kind == 'mfma' and pw_v & (c.srcA | c.srcB | c.srcC):
            n = max(n, 2)
        if c.kind == 'mfma' and 'exec' in p.w:
            n = max(n, 4)
        if p.kind == 'trans' and c.kind in ('valu', 'permlane', 'readlane') and pw_v & c.r:
            n = max(n, 1)
        if c.kind == 'readlane' and pw_v & c.r:
            n = max(n, 1)
        if c.kind == 'permlane' and pw_v & c.r:
            n = max(n, 2)
        if pw_s:
            if is_valu(c) and pw_s & c.constread:
                n = max(n, 2)
            if c.kind == 'readlane' and pw_s & c.lanesel:
                n = max(n, 4)
            if c.kind == 'vmem' and pw_s & c.r:
                n = max(n, 5)
            if c.kind in ('salu', 'smem') and pw_s & c.r:
                n = max(n, 1)
        if 'exec' in p.w and c.kind in ('readlane', 'permlane'):
            n = max(n, 4)
    if p.op and p.op.startswith('v_dot') and vregs(p.w) & (c.r | c.w):
        if c.op == p.op and len(c.ops) == 4 and not (vregs(p.w) & (regs_of(c.ops[1]) | regs_of(c.ops[2]))):
            pass
        else:
            n = max(n, 3)
    if p.kind == 'mfma':
        D = p.w
        big = {4: 8, 8: 12}[p.passes]
        ovl = {4: 6, 8: 10}[p.passes]
        war = {4: 3, 8: 7}[p.passes]
        if c.kind == 'mfma':
            if D & (c.srcA | c.srcB):
                n = max(n, big)
            if D & c.srcC:
                if not (c.srcC == D and c.passes == p.passes):
                    n = max(n, ovl)
            elif D & c.w:
                n = max(n, ovl if c.passes < p.passes else 0)
        elif is_valu(c) or c.kind in ('vmem', 'ds'):
            if D & (c.r | c.w):
                n = max(n, big)
        if is_valu(c) and p.srcC & c.w:
            n = max(n, war)
    if p.kind == 'salu' and 'm0' in p.w and c.kind == 'vmem' and c.lds_dma:
        n = max(n, 1)
    if p.kind == 'vmem' and p.widestore and p.data & c.w:
        n = max(n, 2)
    return n


def build(lines):
    ins = [I(t) for t in lines]
    labels = {x.label: k for k, x in enumerate(ins) if x.kind == 'label'}
    succ = [[] for _ in ins]
    for k, x in enumerate(ins):
        if x.kind == 'end':
            continue
        if x.kind == 'branch':
            succ[k].append(labels[x.target])
            continue
        if x.kind == 'cbranch':
            succ[k].append(labels[x.target])
        if k + 1 < len(ins):
            succ[k].append(k + 1)
    pred = [[] for _ in ins]
    for k, ss in enumerate(succ):
        for s in ss:
            pred[s].append(k)
    return ins, succ, pred


MAXD = 14


def fix_hazards(lines, verbose=False):
    total = 0
    for it in range(300):
        ins, succ, pred = build(lines)
        add = {}
        for k, c in enumerate(ins):
            if c.kind in ('none', 'label', 'nop', 'wait', 'smisc', 'end', 'branch'):
                continue
            worst = 0
            seen = {}
            stack = [(p, 0) for p in pred[k]]
            while stack:
                p, d = stack.pop()
                if d >= MAXD:
                    continue
                if seen.get(p, 99) <= d:
                    continue
                seen[p] = d
                x = ins[p]
                if x.states:
                    n = need(x, c)
                    if n > d:
                        worst = max(worst, n - d)
                for q in pred[p]:
                    stack.append((q, d + x.states))
            if worst:
                add[k] = worst
        if not add:
            break
        lastk = -100
        for k in sorted(add):
            if k - lastk < 20:
                del add[k]
            else:
                lastk = k
        out = []
        for k, t in enumerate(lines):
            if k in add:
                n = add[k]
                total += n
                if verbose:
                    print('  nop %d before: %s' % (n, t.strip()))
                while n > 0:
                    m = min(n, 16)
                    out.append('    s_nop %d' % (m - 1))
                    n -= m
            out.append(t)
        lines = out
    else:
        raise RuntimeError('hazard fix did not converge')
    return lines, total


WAIT_RE = re.compile(r'(vmcnt|lgkmcnt|expcnt)\((\d+)\)')


def check_waits(lines, ignore=()):
    ins, succ, pred = build(lines)
    errs = []
    seen = set()
    stack = [(0, (), ())]
    nstates = 0
    while stack:
        k, lq, vq = stack.pop()
        while True:
            key = (k, lq, vq)
            if key in seen:
                break
            seen.add(key)
            nstates += 1
            if nstates > 3000000:
                raise RuntimeError('too many states')
            x = ins[k]
            if x.states or x.kind == 'wait':
                touched = x.r | x.w
                for q, nm in ((lq, 'lgkm'), (vq, 'vm')):
                    for (kind, regs) in q:
                        if regs & touched:
                            errs.append('line %d: %s touches %s with outstanding %s load' % (k, x.text.strip(), sorted(regs & touched), nm))
                if x.kind == 'wait':
                    for nm, n in WAIT_RE.findall(x.text.split(';')[0]):
                        n = int(n)
                        if nm == 'vmcnt':
                            vq = vq[len(vq) - n:] if n < len(vq) else vq
                            if n == 0:
                                vq = ()
                        elif nm == 'lgkmcnt':
                            if n == 0:
                                lq = ()
                            elif not any(kind == 's' for kind, _ in lq):
                                lq = lq[len(lq) - n:] if n < len(lq) else lq
                elif x.kind == 'ds':
                    lq = lq + (('d', frozenset(x.w)),)
                    if len(lq) > 40:
                        lq = lq[-40:]
                elif x.kind == 'smem':
                    lq = lq + (('s', frozenset(x.w)),)
                elif x.kind == 'vmem':
                    vq = vq + (('v', frozenset(x.w) - frozenset(ignore)),)
                    while vq and not vq[0][1]:
                        vq = vq[1:]
                    if len(vq) > 70:
                        vq = vq[-70:]
            ss = succ[k]
            if not ss:
                break
            for s in ss[1:]:
                stack.append((s, lq, vq))
            k = ss[0]
    return sorted(set(errs))
```

```python
import math
import struct
import sys

sys.path.insert(0, 'gen')
import chk

NAME = 'concat_heads__gqa_block_cached__mha_block_cached__near_ridge'
ARGS = sys.argv[1:]


def opt(name, default):
    for a in ARGS:
        if a.startswith('--%s=' % name):
            return type(default)(a.split('=')[1])
    return default


def f32(x):
    return '0x%08x' % struct.unpack('<I', struct.pack('<f', x))[0]


def vr(a, n=1):
    return 'v%d' % a if n == 1 else 'v[%d:%d]' % (a, a + n - 1)


def sr(a, n=1):
    return 's%d' % a if n == 1 else 's[%d:%d]' % (a, a + n - 1)


class P:
    def __init__(s):
        s.L = []

    def __call__(s, t):
        for x in t.strip('\n').split('\n'):
            x = x.strip()
            if x:
                s.L.append('    ' + x)

    def label(s, n):
        s.L.append(n + ':')

    def c(s, t):
        s.L.append('    ; ' + t)

    def ext(s, items):
        for x in items:
            if x.endswith(':'):
                s.L.append(x)
            else:
                s.L.append('    ' + x)


LDS_TOTAL = 163840
SLOT = 16384
PART_B = 165888
FLAG_OFF = 48 << 20
LDS_DROP = 0x30000

vO = 0
vOr = 64
vQ = 96
vQr = 128
vS = [144, 160]
vNM = 176
vSr = 192
vNMr = 200
vF = 204
vL0, vLr = 236, 237
vKa = [238, 239, 240, 241]
vVa = [242, 243]
bKr, bVr = 244, 245
vT = [246, 247]
voffK, voffV = 248, 249
vMx, vA, vB, vC = 250, 251, 252, 253
vLane = 254
vDum = 255
voffWo = voffK
voffK1 = 64
qSet = [144, 164]
qRem = 184
qBase = 196
qCur = 200
voffW, voffX, voffX9, voffT = 206, 207, 208, 209
WBUF, XBUF, SUP = 16384, 18432, 51200
tOB = 64
tRB = 128
tAcc = [160, 176]
tRac = [192, 196]
tF = 208
tRm, tRr, tCm, tCr, tPm, tPr = 240, 241, 242, 243, 244, 245

sX, sW, sK, sV, sWo, sPt, sTc, sG = 4, 8, 12, 16, 20, 24, 28, 32
sW8, sE, sWv, sB, sHP, sTyp = 36, 37, 38, 39, 40, 41
sCur, sQx, sWr, sDelta = 42, 43, 44, 45
sSv, sSv1, sSk0, sSk1 = 46, 47, 48, 49
sCnt, sT0, sT1, sT2 = 50, 51, 52, 53
sEx = 54
sScale, sThr = 56, 58
sMb, sMw, sMx = 59, 60, 61
sCv, sRot = 62, 63
sR = 64
sBufR, sBufW, sSoW, sSoX, sTo = 69, 70, 71, 72, 73
sXR, sXW = 46, 47
sWs, sOut, sDbg = 74, 76, 78
sKA = 80
sFl = sTc
sFl = 96 if '--stamp' not in ARGS else 96

LOOK = opt('look', 6)
THR = 8.0
NT = ' nt'
STAMP = '--stamp' in ARGS
STAMP_OFF = 64 << 20
BA, BB = opt('ba', 3), opt('bb', 5)
ONEBAR = '--onebar' in ARGS
DSP = opt('dsp', 1)
PAIRW = opt('pairw', 1)
TOUCH = '--notouch' not in ARGS
TU0 = opt('tu0', 2)
TSB, TSA = opt('tsb', 11), opt('tsa', 10)
sTs = 49
sRole = 57
DDA = opt('dda', 3)


TST = '--tstamp' in ARGS
TMAP = {5: 1, 6: 2, 'e1': 3, 's0': 4, 's4': 5, 's8': 6, 7: 7, 8: 8, 9: 9, 10: 10}


def stamp_reg(i):
    return {0: 100, 9: 46, 10: 48}.get(i, 80 + 2 * (i - 1))


def stamp(i):
    if not STAMP:
        return []
    if TST:
        if i not in TMAP:
            return []
        i = TMAP[i]
    elif not isinstance(i, int):
        return []
    r = stamp_reg(i)
    return ['s_memtime s[%d:%d]' % (r, r + 1), 's_waitcnt lgkmcnt(0)']


def stamp_flush(p, n):
    if not STAMP:
        return
    p('s_mul_i32 %s, s2, 8' % sr(sT0))
    p('s_add_u32 %s, %s, %s' % (sr(sT0), sr(sT0), sr(sW8)))
    p('s_lshl_b32 %s, %s, 6' % (sr(sT0), sr(sT0)))
    p('s_add_u32 %s, %s, 0x%x' % (sr(sT0), sr(sT0), STAMP_OFF))
    p('s_add_u32 %s, %s, %s' % (sr(sG), sr(sWs), sr(sT0)))
    p('s_addc_u32 %s, %s, 0' % (sr(sG + 1), sr(sWs + 1)))
    p('s_mov_b32 %s, 64' % sr(sG + 2))
    p('s_mov_b32 %s, 0x20000' % sr(sG + 3))
    p('v_mov_b32 v1, 0')
    for i in range(n):
        p('v_mov_b32 v2, s%d' % stamp_reg(i))
        p('buffer_store_dword v2, v1, %s, 0 offen offset:%d' % (sr(sG, 4), 4 * i))
    p('s_waitcnt vmcnt(0)')


def resolve_waits(items, ctxs):
    def is_lds(x):
        return (isinstance(x, tuple) and x[0] == 'R') or (isinstance(x, str) and x.startswith('ds_'))
    res = {}
    for ctx in ctxs:
        seq = list(ctx) + list(items)
        off = len(ctx)
        cnt = 0
        pos = {}
        done = 0
        for k, x in enumerate(seq):
            if is_lds(x):
                cnt += 1
                if isinstance(x, tuple):
                    pos[x[1]] = cnt
            elif isinstance(x, str) and x.startswith('s_waitcnt') and 'lgkmcnt(0)' in x:
                done = cnt
            elif isinstance(x, tuple) and x[0] == 'W':
                last = max(pos[i] for i in x[1]) if all(i in pos for i in x[1]) else None
                if last is None:
                    assert k < off
                    continue
                n = min(cnt - last, 15)
                skip = last <= done
                done = max(done, last)
                if k >= off:
                    old = res.get(k - off, (99, True))
                    res[k - off] = (min(old[0], n), old[1] and skip)
    out = []
    for k, x in enumerate(items):
        if isinstance(x, tuple):
            if x[0] == 'R':
                out.append(x[2])
            else:
                n, skip = res[k]
                out.append('; (wait implied)' if skip else 's_waitcnt lgkmcnt(%d)' % n)
        else:
            out.append(x)
    return out


def softmax_stream(S, n, lregs):
    seq = []
    pend = []
    for i in range(0, n, 2):
        seq.append(('e', i))
        seq += pend
        seq.append(('e', i + 1))
        pend = [('a', i), ('a', i + 1), ('c', i)]
    seq += pend
    st = []
    for k, i in seq:
        if k == 'e':
            st.append((2, 'v_exp_f32 %s, %s' % (vr(S + i), vr(S + i))))
        elif k == 'a':
            l = lregs[i % len(lregs)]
            st.append((1, 'v_add_f32 %s, %s, %s' % (vr(l), vr(l), vr(S + i))))
        elif k == 'c':
            dst = S + (i // 8) * 8 + (i % 8) // 2
            st.append((1, 'v_cvt_pk_bf16_f32 %s, %s, %s' % (vr(dst), vr(S + i), vr(S + i + 1))))
    return st


def max_stream(S, n, dst):
    st = [(1, 'v_max3_f32 %s, %s, %s, %s' % (vr(dst), vr(S), vr(S + 1), vr(S + 2)))]
    i = 3
    while i + 1 < n:
        st.append((1, 'v_max3_f32 %s, %s, %s, %s' % (vr(dst), vr(dst), vr(S + i), vr(S + i + 1))))
        i += 2
    if i < n:
        st.append((1, 'v_max_f32 %s, %s, %s' % (vr(dst), vr(dst), vr(S + i))))
    return st


def x16_op(x, op):
    return ['ds_swizzle_b32 %s, %s offset:0x401F' % (vr(vA), vr(x)), 's_waitcnt lgkmcnt(0)',
            '%s %s, %s, %s' % (op, vr(x), vr(x), vr(vA))]


def xhalf_op(x, op):
    return ['v_mov_b32 %s, %s' % (vr(vA), vr(x)), 'v_mov_b32 %s, %s' % (vr(vB), vr(x)),
            'v_permlane32_swap_b32 %s, %s' % (vr(vA), vr(vB)),
            '%s %s, %s, %s' % (op, vr(x), vr(vA), vr(vB))]


def tile_off(dst, c, add):
    return ['s_add_u32 %s, %s, 0x%x' % (sr(sT0), sr(c), add),
            's_add_u32 %s, %s, %s' % (sr(dst), sr(sT0), sr(sRot)),
            's_and_b32 %s, %s, 0x3ffff' % (sr(dst), sr(dst)),
            's_and_b32 %s, %s, 0x40000' % (sr(sT0), sr(sT0)),
            's_or_b32 %s, %s, %s' % (sr(dst), sr(dst), sr(sT0))]


def wo_stage_dma(st):
    g = []
    for i in range(4):
        g.append(['s_add_u32 m0, %s, %s' % (sr(sR + st % 5), sr(sMx)) if i == 0 else 's_add_u32 m0, m0, 0x400',
                  's_mov_b32 %s, 0x%x' % (sr(sT2), st * 128 + i * 9216),
                  'buffer_load_dwordx4 %s, %s, %s offen lds' % (vr(voffWo), sr(sWo, 4), sr(sT2))])
    return g


def voffwo_code():
    return ['v_lshrrev_b32 %s, 3, %s' % (vr(vA), vr(vLane)),
            'v_mul_u32_u24 %s, 0x480, %s' % (vr(vA), vr(vA)),
            'v_bfe_u32 %s, %s, 4, 1' % (vr(vB), vr(vLane)),
            'v_lshlrev_b32 %s, 2, %s' % (vr(vB), vr(vB)),
            'v_xor_b32 %s, %s, %s' % (vr(vB), vr(vB), vr(vLane)),
            'v_and_b32 %s, 7, %s' % (vr(vB), vr(vB)),
            'v_lshl_add_u32 %s, %s, 4, %s' % (vr(vA), vr(vB), vr(vA)),
            's_mul_i32 %s, %s, 36864' % (sr(sT0), sr(sW8)),
            'v_add_u32 %s, %s, %s' % (vr(voffWo), sr(sT0), vr(vA))]


class Attn:
    def __init__(s, typ, role):
        s.typ, s.role = typ, role
        s.heavy = role != 'L'
        s.tag = ('A' if typ == 0 else 'B') + role
        s.DD = DDA if typ == 0 else 4
        s.onebar = ONEBAR or (typ == 0 and DDA < 9)
        s.early = typ == 0 and DDA < 9
        s.loader = role == 'L'
        s.nd = (4 if typ == 0 else 8) if s.loader else 0
        s.vL1 = 65 if s.loader else 249
        s.stride = SLOT if typ == 0 else 2 * SLOT

    def pv_slots(s, par, init):
        So = vS[1 - par]
        out = []
        for us in range(2):
            for jt in range(4):
                def mk(f, us=us, jt=jt):
                    c = '0' if (init and us == 0) else vr(vO + 16 * jt, 16)
                    mf = 'v_mfma_f32_32x32x16_bf16 %s, %s, %s, %s' % (vr(vO + 16 * jt, 16), vr(f, 4), vr(So + 8 * us, 4), c)
                    rd = ['ds_read_b64_tr_b16 %s, %s offset:%d' % (vr(f + 2 * p, 2), vr(vVa[jt & 1]), us * 4096 + p * 2048 + (jt >> 1) * 512) for p in range(2)]
                    return mf, rd
                out.append(('big', 'pv', mk))
        return out

    def qk_slots(s, par, czero=False):
        So = vS[1 - par]
        out = []
        for st in range(8):
            def mk(f, st=st):
                c = ('0' if czero else vr(vNM, 16)) if st == 0 else vr(So, 16)
                mf = 'v_mfma_f32_32x32x16_bf16 %s, %s, %s, %s' % (vr(So, 16), vr(f, 4), vr(vQ + 4 * st, 4), c)
                rd = ['ds_read_b128 %s, %s offset:%d' % (vr(f, 4), vr(vKa[st & 3]), (st >> 2) * 512)]
                return mf, rd
            out.append(('big', 'qk', mk))
        return out

    def rqk_slots(s, init):
        out = []
        for st in range(4):
            for z in range(2):
                def mk(f, st=st, z=z):
                    c = ('0' if init else vr(vNMr, 4)) if st == 0 else vr(vSr + 4 * z, 4)
                    mf = 'v_mfma_f32_16x16x32_bf16 %s, %s, %s, %s' % (vr(vSr + 4 * z, 4), vr(f, 4), vr(vQr + 4 * st, 4), c)
                    rd = ['ds_read_b128 %s, %s offset:%d' % (vr(f, 4), vr(vT[st & 1]), z * 4096 + (st >> 1) * 512)]
                    return mf, rd
                out.append(('small', 'rqk', mk))
        return out

    def rpv_slots(s):
        out = []
        for T in range(8):
            def mk(f, T=T):
                mf = 'v_mfma_f32_16x16x32_bf16 %s, %s, %s, %s' % (vr(vOr + 4 * T, 4), vr(f, 4), vr(vSr, 4), vr(vOr + 4 * T, 4))
                rd = ['ds_read_b64_tr_b16 %s, %s offset:%d' % (vr(f + 2 * p, 2), vr(vT[(T >> 1) & 1]), p * 4096 + (T >> 2) * 512 + (T & 1) * 32) for p in range(2)]
                return mf, rd
            out.append(('small', 'rpv', mk))
        return out

    def rem_kind(s, par):
        if not s.heavy:
            return None
        return 'rqk' if (par == 0) == (s.role == 'X') else 'rpv'

    def dma_items(s):
        if not s.loader:
            return []
        ld = 'buffer_load_dwordx4 %s, %s, %s offen%s%s lds'
        if s.typ == 1:
            return [['s_add_u32 m0, %s, %s' % (sr(sWr), sr(sMb)), 's_add_u32 %s, %s, 0x1000' % (sr(sT1), sr(sSk0)),
                     ld % (vr(voffK), sr(sK, 4), sr(sSk0), '', NT), ld % (vr(voffK1), sr(sK, 4), sr(sSk0), ' offset:2048', NT)],
                    ['s_add_u32 m0, m0, 0x1000', 's_add_u32 %s, %s, 0x1000' % (sr(sT2), sr(sSv)),
                     ld % (vr(voffK), sr(sK, 4), sr(sT1), '', NT), ld % (vr(voffK1), sr(sK, 4), sr(sT1), ' offset:2048', NT)],
                    ['s_add_u32 m0, m0, 0x1000', 's_nop 0',
                     ld % (vr(voffV), sr(sV, 4), sr(sSv), '', NT), ld % (vr(voffV), sr(sV, 4), sr(sSv), ' offset:2048', NT)],
                    ['s_add_u32 m0, m0, 0x1000', 's_nop 0',
                     ld % (vr(voffV), sr(sV, 4), sr(sT2), '', NT), ld % (vr(voffV), sr(sV, 4), sr(sT2), ' offset:2048', NT)]]
        return [['s_add_u32 m0, %s, %s' % (sr(sWr), sr(sMb)), 's_add_u32 %s, %s, 0x1000' % (sr(sT1), sr(sSk0)),
                 ld % (vr(voffK), sr(sK, 4), sr(sSk0), '', NT)],
                ['s_add_u32 m0, m0, 0x1000', 's_add_u32 %s, %s, 0x1000' % (sr(sT2), sr(sSv)),
                 ld % (vr(voffK), sr(sK, 4), sr(sT1), '', NT)],
                ['s_add_u32 m0, m0, 0x1000', 's_nop 0', ld % (vr(voffV), sr(sV, 4), sr(sSv), '', NT)],
                ['s_add_u32 m0, m0, 0x1000', 's_nop 0', ld % (vr(voffV), sr(sV, 4), sr(sT2), '', NT)]]

    def dma_singles(s):
        out = []
        for g in s.dma_items():
            cur = []
            for t in g:
                cur.append(t)
                if t.startswith('buffer_load'):
                    out.append(cur)
                    cur = []
        return out

    def unit_adv(s):
        return ['s_mov_b32 %s, %s' % (sr(sSv), sr(sSk0)),
                's_add_u32 %s, %s, 0x2000' % (sr(sSk0), sr(sSk0)),
                's_and_b32 %s, %s, 0x3ffff' % (sr(sSk0), sr(sSk0)),
                's_add_u32 %s, %s, 1' % (sr(sCv), sr(sCv))]

    def adv_scalar(s, dma):
        o = ['s_mov_b32 %s, %s' % (sr(sWr), sr(sCur)),
             's_add_u32 %s, %s, 0x%x' % (sr(sCur), sr(sCur), s.stride),
             's_cmp_ge_u32 %s, 0x%x' % (sr(sCur), LDS_TOTAL),
             's_cselect_b32 %s, 0x%x, 0' % (sr(sT0), LDS_TOTAL),
             's_sub_u32 %s, %s, %s' % (sr(sCur), sr(sCur), sr(sT0)),
             's_sub_u32 %s, %s, %s' % (sr(sDelta), sr(sCur), sr(sWr))]
        if dma and s.loader:
            if s.early:
                o += ['s_add_u32 %s, %s, 0x%x' % (sr(sWr), sr(sCur), s.DD * SLOT),
                      's_cmp_ge_u32 %s, 0x%x' % (sr(sWr), LDS_TOTAL),
                      's_cselect_b32 %s, 0x%x, 0' % (sr(sT0), LDS_TOTAL),
                      's_sub_u32 %s, %s, %s' % (sr(sWr), sr(sWr), sr(sT0))]
            o += s.unit_adv()
            o += ['s_cmp_lt_u32 %s, 31' % sr(sCv),
                  's_cselect_b32 %s, 0x40000, 0' % sr(sK + 2),
                  's_cmp_lt_u32 %s, 32' % sr(sCv),
                  's_cselect_b32 %s, 0x40000, 0' % sr(sV + 2),
                  's_cselect_b32 %s, %s, 0x%x' % (sr(sWr), sr(sWr), LDS_DROP)]
        return o

    def rem_addr(s, par):
        k = s.rem_kind(par)
        if not k:
            return []
        return ['v_add_u32 %s, %s, %s' % (vr(vT[0]), sr(sCur), vr(bKr if k == 'rqk' else bVr)),
                'v_xor_b32 %s, 64, %s' % (vr(vT[1]), vr(vT[0]))]

    def adv_vector(s, nextpar):
        o = ['v_add_u32 %s, %s, %s' % (vr(x), sr(sDelta), vr(x)) for x in vKa + vVa]
        return o + s.rem_addr(nextpar)

    def iter_slots(s, par, kind):
        first, last = kind == 'first', kind == 'last'
        sl = []
        k = s.rem_kind(par)
        if k == 'rqk':
            sl += s.rqk_slots(init=first)
        elif k == 'rpv':
            sl += [None] * 8 if (first and par == 0) else s.rpv_slots()
        npv = len(sl)
        sl += [None] * 8 if (first and par == 0) else s.pv_slots(par, init=(first and par == 1))
        sl += [None] * 8 if (last and par == 1) else s.qk_slots(par)
        return sl, npv

    def epi_slots(s):
        sl = s.rpv_slots() if s.rem_kind(0) == 'rpv' else []
        return sl + s.pv_slots(0, init=False)

    def pair(s, kind):
        first, last = kind == 'first', kind == 'last'
        slots, starts, pvs = [], [], []
        for par in range(2):
            starts.append(len(slots))
            sl, npv = s.iter_slots(par, kind)
            pvs.append(len(slots) + npv)
            slots += sl
        n = len(slots)
        assert n % 8 == 0
        nxt = s.epi_slots() if last else s.iter_slots(0, 'loop')[0]
        made = []
        for k, sl in enumerate(slots + nxt):
            if sl is None:
                made.append(None)
            else:
                mf, rd = sl[2](vF + 4 * (k % 8))
                ids = ['%d_%d' % (k if k < n else k - n, i) for i in range(len(rd))]
                made.append((sl[0], sl[1], mf, rd, ids))
        items = []
        nread = 0 if first else LOOK
        gate = [pvs[0] + 8]
        rares = []

        def emit_reads(upto):
            nonlocal nread
            while nread <= upto and nread < n + LOOK and nread < gate[0]:
                m = made[nread]
                if m is not None:
                    for i, t in zip(m[4], m[3]):
                        items.append(('R', i, t))
                nread += 1

        for par in range(2):
            a = starts[par]
            b = starts[1] if par == 0 else n
            pv0 = pvs[par]
            S = vS[par]
            gate[0] = pv0 + 8
            nocheck = first and par == 0
            if last:
                dma = (wo_stage_dma(0) + wo_stage_dma(1)) if par == 0 else []
                nv = (s.DD - 1 - par) * s.nd + 8
            else:
                dma = s.dma_singles()
                nv = s.DD * s.nd
            mainq = []
            if not nocheck:
                mainq += max_stream(S, 16, vMx)
                mainq.append((1, 'v_cmp_lt_f32 vcc, %s, %s' % (sr(sThr), vr(vMx))))
                mainq.append((0, 'BR_MAIN'))
            mainq += softmax_stream(S, 16, [vL0, s.vL1])
            remq = []
            if s.rem_kind(par) == 'rqk':
                remq += max_stream(vSr, 8, vC)
                if first:
                    blk = x16_op(vC, 'v_max_f32') + xhalf_op(vC, 'v_max_f32')
                    blk += ['v_sub_f32 %s, 0, %s' % (vr(vNMr + i), vr(vC)) for i in range(4)]
                    blk += ['v_sub_f32 %s, %s, %s' % (vr(vSr + i), vr(vSr + i), vr(vC)) for i in range(8)]
                    remq += [(1, t) for t in blk]
                else:
                    remq.append((1, 'v_cmp_lt_f32 vcc, %s, %s' % (sr(sThr), vr(vC))))
                    remq.append((0, 'BR_REM'))
                remq += softmax_stream(vSr, 8, [vLr])
            rem_ready = pv0 + 7
            present = [k for k in range(a, b) if made[k] is not None]
            cap = {k: (6 if made[k][0] == 'big' else 2) for k in present}
            firstgap = present[1] if not nocheck else present[0]
            seg_start = None
            misc = s.adv_scalar(not last)
            emit_reads(present[0] - 1 + LOOK)

            def bar_a(k):
                nonlocal misc
                items.extend(misc)
                misc = []
                assert nread >= gate[0] or all(made[j] is None for j in range(nread, gate[0]))
                items.extend(s.adv_vector(1 - par))
                if s.onebar:
                    items.append('s_waitcnt vmcnt(%d) lgkmcnt(0)' % (nv - len(dma)) if s.loader else 's_waitcnt lgkmcnt(0)')
                    items.append('s_barrier')
                    gate[0] = 10 ** 6
                    emit_reads(k + LOOK)
                else:
                    items.append('s_waitcnt lgkmcnt(0)')
                    items.append('s_barrier')

            def bar_b(k):
                if s.onebar:
                    return
                if s.loader:
                    items.append('s_waitcnt vmcnt(%d)' % (nv - len(dma)))
                items.append('s_barrier')
                gate[0] = 10 ** 6
                emit_reads(k + LOOK)

            for k in range(a, b):
                m = made[k]
                if m is not None:
                    ids = m[4]
                    if PAIRW and k % 2 == 0 and made[k + 1] is not None and nread > k + 1:
                        ids = ids + made[k + 1][4]
                    items.append(('W', ids))
                    items.append(m[2])
                    if k == pv0 + 7 and seg_start is not None:
                        lab = 'REJ_%s_%s%d' % (s.tag, kind, par)
                        items.append(lab + ':')
                        rares.append(('main', seg_start, len(items) - 1, lab, par, kind))
                        seg_start = None
                emit_reads(k + LOOK)
                if k == pv0 + BA - 1:
                    bar_a(k)
                if k == pv0 + BB - 1:
                    bar_b(k)
                if k >= pv0 + BA - 1 and dma and (m is not None or k == b - 1):
                    left = len([j for j in present if j >= k]) or 1
                    for _ in range(-(-len(dma) // left) if DSP else len(dma)):
                        items.extend(dma.pop(0))
                if m is None:
                    continue
                if misc and k < pv0 + BA - 1:
                    take = 6
                    items.extend(misc[:take])
                    misc = misc[take:]
                if k < firstgap:
                    continue
                remaining = sum(c for c, _ in mainq) + sum(c for c, _ in remq)
                capleft = sum(cap[j] for j in present if j >= k)
                bud = math.ceil(remaining * cap[k] / capleft)
                while bud > 0 and (mainq or remq):
                    use_rem = remq and k >= rem_ready and (not mainq or sum(c for c, _ in remq) * 2 >= sum(c for c, _ in mainq) or k >= b - 3)
                    q = remq if use_rem else mainq
                    if not q:
                        break
                    c, t = q.pop(0)
                    bud -= c
                    s.put(items, t, kind, par, rares)
                    if t == 'BR_MAIN':
                        seg_start = len(items)
                    elif q and q[0][1] in ('BR_MAIN', 'BR_REM'):
                        c, t = q.pop(0)
                        s.put(items, t, kind, par, rares)
                        if t == 'BR_MAIN':
                            seg_start = len(items)
            assert seg_start is None
            for g in dma:
                items.extend(g)
            for c, t in mainq + remq:
                s.put(items, t, kind, par, rares)
            if par == 1 and kind == 'loop':
                items += ['s_cmp_lg_u32 %s, %d' % (sr(sCnt), opt('wot', 3)), 's_cbranch_scc1 NOT_%s' % s.tag,
                          'v_lshlrev_b32 %s, 7, %s' % (vr(vA), vr(vLane)),
                          's_mul_i32 %s, %s, 4608' % (sr(sT0), sr(sW8)),
                          's_mul_i32 %s, %s, 36864' % (sr(sT1), sr(sB)),
                          's_add_u32 %s, %s, %s' % (sr(sT0), sr(sT0), sr(sT1)),
                          'buffer_load_dword %s, %s, %s, %s offen' % (vr(vDum), vr(vA), sr(sWo, 4), sr(sT0)),
                          'NOT_%s:' % s.tag]
                items += ['s_sub_u32 %s, %s, 1' % (sr(sCnt), sr(sCnt)), 's_cmp_lg_u32 %s, 0' % sr(sCnt),
                          's_cbranch_scc1 LOOP_%s' % s.tag]
        return items, rares, made[n:]

    def put(s, items, t, kind, par, rares):
        if t == 'BR_MAIN':
            items.append('s_cbranch_vccnz RARE_%s_%s%d' % (s.tag, kind, par))
        elif t == 'BR_REM':
            lab = 'RREJ_%s_%s' % (s.tag, kind)
            items.append('s_cbranch_vccnz RRARE_%s_%s' % (s.tag, kind))
            items.append(lab + ':')
            rares.append(('rem', lab, kind))
        else:
            items.append(t)

    def rare_blocks(s, text, rares):
        out = []
        for r in rares:
            if r[0] == 'main':
                _, a, b, lab, par, kind = r
                S = vS[par]
                seg = text[a:b]
                issoft = lambda t: t.startswith(('v_exp_f32', 'v_add_f32', 'v_cvt_pk'))
                assert not any(t.endswith(':') for t in seg)
                out.append('RARE_%s_%s%d:' % (s.tag, kind, par))
                out += [t for t in seg if not issoft(t)]
                out += xhalf_op(vMx, 'v_max_f32')
                out += ['v_max_f32 %s, 0, %s' % (vr(vMx), vr(vMx)),
                        'v_exp_f32 %s, -%s' % (vr(vA), vr(vMx))]
                out += ['v_sub_f32 %s, %s, %s' % (vr(S + i), vr(S + i), vr(vMx)) for i in range(16)]
                out += ['v_sub_f32 %s, %s, %s' % (vr(vNM + i), vr(vNM + i), vr(vMx)) for i in range(16)]
                out += ['v_mul_f32 %s, %s, %s' % (vr(x), vr(x), vr(vA)) for x in [vL0, s.vL1] + list(range(vO, vO + 64))]
                out += [t for t in seg if issoft(t)]
                out.append('s_branch %s' % lab)
            else:
                _, lab, kind = r
                out.append('RRARE_%s_%s:' % (s.tag, kind))
                out += x16_op(vC, 'v_max_f32') + xhalf_op(vC, 'v_max_f32')
                out += ['v_max_f32 %s, 0, %s' % (vr(vC), vr(vC)),
                        'v_exp_f32 %s, -%s' % (vr(vA), vr(vC))]
                out += ['v_sub_f32 %s, %s, %s' % (vr(vSr + i), vr(vSr + i), vr(vC)) for i in range(8)]
                out += ['v_sub_f32 %s, %s, %s' % (vr(vNMr + i), vr(vNMr + i), vr(vC)) for i in range(4)]
                out += ['v_mul_f32 %s, %s, %s' % (vr(x), vr(x), vr(vA)) for x in [vLr] + list(range(vOr, vOr + 32))]
                out.append('s_branch %s' % lab)
        return out

    def emit(s, p):
        tag = s.tag
        p.label('ATT_%s' % tag)
        pr = opt('prioh', 1) if s.heavy else opt('priol', 0)
        if pr:
            p('s_setprio %d' % pr)
        if s.heavy:
            p('v_lshlrev_b32 %s, 4, %s' % (vr(vA), vr(vLane)))
            p('v_add_u32 %s, %s, %s' % (vr(vA), sr(sQx), vr(vA)))
            for i in range(4):
                p('ds_read_b128 %s, %s offset:%d' % (vr(vQr + 4 * i, 4), vr(vA), i * 1024))
        qk0 = [sl[2](vF + 4 * k) for k, sl in enumerate(s.qk_slots(1, czero=True))]
        for mf, rd in qk0:
            p(rd[0])
        for k, (mf, rd) in enumerate(qk0):
            p('s_waitcnt lgkmcnt(%d)' % (7 - k))
            p(mf)
        for x in [vL0, s.vL1, vLr] + (list(range(vOr, vOr + 32)) if s.heavy else []):
            p('v_mov_b32 %s, 0' % vr(x))
        if s.role == 'X':
            p.ext(s.rem_addr(0))
        if s.loader:
            p('v_xor_b32 %s, 64, %s' % (vr(voffK1), vr(voffK)))
        for c, t in max_stream(vS[0], 16, vMx):
            p(t)
        p.ext(xhalf_op(vMx, 'v_max_f32'))
        for i in range(16):
            p('v_sub_f32 %s, 0, %s' % (vr(vNM + i), vr(vMx)))
        for i in range(16):
            p('v_sub_f32 %s, %s, %s' % (vr(vS[0] + i), vr(vS[0] + i), vr(vMx)))
        p('s_mov_b32 %s, 14' % sr(sCnt))
        fi, fr, _ = s.pair('first')
        li, lr, _ = s.pair('loop')
        la, lar, ep = s.pair('last')
        ft = resolve_waits(fi, [[]])
        lt = resolve_waits(li, [fi, li])
        lat = resolve_waits(la, [li])
        epi = []
        nread = LOOK
        for k, m in enumerate(ep):
            epi.append(('W', m[4]))
            epi.append(m[2])
            if nread < len(ep):
                for i, t in zip(ep[nread][4], ep[nread][3]):
                    epi.append(('R', i, t))
                nread += 1
        et = resolve_waits(epi, [la])
        p.ext(stamp(3))
        p.ext(ft)
        p.ext(stamp(4))
        p.label('LOOP_%s' % tag)
        if '--nocompute' in ARGS:
            p.ext([t for t in lt if not t.startswith(('v_', 'ds_', 's_cbranch_vcc', 's_waitcnt lgkm'))])
        elif '--nomem' in ARGS:
            p.ext([t for t in lt if not t.startswith(('buffer_load', 's_waitcnt vmcnt'))])
        else:
            p.ext(lt)
        p.ext(stamp(5))
        p.ext(voffwo_code())
        p.ext(lat)
        p.ext(et)
        p.ext(stamp(6))
        p('v_add_f32 %s, %s, %s' % (vr(vL0), vr(vL0), vr(s.vL1)))
        p('s_branch TAIL_%s' % s.role)
        p.ext(s.rare_blocks(ft, fr) + s.rare_blocks(lt, lr) + s.rare_blocks(lat, lar))


def tail(p, role):
    heavy = role != 'L'
    p.label('TAIL_%s' % role)
    p.ext(xhalf_op(vL0, 'v_add_f32'))
    p('v_rcp_f32 %s, %s' % (vr(vL0), vr(vL0)))
    p('v_lshlrev_b32 %s, 4, %s' % (vr(vC), vr(vLane)))
    if heavy:
        p.ext(x16_op(vLr, 'v_add_f32'))
        p.ext(xhalf_op(vLr, 'v_add_f32'))
        p('s_lshl_b32 %s, %s, 13' % (sr(sT0), sr(sE)))
        p('s_add_u32 %s, %s, %s' % (sr(sT0), sr(sT0), sr(sR + 2)))
        p('v_add_u32 %s, %s, %s' % (vr(vT[0]), sr(sT0), vr(vC)))
        p('s_lshl_b32 %s, %s, 10' % (sr(sT1), sr(sE)))
        p('s_add_u32 %s, %s, %s' % (sr(sT1), sr(sT1), sr(sR + 2)))
        p('s_add_u32 %s, %s, 16384' % (sr(sT1), sr(sT1)))
        p('v_add_u32 %s, %s, %s' % (vr(vT[1]), sr(sT1), vr(vC)))
        if role == 'Y':
            for i in range(8):
                p('ds_write_b128 %s, %s offset:%d' % (vr(vT[0]), vr(vOr + 4 * i, 4), i * 1024))
            p('v_mov_b32 %s, %s' % (vr(vNMr + 1), vr(vLr)))
            p('ds_write_b128 %s, %s' % (vr(vT[1]), vr(vNMr, 4)))
    for i in range(64):
        p('v_mul_f32 %s, %s, %s' % (vr(vO + i), vr(vO + i), vr(vL0)))
    for i in range(32):
        p('v_cvt_pk_bf16_f32 %s, %s, %s' % (vr(vS[0] + i), vr(vO + 2 * i), vr(vO + 2 * i + 1)))
    p('s_lshl_b32 %s, %s, 13' % (sr(sT0), sr(sW8)))
    p('s_add_u32 %s, %s, %s' % (sr(sT0), sr(sT0), sr(sR + 3)))
    p('v_add_u32 %s, %s, %s' % (vr(vA), sr(sT0), vr(vC)))
    p('s_waitcnt vmcnt(0) lgkmcnt(0)')
    p('s_barrier')
    p.ext(stamp('e1'))
    for i in range(8):
        p('ds_write_b128 %s, %s offset:%d' % (vr(vA), vr(vS[0] + 4 * i, 4), i * 1024))
    if role == 'X':
        for i in range(8):
            p('ds_read_b128 %s, %s offset:%d' % (vr(vO + 4 * i, 4), vr(vT[0]), i * 1024))
        p('ds_read_b128 %s, %s' % (vr(vO + 32, 4), vr(vT[1])))
        p('s_waitcnt lgkmcnt(0)')
        ym, yl = vO + 32, vO + 33
        p('v_min_f32 %s, %s, %s' % (vr(vMx), vr(vNMr), vr(ym)))
        p('v_sub_f32 %s, %s, %s' % (vr(vA), vr(vMx), vr(vNMr)))
        p('v_sub_f32 %s, %s, %s' % (vr(vB), vr(vMx), vr(ym)))
        p('v_exp_f32 %s, %s' % (vr(vA), vr(vA)))
        p('v_exp_f32 %s, %s' % (vr(vB), vr(vB)))
        p('s_nop 0')
        p('v_mul_f32 %s, %s, %s' % (vr(vLr), vr(vLr), vr(vA)))
        p('v_fmac_f32 %s, %s, %s' % (vr(vLr), vr(yl), vr(vB)))
        p('v_rcp_f32 %s, %s' % (vr(vLr), vr(vLr)))
        p('s_nop 0')
        p('v_mul_f32 %s, %s, %s' % (vr(vA), vr(vA), vr(vLr)))
        p('v_mul_f32 %s, %s, %s' % (vr(vB), vr(vB), vr(vLr)))
        for i in range(32):
            p('v_mul_f32 %s, %s, %s' % (vr(vOr + i), vr(vOr + i), vr(vA)))
            p('v_fmac_f32 %s, %s, %s' % (vr(vOr + i), vr(vO + i), vr(vB)))
        for i in range(16):
            p('v_cvt_pk_bf16_f32 %s, %s, %s' % (vr(vO + 40 + i), vr(vOr + 2 * i), vr(vOr + 2 * i + 1)))
        p('s_lshl_b32 %s, %s, 12' % (sr(sT0), sr(sE)))
        p('s_add_u32 %s, %s, %s' % (sr(sT0), sr(sT0), sr(sR + 2)))
        p('v_add_u32 %s, %s, %s' % (vr(vT[0]), sr(sT0), vr(vC)))
        for jt in range(4):
            p('ds_write_b128 %s, %s offset:%d' % (vr(vT[0]), vr(vO + 40 + 4 * jt, 4), 20480 + jt * 1024))
    L = vLane
    ta, tb, tc = 1 + 100, 2 + 100, 3 + 100
    p('v_bfe_u32 %s, %s, 2, 2' % (vr(ta), vr(L)))
    p('v_lshrrev_b32 %s, 5, %s' % (vr(tb), vr(L)))
    p('v_lshl_add_u32 %s, %s, 2, %s' % (vr(tb), vr(tb), vr(ta)))
    p('v_lshlrev_b32 %s, 7, %s' % (vr(tb), vr(tb)))
    p('v_lshrrev_b32 %s, 1, %s' % (vr(ta), vr(ta)))
    p('v_lshlrev_b32 %s, 6, %s' % (vr(ta), vr(ta)))
    p('v_bfe_u32 %s, %s, 1, 1' % (vr(tc), vr(L)))
    p('v_lshl_add_u32 %s, %s, 4, %s' % (vr(ta), vr(tc), vr(ta)))
    p('v_and_b32 %s, 1, %s' % (vr(tc), vr(L)))
    p('v_lshl_add_u32 %s, %s, 3, %s' % (vr(ta), vr(tc), vr(ta)))
    p('v_bfe_u32 %s, %s, 4, 1' % (vr(tc), vr(L)))
    p('v_lshl_add_u32 %s, %s, 5, %s' % (vr(tb), vr(tc), vr(tb)))
    p('v_add_u32 %s, %s, %s' % (vr(tb), vr(tb), vr(ta)))
    p('s_lshl_b32 %s, %s, 6' % (sr(sT0), sr(sE)))
    p('v_xor_b32 %s, %s, %s' % (vr(tRm), sr(sT0), vr(tb)))
    if not heavy:
        p('s_and_b32 %s, %s, 1' % (sr(sT1), sr(sW8)))
        p('v_bfe_u32 %s, %s, 2, 3' % (vr(tb), vr(L)))
        p('v_lshlrev_b32 %s, 7, %s' % (vr(tb), vr(tb)))
        p('v_lshrrev_b32 %s, 5, %s' % (vr(tc), vr(L)))
        p('v_lshlrev_b32 %s, 10, %s' % (vr(tc), vr(tc)))
        p('v_add3_u32 %s, %s, %s, %s' % (vr(tb), vr(tb), vr(tc), vr(ta)))
        p('v_xor_b32 %s, %s, %s' % (vr(tb), sr(sT0), vr(tb)))
        p('s_lshl_b32 %s, %s, 5' % (sr(sT2), sr(sT1)))
        p('v_add_u32 %s, %s, %s' % (vr(tRr), sr(sT2), vr(tb)))
        p('s_lshl_b32 %s, %s, 10' % (sr(sT0), sr(sE)))
        p('s_lshl_b32 %s, %s, 3' % (sr(sT1), sr(sT1)))
        p('s_add_u32 %s, %s, %s' % (sr(sT0), sr(sT0), sr(sT1)))
        p('s_add_u32 %s, %s, 147456' % (sr(sT0), sr(sT0)))
        p('v_add_u32 %s, %s, %s' % (vr(tPr), sr(sT0), vr(vC)))
    p('s_lshl_b32 %s, %s, 13' % (sr(sT0), sr(sE)))
    p('s_lshl_b32 %s, %s, 11' % (sr(sT1), sr(sWv)))
    p('s_add_u32 %s, %s, %s' % (sr(sT0), sr(sT0), sr(sT1)))
    p('v_add_u32 %s, %s, %s' % (vr(tPm), sr(sT0), vr(vC)))
    p('s_lshl_b32 %s, %s, 13' % (sr(sT0), sr(sWv)))
    p('s_add_u32 %s, %s, %s' % (sr(sT0), sr(sT0), sr(sR + 3)))
    p('v_add_u32 %s, %s, %s' % (vr(vA), sr(sT0), vr(vC)))
    p('v_add_u32 %s, %s, %s' % (vr(vB), sr(sR + 2), vr(vC)))
    p('s_waitcnt lgkmcnt(0)')
    p('s_barrier')
    for i in range(16):
        p('ds_read_b128 %s, %s offset:%d' % (vr(tOB + 4 * i, 4), vr(vA), (i // 8) * 32768 + (i % 8) * 1024))
        if i == 7:
            p('s_waitcnt lgkmcnt(0)')
    p('s_waitcnt lgkmcnt(0)')
    if not heavy:
        for i in range(8):
            p('ds_read_b128 %s, %s offset:%d' % (vr(tRB + 4 * i, 4), vr(vB), 20480 + i * 1024))
    if role != 'Y':
        p('s_branch OUTP_%s' % ('H' if heavy else 'L'))


def outproj(p, heavy):
    p.label('OUTP_%s' % ('H' if heavy else 'L'))
    p('s_setprio 0')
    NS = 9
    slots = []
    first_of = {}
    for st in range(NS):
        A = tAcc[st & 1]
        RA = tRac[st & 1]
        first_of[st] = len(slots)
        for kk in range(16):
            def mk(f, kk=kk, A=A):
                c = '0' if kk == 0 else vr(A, 16)
                mf = 'v_mfma_f32_32x32x16_bf16 %s, %s, %s, %s' % (vr(A, 16), vr(f, 4), vr(tOB + 4 * kk, 4), c)
                rd = ['ds_read_b64_tr_b16 %s, %s offset:%d' % (vr(f + 2 * pp, 2), vr(tCm), (2 * kk + pp) * 1024) for pp in range(2)]
                return mf, rd
            slots.append((st, 'big', mk))
            if (kk & 1) and not heavy:
                mm = kk >> 1
                def mk(f, mm=mm, RA=RA):
                    c = '0' if mm == 0 else vr(RA, 4)
                    mf = 'v_mfma_f32_16x16x32_bf16 %s, %s, %s, %s' % (vr(RA, 4), vr(f, 4), vr(tRB + 4 * mm, 4), c)
                    rd = ['ds_read_b64_tr_b16 %s, %s offset:%d' % (vr(f + 2 * pp, 2), vr(tCr), (4 * mm + 2 * pp) * 1024) for pp in range(2)]
                    return mf, rd
                slots.append((st, 'small', mk))
    n = len(slots)
    made = []
    for k, (st, cls, mk) in enumerate(slots):
        mf, rd = mk(tF + 4 * (k % 8))
        made.append((st, cls, mf, rd, ['o%d_%d' % (k, i) for i in range(len(rd))]))
    items = []
    vmq = []
    nread = 0
    opened = -1

    def emit_reads(upto):
        nonlocal nread
        while nread <= upto and nread < n and made[nread][0] <= opened:
            for i, t in zip(made[nread][4], made[nread][3]):
                items.append(('R', i, t))
            nread += 1

    def vm(lines, tag):
        for t in lines:
            items.append(t)
            if t.startswith('buffer_'):
                vmq.append(tag)

    pend = []

    def open_stage(st, k):
        nonlocal opened
        w = 's_waitcnt lgkmcnt(0)'
        if st >= 2:
            last = max(i for i, t in enumerate(vmq) if t == ('st', st))
            w = 's_waitcnt vmcnt(%d) lgkmcnt(0)' % (len(vmq) - 1 - last)
        items.append('v_add_u32 %s, %s, %s' % (vr(tCm), sr(sR + st % 5), vr(tRm)))
        if not heavy:
            items.append('v_add_u32 %s, %s, %s' % (vr(tCr), sr(sR + st % 5), vr(tRr)))
        items.append(w)
        items.append('s_barrier')
        opened = st
        items.extend(stamp('s%d' % st))
        emit_reads(k + LOOK)
        if st == 0:
            for s2 in (2, 3, 4):
                pend.extend((g, ('st', s2)) for g in wo_stage_dma(s2))
        elif st + 4 < NS:
            pend.extend((g, ('st', st + 4)) for g in wo_stage_dma(st + 4))

    def stage_out(st):
        A, RA = tAcc[st & 1], tRac[st & 1]
        o = []
        for hh in range(2):
            b = A + 8 * hh
            o += [['v_cvt_pk_bf16_f32 %s, %s, %s' % (vr(b + j), vr(b + 2 * j), vr(b + 2 * j + 1)) for j in range(4)] +
                  ['s_mov_b32 %s, 0x%x' % (sr(sT1), st * 16384),
                   'buffer_store_dwordx4 %s, %s, %s, %s offen offset:%d sc1' % (vr(b, 4), vr(tPm), sr(sPt, 4), sr(sT1), hh * 1024)]]
        if not heavy:
            o += [['v_cvt_pk_bf16_f32 %s, %s, %s' % (vr(RA + j), vr(RA + 2 * j), vr(RA + 2 * j + 1)) for j in range(2)] +
                  ['s_mov_b32 %s, 0x%x' % (sr(sT1), st * 2048),
                   'buffer_store_dwordx2 %s, %s, %s, %s offen sc1' % (vr(RA, 2), vr(tPr), sr(sPt, 4), sr(sT1))]]
        return o

    open_stage(0, -1)
    BG = 3
    for k in range(n):
        st, cls, mf, rd, ids = made[k]
        if PAIRW and k % 2 == 0 and k + 1 < n and nread > k + 1:
            ids = ids + made[k + 1][4]
        items.append(('W', ids))
        items.append(mf)
        emit_reads(k + LOOK)
        if st + 1 < NS and k == first_of[st + 1] - 1 - BG:
            open_stage(st + 1, k)
        elif pend:
            g, tag = pend.pop(0)
            vm(g, tag)
        if st > 0 and k == first_of[st] + 1:
            pend.extend((g, 'out') for g in stage_out(st - 1))
    assert not pend
    for g in stage_out(NS - 1):
        vm(g, 'out')
    p.ext(resolve_waits(items, [[]]))
    p('s_branch SYNC')


def sync_reduce(p):
    p.label('SYNC')
    p.ext(stamp(7))
    p('s_waitcnt vmcnt(0)')
    p('s_barrier')
    p.ext(stamp(8))
    p('s_cmp_lg_u32 %s, 0' % sr(sW8))
    p('s_cbranch_scc1 SY_WAIT')
    p('s_mov_b32 %s, %s' % (sr(sG), sr(sDbg)))
    p('s_mov_b32 %s, %s' % (sr(sG + 1), sr(sDbg + 1)))
    p('s_mov_b32 %s, 256' % sr(sG + 2))
    p('s_mov_b32 %s, 0x20000' % sr(sG + 3))
    p('s_lshl_b32 %s, %s, 3' % (sr(sT0), sr(sTyp)))
    p('s_add_u32 %s, %s, %s' % (sr(sT0), sr(sT0), sr(sB)))
    p('s_lshl_b32 %s, %s, 4' % (sr(sT0), sr(sT0)))
    p('v_mov_b32 v1, %s' % sr(sT0))
    p('v_mov_b32 v2, 1')
    p('s_lshl_b32 %s, 1, %s' % (sr(sCv), sr(sHP)))
    p('s_mov_b64 exec, 1')
    p('buffer_atomic_add v2, v1, %s, 0 offen sc0 sc1' % sr(sG, 4))
    p('s_waitcnt vmcnt(0)')
    p('v_readfirstlane_b32 %s, v2' % sr(sT0))
    p('s_and_b32 %s, %s, 0xff' % (sr(sT1), sr(sT0)))
    p('s_cmp_eq_u32 %s, 15' % sr(sT1))
    p('s_cbranch_scc0 SY_POLL0')
    p('s_lshr_b32 %s, %s, 16' % (sr(sT0), sr(sT0)))
    p('s_or_b32 %s, %s, %s' % (sr(sCv), sr(sCv), sr(sT0)))
    p('s_mov_b64 exec, 0xffff')
    p('v_lshlrev_b32 v3, 8, %s' % vr(vLane))
    p('v_mov_b32 v2, 1')
    p('buffer_store_dword v2, v3, %s, 0 offen sc1' % sr(sFl, 4))
    p('s_mov_b64 exec, 1')
    p('s_branch SY_GO')
    p.label('SY_POLL0')
    p('s_mov_b32 %s, 40000' % sr(sCnt))
    p('s_lshl_b32 %s, %s, 8' % (sr(sT2), sr(sHP)))
    p('v_mov_b32 v3, 0')
    p.label('SY_POLL')
    p('buffer_load_dword v2, v3, %s, %s offen sc1' % (sr(sFl, 4), sr(sT2)))
    p('s_waitcnt vmcnt(0)')
    p('v_readfirstlane_b32 %s, v2' % sr(sT0))
    p('s_cmp_eq_u32 %s, 1' % sr(sT0))
    p('s_cbranch_scc1 SY_GO')
    p('s_sleep 2')
    p('s_sub_u32 %s, %s, 1' % (sr(sCnt), sr(sCnt)))
    p('s_cmp_lg_u32 %s, 0' % sr(sCnt))
    p('s_cbranch_scc1 SY_POLL')
    p('s_lshl_b32 %s, %s, 16' % (sr(sT0), sr(sCv)))
    p('v_mov_b32 v2, %s' % sr(sT0))
    p('buffer_atomic_or v2, v1, %s, 0 offen sc0 sc1' % sr(sG, 4))
    p('s_waitcnt vmcnt(0)')
    p('v_readfirstlane_b32 %s, v2' % sr(sT0))
    p('s_and_b32 %s, %s, 0xff' % (sr(sT1), sr(sT0)))
    p('s_cmp_eq_u32 %s, 16' % sr(sT1))
    p('s_cselect_b32 %s, %s, 0' % (sr(sCv), sr(sCv)))
    p.label('SY_GO')
    p('v_mov_b32 v1, 0')
    p('v_mov_b32 v2, %s' % sr(sCv))
    p('ds_write_b32 v1, v2')
    p('s_mov_b64 exec, -1')
    p('s_waitcnt lgkmcnt(0)')
    p.label('SY_WAIT')
    p('s_barrier')
    p('v_mov_b32 v1, 0')
    p('ds_read_b32 v2, v1')
    p('s_lshl_b32 %s, %s, 3' % (sr(sT0), sr(sTyp)))
    p('s_add_u32 %s, %s, %s' % (sr(sT0), sr(sT0), sr(sB)))
    p('s_mul_i32 %s, %s, %d' % (sr(sT0), sr(sT0), 16 * PART_B))
    p('s_add_u32 %s, %s, %s' % (sr(sG), sr(sWs), sr(sT0)))
    p('s_addc_u32 %s, %s, 0' % (sr(sG + 1), sr(sWs + 1)))
    p('s_mov_b32 %s, %d' % (sr(sG + 2), 16 * PART_B))
    p('s_mov_b32 %s, 0x20000' % sr(sG + 3))
    p('s_mul_i32 %s, %s, %d' % (sr(sT0), sr(sB), 144 * 2304))
    p('s_mul_i32 %s, %s, 1152' % (sr(sT1), sr(sTyp)))
    p('s_add_u32 %s, %s, %s' % (sr(sT0), sr(sT0), sr(sT1)))
    p('s_add_u32 %s, %s, %s' % (sr(sX), sr(sOut), sr(sT0)))
    p('s_addc_u32 %s, %s, 0' % (sr(sX + 1), sr(sOut + 1)))
    p('s_sub_u32 %s, %d, %s' % (sr(sX + 2), 144 * 2304, sr(sT1)))
    p('s_mov_b32 %s, 0x20000' % sr(sX + 3))
    p('s_waitcnt lgkmcnt(0)')
    p('v_readfirstlane_b32 %s, v2' % sr(sCv))
    p.ext(stamp(9))
    p.label('RED_LOOP')
    p('s_cmp_eq_u32 %s, 0' % sr(sCv))
    p('s_cbranch_scc1 RED_DONE')
    p('s_ff1_i32_b32 %s, %s' % (sr(sT0), sr(sCv)))
    p('s_bitset0_b32 %s, %s' % (sr(sCv), sr(sT0)))
    p('s_mul_i32 %s, %s, 648' % (sr(sT0), sr(sT0)))
    p('s_mul_i32 %s, %s, 81' % (sr(sT1), sr(sW8)))
    p('s_add_u32 %s, %s, %s' % (sr(sT0), sr(sT0), sr(sT1)))
    U = [128, 129]; VO = [130, 131]; A0 = [132, 134]; acc = [136, 144]; t = [152, 153, 154, 155, 156, 157]
    p('v_add_u32 %s, %s, %s' % (vr(U[0]), sr(sT0), vr(vLane)))
    p('v_add_u32 %s, 64, %s' % (vr(U[1]), vr(U[0])))
    p('v_lshlrev_b32 %s, 4, %s' % (vr(VO[0]), vr(U[0])))
    p('v_lshlrev_b32 %s, 4, %s' % (vr(VO[1]), vr(U[1])))
    p('v_mov_b32 %s, 0x7f000000' % vr(t[0]))
    p('v_cmp_gt_u32 vcc, 17, %s' % vr(vLane))
    p('v_cndmask_b32 %s, %s, %s, vcc' % (vr(VO[1]), vr(t[0]), vr(VO[1])))
    p('s_mov_b64 %s, vcc' % sr(sEx, 2))
    for u in range(2):
        for h in range(16):
            p('s_mov_b32 %s, %d' % (sr(sT1), h * PART_B))
            p('buffer_load_dwordx4 %s, %s, %s, %s offen sc1' % (vr(64 * u + 4 * h, 4), vr(VO[u]), sr(sG, 4), sr(sT1)))
    for u in range(2):
        f, ln, q, n0, d1, x = t
        p('v_lshrrev_b32 %s, 6, %s' % (vr(f), vr(U[u])))
        p('v_and_b32 %s, 63, %s' % (vr(ln), vr(U[u])))
        p('v_bfe_u32 %s, %s, 1, 2' % (vr(q), vr(f)))
        p('v_and_b32 %s, 31, %s' % (vr(x), vr(ln)))
        p('v_lshl_add_u32 %s, %s, 5, %s' % (vr(q), vr(q), vr(x)))
        p('v_lshrrev_b32 %s, 3, %s' % (vr(n0), vr(f)))
        p('v_lshlrev_b32 %s, 5, %s' % (vr(n0), vr(n0)))
        p('v_and_b32 %s, 1, %s' % (vr(x), vr(f)))
        p('v_lshl_add_u32 %s, %s, 4, %s' % (vr(n0), vr(x), vr(n0)))
        p('v_lshrrev_b32 %s, 5, %s' % (vr(x), vr(ln)))
        p('v_lshl_add_u32 %s, %s, 2, %s' % (vr(n0), vr(x), vr(n0)))
        p('v_mul_u32_u24 %s, 0x900, %s' % (vr(q), vr(q)))
        p('v_lshl_add_u32 %s, %s, 1, %s' % (vr(A0[u]), vr(n0), vr(q)))
        p('v_and_b32 %s, 15, %s' % (vr(q), vr(ln)))
        p('v_add_u32 %s, 0x80, %s' % (vr(q), vr(q)))
        p('v_mul_u32_u24 %s, 0x900, %s' % (vr(q), vr(q)))
        p('v_subrev_u32 %s, 0x90, %s' % (vr(n0), vr(f)))
        p('v_lshlrev_b32 %s, 5, %s' % (vr(n0), vr(n0)))
        p('v_lshrrev_b32 %s, 4, %s' % (vr(x), vr(ln)))
        p('v_lshl_add_u32 %s, %s, 2, %s' % (vr(n0), vr(x), vr(n0)))
        p('v_lshl_add_u32 %s, %s, 1, %s' % (vr(q), vr(n0), vr(q)))
        p('v_cmp_gt_u32 vcc, 0x90, %s' % vr(f))
        p('v_cndmask_b32 %s, %s, %s, vcc' % (vr(A0[u]), vr(q), vr(A0[u])))
        p('v_mov_b32 %s, 32' % vr(x))
        p('v_mov_b32 %s, 16' % vr(d1))
        p('v_cndmask_b32 %s, %s, %s, vcc' % (vr(d1), vr(x), vr(d1)))
        if u == 1:
            p('v_mov_b32 %s, 0x7f000000' % vr(x))
            p('v_cndmask_b32 %s, %s, %s, %s' % (vr(A0[u]), vr(x), vr(A0[u]), sr(sEx, 2)))
        p('v_add_u32 %s, %s, %s' % (vr(A0[u] + 1), vr(A0[u]), vr(d1)))
    p('s_mov_b32 %s, 0x3f80' % sr(sT1))
    p('s_mov_b32 %s, 0x3f800000' % sr(sT2))
    for u in range(2):
        for h in range(16):
            p('s_waitcnt vmcnt(%d)' % (31 - 16 * u - h + (2 if u == 1 else 0)))
            for j in range(4):
                src = 64 * u + 4 * h + j
                for hi, sel in ((0, sT1), (1, sT2)):
                    a = acc[u] + 2 * j + hi
                    p('v_dot2_f32_bf16 %s, %s, %s, %s' % (vr(a), vr(src), sr(sel), '0' if h == 0 else vr(a)))
        for j in range(4):
            p('v_cvt_pk_bf16_f32 %s, %s, %s' % (vr(acc[u] + j), vr(acc[u] + 2 * j), vr(acc[u] + 2 * j + 1)))
        p('buffer_store_dwordx2 %s, %s, %s, 0 offen' % (vr(acc[u], 2), vr(A0[u]), sr(sX, 4)))
        p('buffer_store_dwordx2 %s, %s, %s, 0 offen' % (vr(acc[u] + 2, 2), vr(A0[u] + 1), sr(sX, 4)))
    p('s_waitcnt vmcnt(0)')
    p('s_branch RED_LOOP')
    p.label('RED_DONE')
    p.ext(stamp(10))
    stamp_flush(p, 11)
    p.label('K_END')
    p('s_endpgm')


def kernel():
    p = P()
    p('s_cmp_ge_u32 s2, 256')
    p('s_cbranch_scc1 K_END')
    p('s_load_dwordx16 %s, s[0:1], 0x0' % sr(sKA, 16))
    p('s_load_dwordx4 %s, s[0:1], 0x40' % sr(sKA + 16, 4))
    p('s_load_dwordx4 %s, s[0:1], 0x50' % sr(sOut, 4))
    p('s_load_dwordx2 %s, s[0:1], 0x60' % sr(sWs, 2))
    if STAMP:
        p('s_memtime s[100:101]')
    L = vLane
    p('v_and_b32 %s, 63, v0' % vr(L))
    p('v_lshrrev_b32 v1, 6, v0')
    p('s_and_b32 %s, s2, 7' % sr(sT0))
    p('v_readfirstlane_b32 %s, v1' % sr(sW8))
    p('s_lshr_b32 %s, s2, 3' % sr(sT1))
    p('s_and_b32 %s, %s, 7' % (sr(sB), sr(sT1)))
    p('s_lshr_b32 %s, %s, 4' % (sr(sT2), sr(sT1)))
    p('s_lshl_b32 %s, %s, 1' % (sr(sT0), sr(sT0)))
    p('s_add_u32 %s, %s, %s' % (sr(sHP), sr(sT2), sr(sT0)))
    p('s_bfe_u32 %s, %s, 0x10003' % (sr(sTyp), sr(sT1)))
    p('s_lshr_b32 %s, %s, 2' % (sr(sE), sr(sW8)))
    p('s_and_b32 %s, %s, 3' % (sr(sWv), sr(sW8)))
    q4, r4, u, h, a_, c7, rd, tA, tB, tC, tV = range(1, 12)
    p('v_lshrrev_b32 %s, 4, %s' % (vr(q4), vr(L)))
    p('v_bfe_u32 %s, %s, 2, 2' % (vr(r4), vr(L)))
    p('v_and_b32 %s, 3, %s' % (vr(u), vr(L)))
    p('v_lshrrev_b32 %s, 5, %s' % (vr(h), vr(L)))
    p('v_bfe_u32 %s, %s, 4, 1' % (vr(a_), vr(L)))
    p('v_and_b32 %s, 7, %s' % (vr(c7), vr(L)))
    p('v_bfe_u32 %s, %s, 3, 2' % (vr(rd), vr(L)))
    p('v_lshlrev_b32 %s, 2, %s' % (vr(tA), vr(a_)))
    p('v_xor_b32 %s, %s, %s' % (vr(tA), vr(tA), vr(c7)))
    p('v_lshlrev_b32 %s, 4, %s' % (vr(tA), vr(tA)))
    p('v_lshl_add_u32 %s, %s, 7, %s' % (vr(tV), vr(h), vr(tA)))
    p('v_lshl_add_u32 %s, %s, 13, %s' % (vr(tA), vr(rd), vr(tV)))
    p('s_and_b32 %s, %s, 1' % (sr(sCnt), sr(sW8)))
    p('s_lshl_b32 %s, %s, 15' % (sr(sT0), sr(sCnt)))
    p('s_lshl_b32 %s, %s, 8' % (sr(sT1), sr(sE)))
    p('s_add_u32 %s, %s, %s' % (sr(sT0), sr(sT0), sr(sT1)))
    p('v_add_u32 %s, %s, %s' % (vr(voffW), sr(sT0), vr(tA)))
    p('s_sub_u32 %s, %s, 2' % (sr(sMx), sr(sW8)))
    p('v_lshrrev_b32 %s, 3, %s' % (vr(tC), vr(L)))
    p('v_mul_u32_u24 %s, 0x480, %s' % (vr(tC), vr(tC)))
    p('v_xor_b32 %s, %s, %s' % (vr(tB), vr(c7), vr(q4)))
    p('v_lshl_add_u32 %s, %s, 4, %s' % (vr(tA), vr(tB), vr(tC)))
    p('s_and_b32 %s, %s, 1' % (sr(sT0), sr(sW8)))
    p('s_lshl_b32 %s, %s, 2' % (sr(sT0), sr(sT0)))
    p('v_xor_b32 %s, %s, %s' % (vr(tA), sr(sT0), vr(tB)))
    p('v_lshl_add_u32 %s, %s, 4, %s' % (vr(tA), vr(tA), vr(tC)))
    p('s_mul_i32 %s, %s, 9216' % (sr(sT0), sr(sMx)))
    p('v_add_u32 %s, %s, %s' % (vr(voffX), sr(sT0), vr(tA)))
    p('s_lshl_b32 %s, %s, 2' % (sr(sT0), sr(sE)))
    p('v_xor_b32 %s, %s, %s' % (vr(tA), sr(sT0), vr(tB)))
    p('v_lshl_add_u32 %s, %s, 4, %s' % (vr(tA), vr(tA), vr(tC)))
    p('s_mul_i32 %s, %s, 9216' % (sr(sT0), sr(sE)))
    p('s_add_u32 %s, %s, %d' % (sr(sT0), sr(sT0), 128 * 1152))
    p('v_add_u32 %s, %s, %s' % (vr(voffX9), sr(sT0), vr(tA)))
    p('s_lshl_b32 %s, %s, 13' % (sr(sMw), sr(sE)))
    p('s_lshl_b32 %s, %s, 10' % (sr(sT0), sr(sCnt)))
    p('s_add_u32 %s, %s, %s' % (sr(sMw), sr(sMw), sr(sT0)))
    p('s_lshl_b32 %s, %s, 10' % (sr(sMx), sr(sMx)))
    p('s_lshl_b32 %s, %s, 10' % (sr(sQx), sr(sE)))
    p('s_add_u32 %s, %s, 0x4000' % (sr(sQx), sr(sQx)))
    p('s_lshl_b32 %s, %s, 5' % (sr(sT0), sr(sCnt)))
    p('s_mov_b32 %s, -1' % sr(sEx))
    p('s_mov_b32 %s, 0' % sr(sEx + 1))
    p('s_lshl_b64 %s, %s, %s' % (sr(sEx, 2), sr(sEx, 2), sr(sT0)))
    p('s_mul_i32 %s, s2, 5' % sr(sRot))
    p('s_lshr_b32 %s, s2, 5' % sr(sT0))
    p('s_add_u32 %s, %s, %s' % (sr(sRot), sr(sRot), sr(sT0)))
    p('s_lshl_b32 %s, %s, 4' % (sr(sT0), sr(sE)))
    p('s_mul_i32 %s, %s, %s' % (sr(sT0), sr(sT0), sr(sTyp)))
    p('s_add_u32 %s, %s, %s' % (sr(sRot), sr(sRot), sr(sT0)))
    p('s_and_b32 %s, %s, 31' % (sr(sRot), sr(sRot)))
    p('s_lshl_b32 %s, %s, 13' % (sr(sRot), sr(sRot)))
    p('s_waitcnt lgkmcnt(0)')
    p('s_cmp_eq_u32 %s, 0' % sr(sTyp))
    for i, srd in enumerate((sX, sK, sV, sW, sWo)):
        p('s_cselect_b64 %s, %s, %s' % (sr(srd, 2), sr(sKA + 2 * i, 2), sr(sKA + 10 + 2 * i, 2)))
    p('s_lshl_b32 %s, %s, 9' % (sr(sT0), sr(sHP)))
    p('s_add_u32 %s, %s, %s' % (sr(sW), sr(sW), sr(sT0)))
    p('s_addc_u32 %s, %s, 0' % (sr(sW + 1), sr(sW + 1)))
    p('s_sub_u32 %s, %d, %s' % (sr(sW + 2), 576 * 8192, sr(sT0)))
    p('s_mov_b32 %s, 0x20000' % sr(sW + 3))

    def w_groups(m0base, so):
        g = [[m0base, 's_nop 0', 'buffer_load_dwordx4 %s, %s, %s offen lds' % (vr(voffW), sr(sW, 4), sr(so))]]
        for i in range(1, 4):
            g.append(['s_add_u32 m0, m0, 0x800', 's_add_u32 %s, %s, 0x%x' % (sr(sT0), sr(so), i * 65536),
                      'buffer_load_dwordx4 %s, %s, %s offen lds' % (vr(voffW), sr(sW, 4), sr(sT0))])
        return g

    def x_groups(m0base, m0x9, so):
        g = [[m0base, 's_nop 0', 'buffer_load_dwordx4 %s, %s, %s offen lds' % (vr(voffX), sr(sX, 4), sr(so))]]
        for i in range(1, 4):
            g.append(['s_add_u32 m0, m0, 0x1000', 's_add_u32 %s, %s, 0x%x' % (sr(sT0), sr(so), i * 36864),
                      'buffer_load_dwordx4 %s, %s, %s offen lds' % (vr(voffX), sr(sX, 4), sr(sT0))])
        g.append([m0x9, 's_mov_b64 exec, %s' % sr(sEx, 2),
                  'buffer_load_dwordx4 %s, %s, %s offen lds' % (vr(voffX9), sr(sX, 4), sr(so)),
                  's_mov_b64 exec, -1'])
        return g

    def w_static(n):
        p('s_mov_b32 %s, 0x%x' % (sr(sT1), n * 262144))
        for g in w_groups('s_add_u32 m0, %s, 0x%x' % (sr(sMw), (n % 6 // 2) * SUP + (n & 1) * WBUF), sT1):
            p.ext(g)

    def x_static(T):
        buf = (T % 3) * SUP + 2 * WBUF
        p('s_mov_b32 %s, 0x%x' % (sr(sT1), T * 128))
        for g in x_groups('s_add_u32 m0, %s, 0x%x' % (sr(sMx), buf), 's_add_u32 m0, %s, 0x%x' % (sr(sQx), buf), sT1):
            p.ext(g)

    def w_dyn():
        return w_groups('s_add_u32 m0, %s, %s' % (sr(sMw), sr(sBufW)), sSoW)

    def x_dyn():
        return x_groups('s_add_u32 m0, %s, %s' % (sr(sMx), sr(sXW)), 's_add_u32 m0, %s, %s' % (sr(sQx), sr(sXW)), sSoX)

    def touch():
        return ['buffer_load_dword %s, %s, %s, %s offen' % (vr(vDum), vr(voffT), sr(sTc, 4), sr(sTo)),
                's_add_u32 %s, %s, %s' % (sr(sTo), sr(sTo), sr(sTs)),
                's_and_b32 %s, %s, 0x3ffff' % (sr(sTo), sr(sTo))]

    p('s_mul_i32 %s, %s, 165888' % (sr(sT0), sr(sB)))
    p('s_add_u32 %s, %s, %s' % (sr(sX), sr(sX), sr(sT0)))
    p('s_addc_u32 %s, %s, 0' % (sr(sX + 1), sr(sX + 1)))
    p('s_mov_b32 %s, 165888' % sr(sX + 2))
    p('s_mov_b32 %s, 0x20000' % sr(sX + 3))
    p('s_add_u32 %s, %s, 2' % (sr(sRole), sr(sW8)))
    p('s_and_b32 %s, %s, 7' % (sr(sRole), sr(sRole)))
    p('s_cmp_lt_u32 %s, 4' % sr(sRole))
    p('s_cbranch_scc1 INIT_H')
    w_static(0)
    w_static(1)
    x_static(0)
    w_static(2)
    w_static(3)
    x_static(1)
    w_static(4)
    p.label('INIT_H')
    p('s_lshl_b32 %s, %s, 4' % (sr(sT0), sr(sB)))
    p('s_add_u32 %s, %s, %s' % (sr(sT0), sr(sT0), sr(sHP)))
    p('s_lshl_b32 %s, %s, 1' % (sr(sT1), sr(sT0)))
    p('s_add_u32 %s, %s, %s' % (sr(sT1), sr(sT1), sr(sE)))
    p('s_cmp_eq_u32 %s, 0' % sr(sTyp))
    p('s_cselect_b32 %s, %s, %s' % (sr(sT0), sr(sT0), sr(sT1)))
    p('s_lshl_b32 %s, %s, 18' % (sr(sT0), sr(sT0)))
    for srd in (sK, sV):
        p('s_add_u32 %s, %s, %s' % (sr(srd), sr(srd), sr(sT0)))
        p('s_addc_u32 %s, %s, 0' % (sr(srd + 1), sr(srd + 1)))
        p('s_mov_b32 %s, 0x40000' % sr(srd + 2))
        p('s_mov_b32 %s, 0x20000' % sr(srd + 3))
    p('s_lshl_b32 %s, %s, 4' % (sr(sT0), sr(sB)))
    p('s_add_u32 %s, %s, %s' % (sr(sT0), sr(sT0), sr(sHP)))
    p('s_lshl_b32 %s, %s, 1' % (sr(sT0), sr(sT0)))
    p('s_add_u32 %s, %s, %s' % (sr(sT0), sr(sT0), sr(sE)))
    p('s_lshl_b32 %s, %s, 18' % (sr(sT0), sr(sT0)))
    p('s_cmp_eq_u32 %s, 0' % sr(sCnt))
    p('s_cselect_b64 %s, %s, %s' % (sr(sTc, 2), sr(sKA + 12, 2), sr(sKA + 14, 2)))
    p('s_cselect_b32 %s, 0x%x, 0x%x' % (sr(sTo), (TU0 + 1), TU0))
    p('s_add_u32 %s, %s, %s' % (sr(sTc), sr(sTc), sr(sT0)))
    p('s_addc_u32 %s, %s, 0' % (sr(sTc + 1), sr(sTc + 1)))
    p('s_cmp_eq_u32 %s, 0' % sr(sTyp))
    p('s_cselect_b32 %s, 0x40000, 0' % sr(sTc + 2))
    p('s_mov_b32 %s, 0x20000' % sr(sTc + 3))
    p('s_add_u32 %s, s2, 64' % sr(sT0))
    p('s_mul_i32 %s, %s, 5' % (sr(sT1), sr(sT0)))
    p('s_lshr_b32 %s, %s, 5' % (sr(sT0), sr(sT0)))
    p('s_add_u32 %s, %s, %s' % (sr(sT1), sr(sT1), sr(sT0)))
    p('s_lshl_b32 %s, %s, 4' % (sr(sT0), sr(sE)))
    p('s_add_u32 %s, %s, %s' % (sr(sT1), sr(sT1), sr(sT0)))
    p('s_add_u32 %s, %s, %s' % (sr(sTo), sr(sTo), sr(sT1)))
    p('s_and_b32 %s, %s, 31' % (sr(sTo), sr(sTo)))
    p('s_lshl_b32 %s, %s, 13' % (sr(sTo), sr(sTo)))
    p('s_mov_b32 %s, 0x%x' % (sr(sTs), 1 << TSB))
    p('v_lshlrev_b32 %s, %d, %s' % (vr(voffT), TSB - 6, vr(L)))
    p('v_mov_b32 v72, 0')
    p('s_cmp_lt_u32 %s, 4' % sr(sRole))
    p('s_cbranch_scc0 INIT_J')
    for i in range(opt('t0', 4) if TOUCH else 0):
        p.ext(touch())
    p.label('INIT_J')
    p('s_sub_u32 %s, %s, 2' % (sr(sMb), sr(sW8)))
    p('s_and_b32 %s, %s, 3' % (sr(sMb), sr(sMb)))
    p('s_cmp_eq_u32 %s, 0' % sr(sTyp))
    p('s_cselect_b32 %s, %s, %s' % (sr(sMb), sr(sMb), sr(sCnt)))
    p('s_lshl_b32 %s, %s, 10' % (sr(sMb), sr(sMb)))
    p('v_lshl_add_u32 %s, %s, 8, %s' % (vr(tA), vr(rd), vr(tV)))
    p('v_add_u32 %s, %s, %s' % (vr(voffV), sr(sMb), vr(tA)))
    p('s_lshr_b32 %s, %s, 9' % (sr(sT0), sr(sMb)))
    p('v_xor_b32 %s, %s, %s' % (vr(tA), vr(c7), vr(a_)))
    p('v_xor_b32 %s, %s, %s' % (vr(tA), sr(sT0), vr(tA)))
    p('v_lshlrev_b32 %s, 4, %s' % (vr(tA), vr(tA)))
    p('v_lshl_add_u32 %s, %s, 7, %s' % (vr(tA), vr(h), vr(tA)))
    p('v_lshl_add_u32 %s, %s, 8, %s' % (vr(tA), vr(rd), vr(tA)))
    p('v_add_u32 %s, %s, %s' % (vr(voffK), sr(sMb), vr(tA)))
    p('s_lshl_b32 %s, %s, 14' % (sr(sCur), sr(sE)))
    p('s_mul_i32 %s, %s, %s' % (sr(sCur), sr(sCur), sr(sTyp)))
    p('v_bfe_u32 %s, %s, 1, 1' % (vr(tC), vr(L)))
    p('v_lshl_add_u32 %s, %s, 1, %s' % (vr(tV), vr(r4), vr(tC)))
    p('v_bfe_u32 %s, %s, 2, 3' % (vr(tA), vr(L)))
    p('v_lshlrev_b32 %s, 10, %s' % (vr(tA), vr(tA)))
    p('v_lshl_add_u32 %s, %s, 7, %s' % (vr(tA), vr(u), vr(tA)))
    p('v_xor_b32 %s, %s, %s' % (vr(tB), vr(h), vr(tV)))
    p('v_lshl_add_u32 %s, %s, 4, %s' % (vr(tA), vr(tB), vr(tA)))
    p('v_add_u32 %s, %s, %s' % (vr(vKa[0]), sr(sCur), vr(tA)))
    for i in range(1, 4):
        p('v_xor_b32 %s, 0x%x, %s' % (vr(vKa[i]), 32 * i, vr(vKa[0])))
    p('v_xor_b32 %s, %s, %s' % (vr(tB), vr(q4), vr(tV)))
    p('v_lshlrev_b32 %s, 4, %s' % (vr(tB), vr(tB)))
    p('v_lshl_add_u32 %s, %s, 7, %s' % (vr(tB), vr(u), vr(tB)))
    p('v_lshl_add_u32 %s, %s, 10, %s' % (vr(bKr), vr(r4), vr(tB)))
    tR = c7
    p('v_lshrrev_b32 %s, 1, %s' % (vr(tB), vr(r4)))
    p('v_lshlrev_b32 %s, 6, %s' % (vr(tB), vr(tB)))
    p('v_lshl_add_u32 %s, %s, 7, %s' % (vr(tR), vr(r4), vr(tB)))
    c0 = rd
    p('v_and_b32 %s, 1, %s' % (vr(c0), vr(L)))
    p('v_lshl_add_u32 %s, %s, 4, %s' % (vr(tA), vr(tC), vr(tR)))
    p('v_lshl_add_u32 %s, %s, 3, %s' % (vr(tA), vr(c0), vr(tA)))
    p('v_add_u32 %s, 0x2000, %s' % (vr(tA), vr(tA)))
    p('v_lshl_add_u32 %s, %s, 10, %s' % (vr(bVr), vr(q4), vr(tA)))
    p('v_lshl_add_u32 %s, %s, 5, %s' % (vr(tA), vr(a_), vr(tA)))
    p('v_lshl_add_u32 %s, %s, 10, %s' % (vr(tA), vr(h), vr(tA)))
    p('v_add_u32 %s, %s, %s' % (vr(vVa[0]), sr(sCur), vr(tA)))
    p('v_xor_b32 %s, 64, %s' % (vr(vVa[1]), vr(vVa[0])))
    vWm, vWr, vXm, vXr = [qBase + i for i in range(4)]
    p('v_lshl_add_u32 %s, %s, 4, %s' % (vr(tA), vr(c0), vr(tR)))
    p('v_lshl_add_u32 %s, %s, 3, %s' % (vr(tA), vr(tC), vr(tA)))
    p('v_lshl_add_u32 %s, %s, 5, %s' % (vr(tA), vr(a_), vr(tA)))
    p('v_lshl_add_u32 %s, %s, 11, %s' % (vr(tA), vr(h), vr(tA)))
    p('s_lshl_b32 %s, %s, 13' % (sr(sT0), sr(sE)))
    p('v_add_u32 %s, %s, %s' % (vr(vWm), sr(sT0), vr(tA)))
    p('v_lshl_add_u32 %s, %s, 4, %s' % (vr(tA), vr(u), vr(tR)))
    p('s_and_b32 %s, %s, 1' % (sr(sT1), sr(sWv)))
    p('s_lshl_b32 %s, %s, 6' % (sr(sT1), sr(sT1)))
    p('v_xor_b32 %s, %s, %s' % (vr(tA), sr(sT1), vr(tA)))
    p('v_lshl_add_u32 %s, %s, 11, %s' % (vr(tA), vr(q4), vr(tA)))
    p('s_lshr_b32 %s, %s, 1' % (sr(sT1), sr(sWv)))
    p('s_lshl_b32 %s, %s, 9' % (sr(sT1), sr(sT1)))
    p('s_add_u32 %s, %s, %s' % (sr(sT1), sr(sT1), sr(sT0)))
    p('v_add_u32 %s, %s, %s' % (vr(vWr), sr(sT1), vr(tA)))
    p('v_bfe_u32 %s, %s, 1, 3' % (vr(tC), vr(L)))
    p('v_and_b32 %s, 31, %s' % (vr(tA), vr(L)))
    p('v_lshlrev_b32 %s, 7, %s' % (vr(tA), vr(tA)))
    p('v_xor_b32 %s, %s, %s' % (vr(tB), vr(h), vr(tC)))
    p('v_lshl_add_u32 %s, %s, 4, %s' % (vr(tA), vr(tB), vr(tA)))
    p('s_lshl_b32 %s, %s, 12' % (sr(sT1), sr(sWv)))
    p('s_add_u32 %s, %s, 0x8000' % (sr(sT1), sr(sT1)))
    p('v_add_u32 %s, %s, %s' % (vr(vXm), sr(sT1), vr(tA)))
    p('v_and_b32 %s, 15, %s' % (vr(tA), vr(L)))
    p('v_lshlrev_b32 %s, 7, %s' % (vr(tA), vr(tA)))
    p('v_xor_b32 %s, %s, %s' % (vr(tB), vr(q4), vr(tC)))
    p('v_lshl_add_u32 %s, %s, 4, %s' % (vr(tA), vr(tB), vr(tA)))
    p('v_add_u32 %s, 0xc000, %s' % (vr(vXr), vr(tA)))
    p('s_mov_b32 %s, %s' % (sr(sScale), f32(math.log2(math.e) / math.sqrt(128.0))))
    p('s_mov_b32 %s, %s' % (sr(sThr), f32(THR)))
    p('s_mul_i32 %s, %s, 294912' % (sr(sT0), sr(sHP)))
    p('s_add_u32 %s, %s, %s' % (sr(sWo), sr(sWo), sr(sT0)))
    p('s_addc_u32 %s, %s, 0' % (sr(sWo + 1), sr(sWo + 1)))
    p('s_mov_b32 %s, 294912' % sr(sWo + 2))
    p('s_mov_b32 %s, 0x20000' % sr(sWo + 3))
    p('s_lshl_b32 %s, %s, 3' % (sr(sT0), sr(sTyp)))
    p('s_add_u32 %s, %s, %s' % (sr(sT0), sr(sT0), sr(sB)))
    p('s_lshl_b32 %s, %s, 4' % (sr(sT0), sr(sT0)))
    p('s_add_u32 %s, %s, %s' % (sr(sT0), sr(sT0), sr(sHP)))
    p('s_mul_i32 %s, %s, %d' % (sr(sT0), sr(sT0), PART_B))
    p('s_add_u32 %s, %s, %s' % (sr(sPt), sr(sWs), sr(sT0)))
    p('s_addc_u32 %s, %s, 0' % (sr(sPt + 1), sr(sWs + 1)))
    p('s_mov_b32 %s, %d' % (sr(sPt + 2), PART_B))
    p('s_mov_b32 %s, 0x20000' % sr(sPt + 3))
    p('s_lshl_b32 %s, %s, 3' % (sr(sT0), sr(sTyp)))
    p('s_add_u32 %s, %s, %s' % (sr(sT0), sr(sT0), sr(sB)))
    p('s_lshl_b32 %s, %s, 12' % (sr(sT0), sr(sT0)))
    p('s_add_u32 %s, %s, 0x%x' % (sr(sT0), sr(sT0), FLAG_OFF))
    p('s_add_u32 %s, %s, %s' % (sr(sFl), sr(sWs), sr(sT0)))
    p('s_addc_u32 %s, %s, 0' % (sr(sFl + 1), sr(sWs + 1)))
    p('s_mov_b32 %s, 4096' % sr(sFl + 2))
    p('s_mov_b32 %s, 0x20000' % sr(sFl + 3))
    p('s_cmp_lg_u32 %s, 0' % sr(sW8))
    p('s_cbranch_scc1 NOCLR')
    p('s_lshl_b32 %s, %s, 8' % (sr(sT0), sr(sHP)))
    p('v_mov_b32 %s, 0' % vr(tA))
    p('s_mov_b64 exec, 1')
    p('buffer_store_dword %s, %s, %s, %s offen sc1' % (vr(tA), vr(tA), sr(sFl, 4), sr(sT0)))
    p('s_mov_b64 exec, -1')
    p.label('NOCLR')
    p('s_cmp_eq_u32 %s, 0' % sr(sTyp))
    for i, (ra, rb) in enumerate(zip([2, 3, 4, 0, 1], [3, 4, 0, 1, 2])):
        p('s_mov_b32 %s, 0x%x' % (sr(sT0), ra * 32768))
        p('s_cselect_b32 %s, %s, 0x%x' % (sr(sR + i), sr(sT0), rb * 32768))
    for i in range(8):
        p('v_mov_b32 %s, 0' % vr(64 + i))
    p('s_mov_b32 %s, 0' % sr(sBufR))
    p('s_mov_b32 %s, 0x%x' % (sr(sBufW), 2 * SUP + WBUF))
    p('s_mov_b32 %s, 0x%x' % (sr(sSoW), 5 * 262144))
    p('s_mov_b32 %s, 0x%x' % (sr(sXW), 2 * SUP + 2 * WBUF))
    p('s_mov_b32 %s, 0x%x' % (sr(sSoX), 2 * 128))
    p('s_mov_b32 %s, 6' % sr(sCnt))

    cW0, cW1, cWr, cX0, cX1, cXr = [qCur + i for i in range(6)]

    def rd_set(ks):
        S = qSet[ks]
        o = []
        for jt in range(4):
            for pp in range(2):
                o.append('ds_read_b64_tr_b16 %s, %s offset:%d' % (vr(S + 4 * jt + 2 * pp, 2), vr(cW1 if jt & 1 else cW0), ks * 4096 + pp * 1024 + (jt >> 1) * 512))
        o.append('ds_read_b128 %s, %s' % (vr(S + 16, 4), vr(cX0 if ks == 0 else cX1)))
        return o

    def rd_rem():
        o = []
        for Ts in range(2):
            for pp in range(2):
                o.append('ds_read_b64_tr_b16 %s, %s offset:%d' % (vr(qRem + 4 * Ts + 2 * pp, 2), vr(cWr), pp * 1024 + 8 * Ts))
        o.append('ds_read_b128 %s, %s' % (vr(qRem + 8, 4), vr(cXr)))
        return o

    def mf_set(ks, init):
        S = qSet[ks]
        return ['v_mfma_f32_32x32x16_bf16 %s, %s, %s, %s' % (vr(16 * jt, 16), vr(S + 4 * jt, 4), vr(S + 16, 4), '0' if init else vr(16 * jt, 16)) for jt in range(4)]

    def mf_rem():
        return ['v_mfma_f32_16x16x32_bf16 %s, %s, %s, %s' % (vr(64 + 4 * Ts, 4), vr(qRem + 4 * Ts, 4), vr(qRem + 8, 4), vr(64 + 4 * Ts, 4)) for Ts in range(2)]

    def sub(cp, first, light, parts=None, nv=17, tailmode=False):
        if cp == 0:
            p('v_add_u32 %s, %s, %s' % (vr(cW0), sr(sBufR), vr(vWm)))
            p('v_add_u32 %s, %s, %s' % (vr(cWr), sr(sBufR), vr(vWr)))
            p('v_add_u32 %s, %s, %s' % (vr(cX0), sr(sBufR), vr(vXm)))
            p('v_add_u32 %s, %s, %s' % (vr(cXr), sr(sBufR), vr(vXr)))
        else:
            p('v_add_u32 %s, 0x4000, %s' % (vr(cW0), vr(cW0)))
            p('v_add_u32 %s, 0x4000, %s' % (vr(cWr), vr(cWr)))
            p('v_xor_b32 %s, 64, %s' % (vr(cX0), vr(cX0)))
            p('v_xor_b32 %s, 64, %s' % (vr(cXr), vr(cXr)))
        p('v_xor_b32 %s, 64, %s' % (vr(cW1), vr(cW0)))
        p('v_xor_b32 %s, 32, %s' % (vr(cX1), vr(cX0)))
        p('s_waitcnt vmcnt(%d) lgkmcnt(0)' % nv if (cp == 0 and light) else 's_waitcnt lgkmcnt(0)')
        p('s_barrier')
        if first:
            p.ext(stamp(1))
        p.ext(rd_set(0))
        if parts is None:
            parts = (w_dyn() + (x_dyn() if cp == 0 else [])) if light else ([touch()] if TOUCH else [])
        parts = list(parts)
        if not first:
            for i, m in enumerate(mf_set(1, False) + mf_rem()):
                p(m)
                if parts:
                    p.ext(parts.pop(0))
        else:
            for g in parts[:5]:
                p.ext(g)
            parts = parts[5:]
        r1 = rd_set(1) + rd_rem()
        p.ext(r1[:6])
        p('s_waitcnt lgkmcnt(6)')
        rest = r1[6:]
        upd = []
        if light and not tailmode:
            upd += ['s_add_u32 %s, %s, 0x%x' % (sr(sBufW), sr(sBufR), cp * WBUF),
                    's_add_u32 %s, %s, 0x40000' % (sr(sSoW), sr(sSoW)),
                    's_cmp_ge_u32 %s, 0x%x' % (sr(sSoW), 18 * 262144),
                    's_cselect_b32 %s, 0x%x, %s' % (sr(sBufW), LDS_DROP, sr(sBufW))]
            if cp == 1:
                upd += ['s_add_u32 %s, %s, 0x%x' % (sr(sXW), sr(sBufR), 2 * WBUF),
                        's_add_u32 %s, %s, 128' % (sr(sSoX), sr(sSoX))]
        if cp == 1:
            upd += ['s_add_u32 %s, %s, 0x%x' % (sr(sBufR), sr(sBufR), SUP),
                    's_cmp_ge_u32 %s, 0x%x' % (sr(sBufR), 3 * SUP),
                    's_cselect_b32 %s, 0, %s' % (sr(sBufR), sr(sBufR))]
        for i, m in enumerate(mf_set(0, first)):
            p(m)
            p.ext(rest[3 * i:3 * i + 3])
            if parts:
                p.ext(parts.pop(0))
        for g in parts:
            p.ext(g)
        p.ext(upd)

    def fill_units(typ, units):
        at = Attn(typ, 'L')
        fix = lambda g: [t.replace(vr(voffK1) + ',', vr(72) + ',') for t in g]
        out = []
        for un in units:
            d = [fix(g) for g in at.dma_singles()]
            if un == -1:
                d = d[:len(d) // 2]
                d[0] = ['v_xor_b32 %s, 64, %s' % (vr(72), vr(voffK)), 's_mov_b32 %s, %s' % (sr(sSk0), sr(sRot)),
                        's_mov_b32 %s, %s' % (sr(sWr), sr(sCur)), 's_mov_b32 %s, -1' % sr(sCv)] + d[0]
            else:
                d[0] = at.unit_adv() + ['s_add_u32 %s, %s, 0x%x' % (sr(sWr), sr(sCur), (un + 1) * at.stride)] + d[0]
            out += d
        return out

    p('s_cmp_lt_u32 %s, 4' % sr(sRole))
    p('s_cbranch_scc1 QH')
    for light in (True, False):
        if not light:
            p.label('QH')
        sub(0, True, light)
        sub(1, False, light)
        p.label('QLOOP%d' % light)
        sub(0, False, light)
        sub(1, False, light)
        p('s_sub_u32 %s, %s, 1' % (sr(sCnt), sr(sCnt)))
        p('s_cmp_lg_u32 %s, 0' % sr(sCnt))
        p('s_cbranch_scc1 QLOOP%d' % light)
        if light:
            p('s_cmp_eq_u32 %s, 0' % sr(sTyp))
            p('s_cbranch_scc0 QTB')
            for typ in (0, 1):
                if typ:
                    p.label('QTB')
                plan = [[-1, 0, 1], [2], [], []] if typ == 0 else [[-1], [0], [1], []]
                if typ == 0:
                    plan = [[u for u in pl if u < DDA] for pl in plan]
                f = [fill_units(typ, pl) for pl in plan]
                sub(0, False, True, parts=f[0], nv=17, tailmode=True)
                sub(1, False, True, parts=f[1], tailmode=True)
                sub(0, False, True, parts=f[2], nv=4 + len(f[0]) + len(f[1]), tailmode=True)
                sub(1, False, True, parts=f[3], tailmode=True)
                p('s_branch QX')
        else:
            for T in range(2):
                sub(0, False, False, parts=[])
                sub(1, False, False, parts=[])
    p.label('QX')
    p('s_waitcnt lgkmcnt(0)')
    p('s_barrier')
    p.ext(stamp(2))
    p('s_add_u32 %s, %s, %s' % (sr(sT1), sr(sCur), sr(sMb)))
    p('s_lshl_b32 %s, %s, 12' % (sr(sMx), sr(sW8)))
    p('s_lshl_b32 %s, %s, 12' % (sr(sT0), sr(sE)))
    p('s_lshl_b32 %s, %s, 14' % (sr(sT2), sr(sE)))
    p('s_cmp_eq_u32 %s, 0' % sr(sTyp))
    p('s_cselect_b32 %s, %s, %s' % (sr(sQx), sr(sT0), sr(sT2)))
    p('s_add_u32 %s, %s, 0x2000' % (sr(sQx), sr(sQx)))

    def rot_off(dst, off):
        return ['s_add_u32 %s, %s, 0x%x' % (sr(dst), sr(sRot), off), 's_and_b32 %s, %s, 0x3ffff' % (sr(dst), sr(dst))]

    def packq(nv):
        for i in range(36):
            p('v_pk_mul_f32 %s, %s, %s' % (vr(2 * i, 2), vr(2 * i, 2), sr(sScale, 2)))
        for i in range(32):
            p('v_cvt_pk_bf16_f32 %s, %s, %s' % (vr(vQ + i), vr(2 * i), vr(2 * i + 1)))
        for i in range(4):
            p('v_cvt_pk_bf16_f32 %s, %s, %s' % (vr(vQr + i), vr(64 + 2 * i), vr(64 + 2 * i + 1)))
        p('v_lshlrev_b32 %s, 4, %s' % (vr(vA), vr(vLane)))
        p('s_lshl_b32 %s, %s, 10' % (sr(sT0), sr(sWv)))
        p('s_add_u32 %s, %s, %s' % (sr(sT0), sr(sT0), sr(sQx)))
        p('v_add_u32 %s, %s, %s' % (vr(vA), sr(sT0), vr(vA)))
        p('ds_write_b128 %s, %s' % (vr(vA), vr(vQr, 4)))
        p('s_waitcnt vmcnt(%d) lgkmcnt(0)' % nv)
        p('s_barrier')

    def dispatch(T):
        p('s_add_u32 %s, %s, 2' % (sr(sT0), sr(sW8)))
        p('s_and_b32 %s, %s, 7' % (sr(sT0), sr(sT0)))
        p('s_cmp_ge_u32 %s, 4' % sr(sT0))
        p('s_cbranch_scc1 ATT_%sL' % T)
        p('s_bitcmp1_b32 %s, 0' % sr(sW8))
        p('s_cbranch_scc1 ATT_%sY' % T)

    for m in mf_set(1, False) + mf_rem():
        p(m)
    p('s_mov_b32 %s, %s' % (sr(sCnt), sr(sRole)))
    p('s_mov_b32 %s, %s' % (sr(sScale + 1), sr(sScale)))
    p('s_cmp_eq_u32 %s, 0' % sr(sTyp))
    p('s_cbranch_scc0 FILL_B')
    for typ, T in ((0, 'A'), (1, 'B')):
        if typ:
            p.label('FILL_B')
        at = Attn(typ, 'L')
        p('s_cmp_lt_u32 %s, 4' % sr(sCnt))
        p('s_cbranch_scc1 NOFILL_%s' % T)
        for g in fill_units(typ, range(3 if typ == 0 else 2, at.DD)):
            p.ext(g)
        p.label('NOFILL_%s' % T)
        packq(at.DD * at.nd)
        dispatch(T)
        for role in 'XLY':
            Attn(typ, role).emit(p)
    tail(p, 'L')
    tail(p, 'X')
    tail(p, 'Y')
    outproj(p, True)
    outproj(p, False)
    sync_reduce(p)
    return p.L


def desc(name, vg, sg=102):
    return """.amdhsa_kernel %s
  .amdhsa_next_free_vgpr %d
  .amdhsa_next_free_sgpr %d
  .amdhsa_accum_offset %d
  .amdhsa_group_segment_fixed_size 0
  .amdhsa_kernarg_size 104
  .amdhsa_user_sgpr_count 2
  .amdhsa_user_sgpr_kernarg_segment_ptr 1
  .amdhsa_system_sgpr_workgroup_id_x 1
.end_amdhsa_kernel
""" % (name, vg, sg, (vg + 3) // 4 * 4)


def main():
    out_path = opt('o', 'cdna_kernels/%s.s' % NAME)
    kn = NAME + '_kernel'
    hdr = open('cdna_kernels/%s.s.ref' % NAME).read().split('; Override launch')[0]
    out = [hdr.rstrip('\n')]
    if '--list' in ARGS:
        out.append('; @launch kernel=%s grid=(256,1,1) block=(512,1,1) lds=%d' % (kn, LDS_TOTAL))
    else:
        out.append('; @launch grid=(256,1,1) block=(512,1,1) lds=%d' % LDS_TOTAL)
    out.append('.amdgcn_target "amdgcn-amd-amdhsa--gfx950"')
    out.append('.text')
    L2, tot = chk.fix_hazards(kernel(), verbose='-v' in ARGS)
    errs = [e for e in chk.check_waits(L2, ignore=('v%d' % vDum,)) if "['v%d']" % vDum not in e]
    if '--nomem' in ARGS or '--nocompute' in ARGS:
        errs = []
    print('%d lines, %d nop states inserted, %d wait errors' % (len(L2), tot, len(errs)))
    for e in errs[:20]:
        print('   ', e)
    out += ['.globl %s' % kn, '.p2align 8', '.type %s,@function' % kn, '%s:' % kn] + L2
    out.append('.section .rodata,"a"')
    out.append('.p2align 6')
    out.append(desc(kn, 256, 102))
    open(out_path, 'w').write('\n'.join(out) + '\n')


if __name__ == '__main__':
    main()
```

```python
import math
import struct
import sys

sys.path.insert(0, 'gen')
import chk

NAME = 'concat_heads__gqa_block_cached__mha_block_cached__near_ridge'
ARGS = sys.argv[1:]


def opt(name, default):
    for a in ARGS:
        if a.startswith('--%s=' % name):
            return type(default)(a.split('=')[1])
    return default


def f32(x):
    return '0x%08x' % struct.unpack('<I', struct.pack('<f', x))[0]


def vr(a, n=1):
    return 'v%d' % a if n == 1 else 'v[%d:%d]' % (a, a + n - 1)


def sr(a, n=1):
    return 's%d' % a if n == 1 else 's[%d:%d]' % (a, a + n - 1)


class P:
    def __init__(s):
        s.L = []

    def __call__(s, t):
        for x in t.strip('\n').split('\n'):
            x = x.strip()
            if x:
                s.L.append('    ' + x)

    def label(s, n):
        s.L.append(n + ':')

    def c(s, t):
        s.L.append('    ; ' + t)

    def ext(s, items):
        for x in items:
            if x.endswith(':'):
                s.L.append(x)
            else:
                s.L.append('    ' + x)


LDS_TOTAL = 163840
SLOT = 16384
PART_B = 46080
OW_B = 73728
POFF = 24 << 20
SB = 38912
FLAG_OFF = 48 << 20
LDS_DROP = 0x30000

vO = 0
vOr = 64
vQ = 96
vQr = 128
vS = [144, 160]
vNM = 176
vSr = 192
vNMr = 200
vF = 204
vL0, vLr = 236, 237
vKa = [238, 239, 240, 241]
vVa = [242, 243]
bKr, bVr = 244, 245
vT = [246, 247]
voffK, voffV = 248, 249
vMx, vA, vB, vC = 250, 251, 252, 253
vLane = 254
vDum = 255
voffWo = voffK
voffK1 = 64
qSet = [144, 164]
qRem = 184
qBase = 196
qCur = 200
voffW, voffX, voffX9, voffT = 206, 207, 208, 209
WBUF, XBUF, SUP = 16384, 18432, 51200
tAcc = 0
tRac = 48
tB = 64
tRB = 80
tF = 96
tWo = 73
tRa, tRb, tRra, tRrb, tCa, tCb, tCra, tCrb = range(136, 144)
tOo, tPm, tPr, tFo1, tFo2, tPo1, tPo2, tFv, tPd, tDb1, tDb2 = range(176, 187)

sX, sW, sK, sV, sWo, sPt, sTc, sG = 4, 8, 12, 16, 20, 24, 28, 32
sW8, sE, sWv, sB, sHP, sTyp = 36, 37, 38, 39, 40, 41
sCur, sQx, sWr, sDelta = 42, 43, 44, 45
sSv, sSv1, sSk0, sSk1 = 46, 47, 48, 49
sCnt, sT0, sT1, sT2 = 50, 51, 52, 53
sEx = 54
sScale, sThr = 56, 58
sMb, sMw, sMx = 59, 60, 61
sCv, sRot = 62, 63
sR = 64
sBufR, sBufW, sSoW, sSoX, sTo = 69, 70, 71, 72, 73
sXR, sXW = 46, 47
sWs, sOut, sDbg = 74, 76, 78
sS, sJ = 72, 73
sKA = 80
sFl = sTc
sFl = 96 if '--stamp' not in ARGS else 96

LOOK = opt('look', 6)
THR = 8.0
NT = ' nt'
NTW = ' nt' if opt('ntw', 1) else ''
NTO = ' nt' if opt('ntwo', 0) else ''
NTT = ' nt' if opt('ntt', 0) else ''
STAMP = '--stamp' in ARGS
STAMP_OFF = 64 << 20
BA, BB = opt('ba', 3), opt('bb', 5)
ONEBAR = '--onebar' in ARGS
DSP = opt('dsp', 1)
PAIRW = opt('pairw', 1)
TOUCH = '--touch' in ARGS
TU0 = opt('tu0', 2)
TSB, TSA = opt('tsb', 11), opt('tsa', 10)
sTs = 49
sVc, sVw, sDv, sVal = 47, 69, 70, 71
VRING, FLAGS = 81920, 147456
SOFT = opt('soft', 0)
sF, sD = 72, 73
DQ = opt('dq', 0)
PUBST = opt('pubst', 2)
LT = opt('lt', 0)
LTD = opt('ltd', 1)
LTN = ' nt' if opt('ltn', 1) else ''
WOB = opt('wob', 3)
WOT = opt('wot', 0)
WTD = opt('wtd', 6)
TLB = opt('tlb', 0)
sRole = 57
DDA = opt('dda', 3)


TST = '--tstamp' in ARGS
TMAP = {5: 1, 6: 2, 'e1': 3, 's0': 4, 's4': 5, 's8': 6, 7: 7, 8: 8, 9: 9, 10: 10}


def stamp_reg(i):
    return {0: 100, 9: 46, 10: 48}.get(i, 80 + 2 * (i - 1))


def stamp(i):
    if not STAMP:
        return []
    if '--prof' in ARGS and i in (5, 6, 7, 8):
        return []
    if TST:
        if i not in TMAP:
            return []
        i = TMAP[i]
    elif not isinstance(i, int):
        return []
    r = stamp_reg(i)
    return ['s_memtime s[%d:%d]' % (r, r + 1), 's_waitcnt lgkmcnt(0)']


def stamp_flush(p, n):
    if not STAMP:
        return
    if '--dbgout' in ARGS:
        p('s_and_b32 %s, s2, 0xe7' % sr(sT0))
        p('s_cmp_lg_u32 %s, 0' % sr(sT0))
        p('s_cbranch_scc1 NODBG')
        p('s_cmp_lg_u32 %s, 2' % sr(sW8))
        p('s_cbranch_scc1 NODBG')
        p('s_mov_b32 %s, %s' % (sr(sG), sr(sDbg)))
        p('s_mov_b32 %s, %s' % (sr(sG + 1), sr(sDbg + 1)))
        p('s_mov_b32 %s, 256' % sr(sG + 2))
        p('s_mov_b32 %s, 0x20000' % sr(sG + 3))
        p('s_lshl_b32 %s, s2, 1' % sr(sT0))
        p('v_mov_b32 v1, %s' % sr(sT0))
        for j, (a, b) in enumerate(((3, 0), (5, 4), (10, 6))):
            p('s_sub_u32 %s, s%d, s%d' % (sr(sT1), stamp_reg(a), stamp_reg(b)))
            p('v_mov_b32 v2, %s' % sr(sT1))
            p('buffer_store_dword v2, v1, %s, 0 offen offset:%d' % (sr(sG, 4), 4 + 4 * j))
        p.label('NODBG')
    p('s_mul_i32 %s, s2, 8' % sr(sT0))
    p('s_add_u32 %s, %s, %s' % (sr(sT0), sr(sT0), sr(sW8)))
    p('s_lshl_b32 %s, %s, 6' % (sr(sT0), sr(sT0)))
    p('s_add_u32 %s, %s, 0x%x' % (sr(sT0), sr(sT0), STAMP_OFF))
    p('s_add_u32 %s, %s, %s' % (sr(sG), sr(sWs), sr(sT0)))
    p('s_addc_u32 %s, %s, 0' % (sr(sG + 1), sr(sWs + 1)))
    p('s_mov_b32 %s, 64' % sr(sG + 2))
    p('s_mov_b32 %s, 0x20000' % sr(sG + 3))
    p('v_mov_b32 v1, 0')
    p('s_memrealtime vcc')
    p('s_waitcnt lgkmcnt(0)')
    p('v_mov_b32 v2, vcc_lo')
    p('buffer_store_dword v2, v1, %s, 0 offen offset:60' % sr(sG, 4))
    p('s_getreg_b32 %s, hwreg(HW_REG_HW_ID)' % sr(sT0))
    p('s_getreg_b32 %s, hwreg(HW_REG_XCC_ID)' % sr(sT1))
    p('v_mov_b32 v2, %s' % sr(sT0))
    p('buffer_store_dword v2, v1, %s, 0 offen offset:48' % sr(sG, 4))
    p('v_mov_b32 v2, %s' % sr(sT1))
    p('buffer_store_dword v2, v1, %s, 0 offen offset:52' % sr(sG, 4))
    for i in range(n):
        p('v_mov_b32 v2, s%d' % stamp_reg(i))
        p('buffer_store_dword v2, v1, %s, 0 offen offset:%d' % (sr(sG, 4), 4 * i))
    p('s_waitcnt vmcnt(0)')


def resolve_waits(items, ctxs):
    def is_lds(x):
        return (isinstance(x, tuple) and x[0] == 'R') or (isinstance(x, str) and x.startswith('ds_'))
    res = {}
    for ctx in ctxs:
        seq = list(ctx) + list(items)
        off = len(ctx)
        cnt = 0
        pos = {}
        done = 0
        inretry = False
        for k, x in enumerate(seq):
            if isinstance(x, str) and x.startswith('RT') and x.endswith(':'):
                inretry = True
            elif isinstance(x, str) and x.startswith('OK') and x.endswith(':'):
                inretry = False
            if inretry:
                continue
            if is_lds(x):
                cnt += 1
                if isinstance(x, tuple):
                    pos[x[1]] = cnt
            elif isinstance(x, str) and x.startswith('s_waitcnt') and 'lgkmcnt(0)' in x:
                done = cnt
            elif isinstance(x, tuple) and x[0] == 'W':
                last = max(pos[i] for i in x[1]) if all(i in pos for i in x[1]) else None
                if last is None:
                    assert k < off
                    continue
                n = min(cnt - last, 15)
                skip = last <= done
                done = max(done, last)
                if k >= off:
                    old = res.get(k - off, (99, True))
                    res[k - off] = (min(old[0], n), old[1] and skip)
    out = []
    for k, x in enumerate(items):
        if isinstance(x, tuple):
            if x[0] == 'R':
                out.append(x[2])
            else:
                n, skip = res[k]
                out.append('; (wait implied)' if skip else 's_waitcnt lgkmcnt(%d)' % n)
        else:
            out.append(x)
    return out


def softmax_stream(S, n, lregs):
    seq = []
    pend = []
    for i in range(0, n, 2):
        seq.append(('e', i))
        seq += pend
        seq.append(('e', i + 1))
        pend = [('a', i), ('a', i + 1), ('c', i)]
    seq += pend
    st = []
    for k, i in seq:
        if k == 'e':
            st.append((2, 'v_exp_f32 %s, %s' % (vr(S + i), vr(S + i))))
        elif k == 'a':
            l = lregs[i % len(lregs)]
            st.append((1, 'v_add_f32 %s, %s, %s' % (vr(l), vr(l), vr(S + i))))
        elif k == 'c':
            dst = S + (i // 8) * 8 + (i % 8) // 2
            st.append((1, 'v_cvt_pk_bf16_f32 %s, %s, %s' % (vr(dst), vr(S + i), vr(S + i + 1))))
    return st


def max_stream(S, n, dst):
    st = [(1, 'v_max3_f32 %s, %s, %s, %s' % (vr(dst), vr(S), vr(S + 1), vr(S + 2)))]
    i = 3
    while i + 1 < n:
        st.append((1, 'v_max3_f32 %s, %s, %s, %s' % (vr(dst), vr(dst), vr(S + i), vr(S + i + 1))))
        i += 2
    if i < n:
        st.append((1, 'v_max_f32 %s, %s, %s' % (vr(dst), vr(dst), vr(S + i))))
    return st


def x16_op(x, op):
    return ['ds_swizzle_b32 %s, %s offset:0x401F' % (vr(vA), vr(x)), 's_waitcnt lgkmcnt(0)',
            '%s %s, %s, %s' % (op, vr(x), vr(x), vr(vA))]


def xhalf_op(x, op):
    return ['v_mov_b32 %s, %s' % (vr(vA), vr(x)), 'v_mov_b32 %s, %s' % (vr(vB), vr(x)),
            'v_permlane32_swap_b32 %s, %s' % (vr(vA), vr(vB)),
            '%s %s, %s, %s' % (op, vr(x), vr(vA), vr(vB))]


def tile_off(dst, c, add):
    return ['s_add_u32 %s, %s, 0x%x' % (sr(sT0), sr(c), add),
            's_add_u32 %s, %s, %s' % (sr(dst), sr(sT0), sr(sRot)),
            's_and_b32 %s, %s, 0x3ffff' % (sr(dst), sr(dst)),
            's_and_b32 %s, %s, 0x40000' % (sr(sT0), sr(sT0)),
            's_or_b32 %s, %s, %s' % (sr(dst), sr(dst), sr(sT0))]


def wo_row(st):
    return ['s_add_u32 %s, %s, %d' % (sr(sT2), sr(sHP), st >> 2),
            's_and_b32 %s, %s, 3' % (sr(sT2), sr(sT2)),
            's_mul_i32 %s, %s, %d' % (sr(sT2), sr(sT2), 256 * 1152),
            's_add_u32 %s, %s, %d' % (sr(sT2), sr(sT2), (st & 3) * 64 * 1152)]


def wo_stage_dma(st, vo):
    g = []
    for i in range(5):
        g.append((wo_row(st) + ['s_add_u32 m0, %s, %s' % (sr(sR + st % 4), sr(sMx)), 's_nop 0'] if i == 0 else ['s_add_u32 m0, m0, 0x400', 's_nop 0']) +
                 ['buffer_load_dwordx4 %s, %s, %s offen%s lds' % (vr(vo + i), sr(sWo, 4), sr(sT2), NTO)])
    return g


def voffwo_code(vo, sub):
    o = ['s_sub_u32 %s, %s, %d' % (sr(sT0), sr(sW8), sub),
         's_mul_i32 %s, %s, 5120' % (sr(sMx), sr(sT0)),
         's_add_u32 %s, %s, 18432' % (sr(sMx), sr(sMx)),
         's_mul_i32 %s, %s, 18432' % (sr(sT0), sr(sT0))]
    for i in range(5):
        o += ['v_add_u32 %s, %d, %s' % (vr(vA), 64 * i, vr(vLane)),
              'v_mul_u32_u24 %s, 0xccd, %s' % (vr(vB), vr(vA)),
              'v_lshrrev_b32 %s, 16, %s' % (vr(vB), vr(vB)),
              'v_mul_u32_u24 %s, 20, %s' % (vr(vo + i), vr(vB)),
              'v_sub_u32 %s, %s, %s' % (vr(vA), vr(vA), vr(vo + i)),
              'v_mul_u32_u24 %s, 0x480, %s' % (vr(vB), vr(vB)),
              'v_lshl_add_u32 %s, %s, 4, %s' % (vr(vA), vr(vA), vr(vB)),
              'v_add_u32 %s, %s, %s' % (vr(vo + i), sr(sT0), vr(vA))]
    return o


def wo_touch_voff(dst, tmp):
    return ['v_and_b32 %s, 3, %s' % (vr(dst), vr(vLane)),
            'v_lshlrev_b32 %s, 7, %s' % (vr(dst), vr(dst)),
            'v_min_u32 %s, 0x13c, %s' % (vr(dst), vr(dst)),
            'v_bfe_u32 %s, %s, 2, 3' % (vr(tmp), vr(vLane)),
            'v_mul_u32_u24 %s, 0x480, %s' % (vr(tmp), vr(tmp)),
            'v_add_u32 %s, %s, %s' % (vr(dst), vr(dst), vr(tmp)),
            'v_lshrrev_b32 %s, 5, %s' % (vr(tmp), vr(vLane)),
            'v_mul_u32_u24 %s, 0x12000, %s' % (vr(tmp), vr(tmp)),
            's_mul_i32 %s, %s, 9216' % (sr(sT0), sr(sB)),
            'v_add3_u32 %s, %s, %s, %s' % (vr(dst), vr(dst), vr(tmp), sr(sT0))]


class Attn:
    def __init__(s, typ, role):
        s.typ, s.role = typ, role
        s.heavy = role != 'L'
        s.tag = ('A' if typ == 0 else 'B') + role
        s.DD = DDA if typ == 0 else 4
        s.onebar = ONEBAR or (typ == 0 and DDA < 9)
        s.early = typ == 0 and DDA < 9
        s.loader = role == 'L'
        s.vFl = 70 if role == 'L' else 248
        s.vFb = 71 if role == 'L' else 255
        s.nd = (4 if typ == 0 else 8) if s.loader else 0
        s.vL1 = 65 if s.loader else 249
        s.stride = SLOT if typ == 0 else 2 * SLOT

    def pv_slots(s, par, init):
        So = vS[1 - par]
        out = []
        for us in range(2):
            for jt in range(4):
                def mk(f, us=us, jt=jt):
                    c = '0' if (init and us == 0) else vr(vO + 16 * jt, 16)
                    mf = 'v_mfma_f32_32x32x16_bf16 %s, %s, %s, %s' % (vr(vO + 16 * jt, 16), vr(f, 4), vr(So + 8 * us, 4), c)
                    rd = ['ds_read_b64_tr_b16 %s, %s offset:%d' % (vr(f + 2 * p, 2), vr(vVa[jt & 1]), us * 4096 + p * 2048 + (jt >> 1) * 512) for p in range(2)]
                    return mf, rd
                out.append(('big', 'pv', mk))
        return out

    def qk_slots(s, par, czero=False):
        So = vS[1 - par]
        out = []
        for st in range(8):
            def mk(f, st=st):
                c = ('0' if czero else vr(vNM, 16)) if st == 0 else vr(So, 16)
                mf = 'v_mfma_f32_32x32x16_bf16 %s, %s, %s, %s' % (vr(So, 16), vr(f, 4), vr(vQ + 4 * st, 4), c)
                rd = ['ds_read_b128 %s, %s offset:%d' % (vr(f, 4), vr(vKa[st & 3]), (st >> 2) * 512)]
                return mf, rd
            out.append(('big', 'qk', mk))
        return out

    def rqk_slots(s, init):
        out = []
        for st in range(4):
            for z in range(2):
                def mk(f, st=st, z=z):
                    c = ('0' if init else vr(vNMr, 4)) if st == 0 else vr(vSr + 4 * z, 4)
                    mf = 'v_mfma_f32_16x16x32_bf16 %s, %s, %s, %s' % (vr(vSr + 4 * z, 4), vr(f, 4), vr(vQr + 4 * st, 4), c)
                    rd = ['ds_read_b128 %s, %s offset:%d' % (vr(f, 4), vr(vT[st & 1]), z * 4096 + (st >> 1) * 512)]
                    return mf, rd
                out.append(('small', 'rqk', mk))
        return out

    def rpv_slots(s):
        out = []
        for T in range(8):
            def mk(f, T=T):
                mf = 'v_mfma_f32_16x16x32_bf16 %s, %s, %s, %s' % (vr(vOr + 4 * T, 4), vr(f, 4), vr(vSr, 4), vr(vOr + 4 * T, 4))
                rd = ['ds_read_b64_tr_b16 %s, %s offset:%d' % (vr(f + 2 * p, 2), vr(vT[(T >> 1) & 1]), p * 4096 + (T >> 2) * 512 + (T & 1) * 32) for p in range(2)]
                return mf, rd
            out.append(('small', 'rpv', mk))
        return out

    def rem_kind(s, par):
        if not s.heavy:
            return None
        return 'rqk' if (par == 0) == (s.role == 'X') else 'rpv'

    def dma_items(s):
        if not s.loader:
            return []
        ld = 'buffer_load_dwordx4 %s, %s, %s offen%s%s lds'
        if s.typ == 1:
            return s.v_dma(sVw, sSv) + s.k_dma(sWr, sSk0)
        return [['s_add_u32 m0, %s, %s' % (sr(sWr), sr(sMb)), 's_add_u32 %s, %s, 0x1000' % (sr(sT1), sr(sSk0)),
                 ld % (vr(voffK), sr(sK, 4), sr(sSk0), '', NT)],
                ['s_add_u32 m0, m0, 0x1000', 's_add_u32 %s, %s, 0x1000' % (sr(sT2), sr(sSv)),
                 ld % (vr(voffK), sr(sK, 4), sr(sT1), '', NT)],
                ['s_add_u32 m0, m0, 0x1000', 's_nop 0', ld % (vr(voffV), sr(sV, 4), sr(sSv), '', NT)],
                ['s_add_u32 m0, m0, 0x1000', 's_nop 0', ld % (vr(voffV), sr(sV, 4), sr(sT2), '', NT)]]

    def k_dma(s, w, so):
        ld = 'buffer_load_dwordx4 %s, %s, %s offen%s%s lds'
        return [['s_add_u32 m0, %s, %s' % (sr(w), sr(sMb)), 's_add_u32 %s, %s, 0x1000' % (sr(sT1), sr(so)),
                 ld % (vr(voffK), sr(sK, 4), sr(so), '', NT), ld % (vr(voffK1), sr(sK, 4), sr(so), ' offset:2048', NT)],
                ['s_add_u32 m0, m0, 0x1000', 's_nop 0',
                 ld % (vr(voffK), sr(sK, 4), sr(sT1), '', NT), ld % (vr(voffK1), sr(sK, 4), sr(sT1), ' offset:2048', NT)]]

    def v_dma(s, w, so):
        ld = 'buffer_load_dwordx4 %s, %s, %s offen%s%s lds'
        return [['s_add_u32 %s, %s, 0x%x' % (sr(sT2), sr(w), VRING), 's_add_u32 m0, %s, %s' % (sr(sT2), sr(sMb)),
                 's_add_u32 %s, %s, 0x1000' % (sr(sT2), sr(so)),
                 ld % (vr(voffV), sr(sV, 4), sr(so), '', NT), ld % (vr(voffV), sr(sV, 4), sr(so), ' offset:2048', NT)],
                ['s_add_u32 m0, m0, 0x1000', 's_nop 0',
                 ld % (vr(voffV), sr(sV, 4), sr(sT2), '', NT), ld % (vr(voffV), sr(sV, 4), sr(sT2), ' offset:2048', NT)]]

    def adv_scalar_b(s, dma):
        o = []
        for cur, w, d, ring in ((sCur, sWr, sDelta, 81920), (sVc, sVw, sDv, 65536)):
            o += ['s_mov_b32 %s, %s' % (sr(w), sr(cur)),
                  's_add_u32 %s, %s, 0x4000' % (sr(cur), sr(cur)),
                  's_cmp_ge_u32 %s, 0x%x' % (sr(cur), ring),
                  's_cselect_b32 %s, 0, %s' % (sr(cur), sr(cur)),
                  's_sub_u32 %s, %s, %s' % (sr(d), sr(cur), sr(w)), 's_nop 0']
        o = [t for t in o if t != 's_nop 0']
        if dma and s.loader:
            o += ['s_add_u32 %s, %s, 0x2000' % (sr(sSk0), sr(sSk0)),
                  's_and_b32 %s, %s, 0x3ffff' % (sr(sSk0), sr(sSk0)),
                  's_add_u32 %s, %s, 0x2000' % (sr(sSv), sr(sSv)),
                  's_and_b32 %s, %s, 0x3ffff' % (sr(sSv), sr(sSv)), 's_nop 0', 's_nop 0', 's_nop 0',
                  's_cmp_lt_u32 %s, 28' % sr(sVal),
                  's_cselect_b32 %s, 0x40000, 0' % sr(sK + 2),
                  's_cselect_b32 %s, %s, 0x%x' % (sr(sWr), sr(sWr), LDS_DROP),
                  's_cmp_lt_u32 %s, 30' % sr(sVal),
                  's_cselect_b32 %s, 0x40000, 0' % sr(sV + 2),
                  's_cselect_b32 %s, %s, 0x%x' % (sr(sVw), sr(sVw), LDS_DROP - VRING)]
            o = [t for t in o if t != 's_nop 0']
        return o

    def poll(s, lab, rd, regs, first_wait='s_waitcnt lgkmcnt(0)'):
        def chk():
            o = ['s_waitcnt lgkmcnt(0)']
            if len(regs) == 4:
                o += ['v_min3_u32 %s, %s, %s, %s' % (vr(regs[0]), vr(regs[0]), vr(regs[1]), vr(regs[2])),
                      'v_min_u32 %s, %s, %s' % (vr(regs[0]), vr(regs[0]), vr(regs[3]))]
            else:
                o += ['v_min_u32 %s, %s, %s' % (vr(regs[0]), vr(regs[0]), vr(regs[1]))]
            return o + ['v_cmp_gt_u32 vcc, %s, %s' % (sr(sVal), vr(regs[0]))]
        return [first_wait] + chk()[1:] + ['s_cbranch_vccz OK%s' % lab, 'RT%s:' % lab, rd] + chk() + ['s_cbranch_vccnz RT%s' % lab, 'OK%s:' % lab]

    def dma_singles(s):
        out = []
        for g in s.dma_items():
            cur = []
            for t in g:
                cur.append(t)
                if t.startswith('buffer_load'):
                    out.append(cur)
                    cur = []
        return out

    def unit_adv(s):
        return ['s_mov_b32 %s, %s' % (sr(sSv), sr(sSk0)),
                's_add_u32 %s, %s, 0x2000' % (sr(sSk0), sr(sSk0)),
                's_and_b32 %s, %s, 0x3ffff' % (sr(sSk0), sr(sSk0)),
                's_add_u32 %s, %s, 1' % (sr(sCv), sr(sCv))]

    def adv_scalar(s, dma):
        if s.typ == 1:
            return s.adv_scalar_b(dma)
        o = ['s_mov_b32 %s, %s' % (sr(sWr), sr(sCur)),
             's_add_u32 %s, %s, 0x%x' % (sr(sCur), sr(sCur), s.stride),
             's_cmp_ge_u32 %s, 0x%x' % (sr(sCur), LDS_TOTAL),
             's_cselect_b32 %s, 0x%x, 0' % (sr(sT0), LDS_TOTAL),
             's_sub_u32 %s, %s, %s' % (sr(sCur), sr(sCur), sr(sT0)),
             's_sub_u32 %s, %s, %s' % (sr(sDelta), sr(sCur), sr(sWr))]
        if dma and s.loader:
            if s.early:
                o += ['s_add_u32 %s, %s, 0x%x' % (sr(sWr), sr(sCur), s.DD * SLOT),
                      's_cmp_ge_u32 %s, 0x%x' % (sr(sWr), LDS_TOTAL),
                      's_cselect_b32 %s, 0x%x, 0' % (sr(sT0), LDS_TOTAL),
                      's_sub_u32 %s, %s, %s' % (sr(sWr), sr(sWr), sr(sT0))]
            o += s.unit_adv()
            o += ['s_cmp_lt_u32 %s, 31' % sr(sCv),
                  's_cselect_b32 %s, 0x40000, 0' % sr(sK + 2),
                  's_cmp_lt_u32 %s, 32' % sr(sCv),
                  's_cselect_b32 %s, 0x40000, 0' % sr(sV + 2),
                  's_cselect_b32 %s, %s, 0x%x' % (sr(sWr), sr(sWr), LDS_DROP)]
        return o

    def rem_addr(s, par):
        k = s.rem_kind(par)
        if not k:
            return []
        return ['v_add_u32 %s, %s, %s' % (vr(vT[0]), sr(sCur if (k == 'rqk' or s.typ == 0) else sVc), vr(bKr if k == 'rqk' else bVr)),
                'v_xor_b32 %s, 64, %s' % (vr(vT[1]), vr(vT[0]))]

    def adv_vector(s, nextpar):
        o = ['v_add_u32 %s, %s, %s' % (vr(x), sr(sDelta), vr(x)) for x in vKa]
        o += ['v_add_u32 %s, %s, %s' % (vr(x), sr(sDelta if s.typ == 0 else sDv), vr(x)) for x in vVa]
        return o + s.rem_addr(nextpar)

    def iter_slots(s, par, kind):
        first, last = kind == 'first', kind == 'last'
        sl = []
        k = s.rem_kind(par)
        if k == 'rqk':
            sl += s.rqk_slots(init=first)
        elif k == 'rpv':
            sl += [None] * 8 if (first and par == 0) else s.rpv_slots()
        npv = len(sl)
        sl += [None] * 8 if (first and par == 0) else s.pv_slots(par, init=(first and par == 1))
        sl += [None] * 8 if (last and par == 1) else s.qk_slots(par)
        return sl, npv

    def epi_slots(s):
        sl = s.rpv_slots() if s.rem_kind(0) == 'rpv' else []
        return sl + s.pv_slots(0, init=False)

    def pair(s, kind):
        first, last = kind == 'first', kind == 'last'
        slots, starts, pvs = [], [], []
        for par in range(2):
            starts.append(len(slots))
            sl, npv = s.iter_slots(par, kind)
            pvs.append(len(slots) + npv)
            slots += sl
        n = len(slots)
        assert n % 8 == 0
        nxt = s.epi_slots() if last else s.iter_slots(0, 'loop')[0]
        made = []
        for k, sl in enumerate(slots + nxt):
            if sl is None:
                made.append(None)
            else:
                mf, rd = sl[2](vF + 4 * (k % 8))
                ids = ['%d_%d' % (k if k < n else k - n, i) for i in range(len(rd))]
                made.append((sl[0], sl[1], mf, rd, ids))
        items = []
        nread = 0 if first else LOOK
        gate = [pvs[0] + 8]
        rares = []

        def emit_reads(upto):
            nonlocal nread
            while nread <= upto and nread < n + LOOK and nread < gate[0]:
                m = made[nread]
                if m is not None:
                    for i, t in zip(m[4], m[3]):
                        items.append(('R', i, t))
                nread += 1

        for par in range(2):
            a = starts[par]
            b = starts[1] if par == 0 else n
            pv0 = pvs[par]
            S = vS[par]
            gate[0] = pv0 + 8
            nocheck = first and par == 0
            if last:
                dma = wo_stage_dma(par, tWo) if s.loader else []
                nv = (s.DD - 1 - par) * s.nd + 5 + 5 * par
            else:
                dma = s.dma_singles()
                nv = s.DD * s.nd
            if s.typ == 1 and s.loader:
                nv = (25 if par == 0 else 22) if last else ((20, 24)[par] if first else 28)
            soft = SOFT and s.typ == 1 and not last
            slab = '_%s_%s%d' % (s.tag, kind, par)
            mainq = []
            if not nocheck:
                mainq += max_stream(S, 16, vMx)
                mainq.append((1, 'v_cmp_lt_f32 vcc, %s, %s' % (sr(sThr), vr(vMx))))
                mainq.append((0, 'BR_MAIN'))
            mainq += softmax_stream(S, 16, [vL0, s.vL1])
            remq = []
            if s.rem_kind(par) == 'rqk':
                remq += max_stream(vSr, 8, vC)
                if first:
                    blk = x16_op(vC, 'v_max_f32') + xhalf_op(vC, 'v_max_f32')
                    blk += ['v_sub_f32 %s, 0, %s' % (vr(vNMr + i), vr(vC)) for i in range(4)]
                    blk += ['v_sub_f32 %s, %s, %s' % (vr(vSr + i), vr(vSr + i), vr(vC)) for i in range(8)]
                    remq += [(1, t) for t in blk]
                else:
                    remq.append((1, 'v_cmp_lt_f32 vcc, %s, %s' % (sr(sThr), vr(vC))))
                    remq.append((0, 'BR_REM'))
                remq += softmax_stream(vSr, 8, [vLr])
            rem_ready = pv0 + 7
            present = [k for k in range(a, b) if made[k] is not None]
            cap = {k: (6 if made[k][0] == 'big' else 2) for k in present}
            firstgap = present[1] if not nocheck else present[0]
            seg_start = None
            misc = s.adv_scalar(not last)
            if LT and s.heavy and s.typ == 0 and not last:
                misc = misc + ['buffer_load_dword v255, v248, %s, %s offen%s' % (sr(sTc, 4), sr(sTo), LTN),
                               's_add_u32 %s, %s, 0x2000' % (sr(sTo), sr(sTo)), 's_and_b32 %s, %s, 0x3ffff' % (sr(sTo), sr(sTo))]
                if par == 1 and kind == 'loop':
                    misc = misc + ['s_cmp_gt_u32 %s, %d' % (sr(sCnt), (LTD + (5 if s.role == 'X' else 3)) // 2),
                                   's_cselect_b32 %s, 0x40000, 0' % sr(sTc + 2)]
            if TLB and s.heavy and not last:
                misc = misc + ['s_add_u32 %s, %s, 0x2000' % (sr(sSk0), sr(sSk0)), 's_and_b32 %s, %s, 0x3ffff' % (sr(sSk0), sr(sSk0)),
                               'buffer_load_dword v255, v248, %s, %s offen nt' % (sr(sK if s.role == 'X' else sV, 4), sr(sSk0))]
            if s.typ == 1:
                items.append('s_add_u32 %s, %s, 1' % (sr(sVal), sr(sVal)))
                if soft and s.loader and SOFT == 1:
                    items.append('v_mov_b32 %s, %s' % (vr(vA), sr(sVal)))
                    items.append('s_waitcnt vmcnt(%d)' % (nv - 8))
                    items.append('ds_write_b32 %s, %s offset:16' % (vr(72), vr(vA)))
                if soft and s.loader and SOFT == 2:
                    items += ['s_getreg_b32 %s, hwreg(HW_REG_IB_STS, 0, 4)' % sr(sT0),
                              's_getreg_b32 %s, hwreg(HW_REG_IB_STS, 22, 2)' % sr(sT1),
                              'v_mov_b32 %s, %s' % (vr(vA), sr(sVal)),
                              's_lshl_b32 %s, %s, 4' % (sr(sT1), sr(sT1)),
                              's_or_b32 %s, %s, %s' % (sr(sT0), sr(sT0), sr(sT1)),
                              's_cmp_le_u32 %s, %d' % (sr(sT0), nv - 8) if not opt('fslow', 0) else 's_cmp_lg_u32 0, 0',
                              's_cselect_b32 %s, 1, 0' % sr(sF),
                              's_cbranch_scc0 OKF%s' % slab,
                              'RTF%s:' % slab,
                              's_waitcnt vmcnt(%d)' % (nv - 8),
                              'ds_write_b32 %s, %s offset:16' % (vr(72), vr(vA)),
                              'OKF%s:' % slab]
            emit_reads(present[0] - 1 + LOOK)

            def bar_a(k):
                nonlocal misc
                items.extend(misc)
                misc = []
                assert nread >= gate[0] or all(made[j] is None for j in range(nread, gate[0]))
                items.extend(s.adv_vector(1 - par))
                if s.onebar:
                    items.append('s_waitcnt vmcnt(%d) lgkmcnt(0)' % (nv - len(dma)) if s.loader else 's_waitcnt lgkmcnt(0)')
                    items.append('s_barrier')
                    gate[0] = 10 ** 6
                    emit_reads(k + LOOK)
                elif soft:
                    items.append('v_mov_b32 %s, %s' % (vr(vA), sr(sVal)))
                    items.append('s_waitcnt lgkmcnt(0)')
                    items.append('ds_write_b32 %s, %s' % (vr(s.vFl), vr(vA)))
                    items.append(rdfree if (SOFT == 2 and s.loader) else rdfull)
                else:
                    items.append('s_waitcnt lgkmcnt(0)')
                    items.append('s_barrier')

            rdfree = 'ds_read_b128 v[66:69], %s' % vr(71)
            rdfull = 'ds_read_b64 %s, %s offset:16' % (vr(vA + 1, 2) if False else 'v[252:253]', vr(71 if s.loader else 249 if False else s.vFb))

            def bar_b(k):
                if soft:
                    return
                if s.onebar:
                    return
                if s.loader:
                    items.append('s_waitcnt vmcnt(%d)' % (nv - len(dma)))
                items.append('s_barrier')
                gate[0] = 10 ** 6
                emit_reads(k + LOOK)

            for k in range(a, b):
                m = made[k]
                if m is not None:
                    ids = m[4]
                    if PAIRW and k % 2 == 0 and made[k + 1] is not None and nread > k + 1:
                        ids = ids + made[k + 1][4]
                    items.append(('W', ids))
                    items.append(m[2])
                    if k == pv0 + 7 and seg_start is not None:
                        lab = 'REJ_%s_%s%d' % (s.tag, kind, par)
                        items.append(lab + ':')
                        rares.append(('main', seg_start, len(items) - 1, lab, par, kind))
                        seg_start = None
                emit_reads(k + LOOK)
                if k == pv0 + BA - 1:
                    bar_a(k)
                burst = [t for g in dma for t in g]
                if soft and k == pv0 + BA:
                    if SOFT == 2 and s.loader:
                        pl = s.poll('A' + slab, rdfree, [66, 67, 68, 69])
                        nchk = pl.index('s_cbranch_vccz OKA%s' % slab)
                        items += pl[:nchk]
                        items += ['s_mov_b32 %s, 0' % sr(sD),
                                  's_cmp_eq_u32 %s, 0' % sr(sF),
                                  's_cbranch_scc1 RTM%s' % slab,
                                  's_cbranch_vccnz OKS%s' % slab,
                                  'RTM%s:' % slab]
                        items += [t.replace('OKA', 'GOA') for t in pl[nchk:]]
                        items += burst
                        items += ['s_mov_b32 %s, 1' % sr(sD),
                                  's_cmp_eq_u32 %s, 1' % sr(sF),
                                  's_cbranch_scc1 OKS%s' % slab,
                                  'v_mov_b32 %s, %s' % (vr(vA), sr(sVal)),
                                  's_waitcnt vmcnt(%d)' % nv,
                                  'ds_write_b32 %s, %s offset:16' % (vr(72), vr(vA)),
                                  'OKS%s:' % slab,
                                  rdfull]
                    items.extend(s.poll('B' + slab, rdfull, [252, 253]))
                    gate[0] = 10 ** 6
                    emit_reads(k + LOOK)
                if soft and s.loader and SOFT == 2 and k == pv0 + 9 + DQ:
                    items += ['s_cmp_eq_u32 %s, 1' % sr(sD), 's_cbranch_scc1 OKD%s' % slab, 'RTD%s:' % slab, rdfree]
                    items += [t.replace('OKC', 'GOC') for t in s.poll('C' + slab, rdfree, [66, 67, 68, 69])]
                    items += burst
                    items += ['OKD%s:' % slab]
                    del dma[:]
                if soft and s.loader and SOFT == 1 and k == pv0 + 8 + DQ:
                    items.append(('R', 'fr' + slab, rdfree))
                if soft and s.loader and SOFT == 1 and k == pv0 + 9 + DQ:
                    items.extend(s.poll('A' + slab, rdfree, [66, 67, 68, 69], ('W', ['fr' + slab])))
                if soft and s.loader and SOFT == 1 and k >= pv0 + 9 + DQ and dma:
                    left = b - k
                    for _ in range(-(-len(dma) // left)):
                        items.extend(dma.pop(0))
                if k == pv0 + BB - 1:
                    bar_b(k)
                if not soft and k >= pv0 + BA - 1 and dma and (m is not None or k == b - 1):
                    left = len([j for j in present if j >= k]) or 1
                    for _ in range(-(-len(dma) // left) if DSP else len(dma)):
                        items.extend(dma.pop(0))
                if m is None:
                    continue
                if misc and k < pv0 + BA - 1:
                    take = 6
                    items.extend(misc[:take])
                    misc = misc[take:]
                if k < firstgap:
                    continue
                remaining = sum(c for c, _ in mainq) + sum(c for c, _ in remq)
                capleft = sum(cap[j] for j in present if j >= k)
                bud = math.ceil(remaining * cap[k] / capleft)
                while bud > 0 and (mainq or remq):
                    use_rem = remq and k >= rem_ready and (not mainq or sum(c for c, _ in remq) * 2 >= sum(c for c, _ in mainq) or k >= b - 3)
                    q = remq if use_rem else mainq
                    if not q:
                        break
                    c, t = q.pop(0)
                    bud -= c
                    s.put(items, t, kind, par, rares)
                    if t == 'BR_MAIN':
                        seg_start = len(items)
                    elif q and q[0][1] in ('BR_MAIN', 'BR_REM'):
                        c, t = q.pop(0)
                        s.put(items, t, kind, par, rares)
                        if t == 'BR_MAIN':
                            seg_start = len(items)
            assert seg_start is None
            for g in dma:
                items.extend(g)
            for c, t in mainq + remq:
                s.put(items, t, kind, par, rares)
            if par == 1 and kind == 'loop':
                if s.heavy and WOB:
                    dm = 'v%d' % (255 if not SOFT or s.typ == 0 else 252)
                    items += ['s_cmp_lg_u32 %s, %d' % (sr(sCnt), WOB), 's_cbranch_scc1 NOT_%s' % s.tag,
                              'v_and_b32 %s, 3, %s' % (vr(vA), vr(vLane)),
                              'v_lshlrev_b32 %s, 7, %s' % (vr(vA), vr(vA)),
                              'v_min_u32 %s, 0x13c, %s' % (vr(vA), vr(vA)),
                              'v_lshrrev_b32 %s, 2, %s' % (vr(vB), vr(vLane)),
                              'v_mul_u32_u24 %s, 0x480, %s' % (vr(vB), vr(vB)),
                              'v_add_u32 %s, %s, %s' % (vr(vA), vr(vA), vr(vB)),
                              's_add_u32 %s, %s, 2' % (sr(sT0), sr(sW8)),
                              's_and_b32 %s, %s, 3' % (sr(sT0), sr(sT0)),
                              's_mul_i32 %s, %s, 36864' % (sr(sT0), sr(sT0)),
                              's_mul_i32 %s, %s, 147456' % (sr(sT1), sr(sB)),
                              's_add_u32 %s, %s, %s' % (sr(sT0), sr(sT0), sr(sT1))]
                    if SOFT and s.typ == 1:
                        items += ['s_nop 0']
                    else:
                        items += ['buffer_load_dword %s, %s, %s, %s offen' % (dm, vr(vA), sr(sWo, 4), sr(sT0)),
                                  's_add_u32 %s, %s, 18432' % (sr(sT0), sr(sT0)),
                                  'buffer_load_dword %s, %s, %s, %s offen' % (dm, vr(vA), sr(sWo, 4), sr(sT0))]
                    items += ['NOT_%s:' % s.tag]
                elif s.heavy and WOT:
                    items += ['s_cmp_lg_u32 %s, %d' % (sr(sCnt), WOT), 's_cbranch_scc1 NOT_%s' % s.tag]
                    items += wo_touch_voff(vA, vB)
                    items += ['s_add_u32 %s, %s, %s' % (sr(sT2), sr(sHP), sr(sE)),
                              's_and_b32 %s, %s, 3' % (sr(sT2), sr(sT2)),
                              's_mul_i32 %s, %s, %d' % (sr(sT2), sr(sT2), 256 * 1152),
                              's_add_u32 %s, %s, %d' % (sr(sT2), sr(sT2), (128 * 1152) if s.role == 'Y' else 0),
                              'buffer_load_dword %s, %s, %s, %s offen nt' % (vr(vDum), vr(vA), sr(sWo, 4), sr(sT2)),
                              'NOT_%s:' % s.tag]
                items += ['s_sub_u32 %s, %s, 1' % (sr(sCnt), sr(sCnt)), 's_cmp_lg_u32 %s, 0' % sr(sCnt),
                          's_cbranch_scc1 LOOP_%s' % s.tag]
        return items, rares, made[n:]

    def put(s, items, t, kind, par, rares):
        if t == 'BR_MAIN':
            items.append('s_cbranch_vccnz RARE_%s_%s%d' % (s.tag, kind, par))
        elif t == 'BR_REM':
            lab = 'RREJ_%s_%s' % (s.tag, kind)
            items.append('s_cbranch_vccnz RRARE_%s_%s' % (s.tag, kind))
            items.append(lab + ':')
            rares.append(('rem', lab, kind))
        else:
            items.append(t)

    def rare_blocks(s, text, rares):
        out = []
        for r in rares:
            if r[0] == 'main':
                _, a, b, lab, par, kind = r
                S = vS[par]
                seg = text[a:b]
                issoft = lambda t: t.startswith(('v_exp_f32', 'v_add_f32', 'v_cvt_pk'))
                inner = [t[:-1] for t in seg if t.endswith(':')]
                for il in inner:
                    seg = [t.replace(il + ':', il + 'r:') if t == il + ':' else (t + 'r' if t.endswith(' ' + il) else t) for t in seg]
                out.append('RARE_%s_%s%d:' % (s.tag, kind, par))
                out += [t for t in seg if not issoft(t)]
                out += xhalf_op(vMx, 'v_max_f32')
                out += ['v_max_f32 %s, 0, %s' % (vr(vMx), vr(vMx)),
                        'v_exp_f32 %s, -%s' % (vr(vA), vr(vMx))]
                out += ['v_sub_f32 %s, %s, %s' % (vr(S + i), vr(S + i), vr(vMx)) for i in range(16)]
                out += ['v_sub_f32 %s, %s, %s' % (vr(vNM + i), vr(vNM + i), vr(vMx)) for i in range(16)]
                out += ['v_mul_f32 %s, %s, %s' % (vr(x), vr(x), vr(vA)) for x in [vL0, s.vL1] + list(range(vO, vO + 64))]
                out += [t for t in seg if issoft(t)]
                out.append('s_branch %s' % lab)
            else:
                _, lab, kind = r
                out.append('RRARE_%s_%s:' % (s.tag, kind))
                out += x16_op(vC, 'v_max_f32') + xhalf_op(vC, 'v_max_f32')
                out += ['v_max_f32 %s, 0, %s' % (vr(vC), vr(vC)),
                        'v_exp_f32 %s, -%s' % (vr(vA), vr(vC))]
                out += ['v_sub_f32 %s, %s, %s' % (vr(vSr + i), vr(vSr + i), vr(vC)) for i in range(8)]
                out += ['v_sub_f32 %s, %s, %s' % (vr(vNMr + i), vr(vNMr + i), vr(vC)) for i in range(4)]
                out += ['v_mul_f32 %s, %s, %s' % (vr(x), vr(x), vr(vA)) for x in [vLr] + list(range(vOr, vOr + 32))]
                out.append('s_branch %s' % lab)
        return out

    def emit(s, p):
        tag = s.tag
        p.label('ATT_%s' % tag)
        pr = opt('prioh', 1) if s.heavy else opt('priol', 0)
        if pr or opt('qprio', 1):
            p('s_setprio %d' % pr)
        if s.heavy:
            p('v_lshlrev_b32 %s, 4, %s' % (vr(vA), vr(vLane)))
            p('v_add_u32 %s, %s, %s' % (vr(vA), sr(sQx), vr(vA)))
            for i in range(4):
                p('ds_read_b128 %s, %s offset:%d' % (vr(vQr + 4 * i, 4), vr(vA), i * 1024))
        qk0 = [sl[2](vF + 4 * k) for k, sl in enumerate(s.qk_slots(1, czero=True))]
        for mf, rd in qk0:
            p(rd[0])
        for k, (mf, rd) in enumerate(qk0):
            p('s_waitcnt lgkmcnt(%d)' % (7 - k))
            p(mf)
        for x in [vL0, s.vL1, vLr] + (list(range(vOr, vOr + 32)) if s.heavy else []):
            p('v_mov_b32 %s, 0' % vr(x))
        if s.role == 'X':
            p.ext(s.rem_addr(0))
        if s.loader:
            p('v_xor_b32 %s, 64, %s' % (vr(voffK1), vr(voffK)))
        if s.typ == 1:
            if s.heavy:
                p('s_waitcnt vmcnt(0)')
            p('s_lshl_b32 %s, %s, 6' % (sr(sT0), sr(sE)))
            p('s_add_u32 %s, %s, 0x%x' % (sr(sT0), sr(sT0), FLAGS))
            p('v_mov_b32 %s, %s' % (vr(s.vFb), sr(sT0))) if SOFT else None
            p('s_lshl_b32 %s, %s, 2' % (sr(sT1), sr(sWv)))
            p('s_add_u32 %s, %s, %s' % (sr(sT1), sr(sT1), sr(sT0)))
            p('v_mov_b32 %s, %s' % (vr(s.vFl), sr(sT1))) if SOFT else None
            if s.loader:
                p('s_and_b32 %s, %s, 1' % (sr(sT1), sr(sW8)))
                p('s_lshl_b32 %s, %s, 2' % (sr(sT1), sr(sT1)))
                p('s_add_u32 %s, %s, %s' % (sr(sT1), sr(sT1), sr(sT0)))
                p('v_mov_b32 v72, %s' % sr(sT1))
            p('s_mov_b32 %s, 0' % sr(sVal))
            p('s_mov_b32 %s, 0xc000' % sr(sVc))
        if LT and s.heavy and s.typ == 0:
            p('v_and_b32 v248, %d, %s' % ((1 << LT) - 1, vr(vLane)))
            p('v_lshlrev_b32 v248, 7, v248')
        if TLB and s.heavy:
            p('v_and_b32 v248, 1, %s' % vr(vLane))
            p('v_lshlrev_b32 v248, 12, v248')
            tb = (4 if s.role == 'X' else 2) if s.typ else (DDA if s.role == 'X' else DDA - 1)
            p('s_add_u32 %s, %s, 0x%x' % (sr(sSk0), sr(sRot), (tb + TLB) * 8192))
            for i in range(TLB):
                p('s_add_u32 %s, %s, 0x%x' % (sr(sT0), sr(sRot), (tb + 1 + i) * 8192))
                p('s_and_b32 %s, %s, 0x3ffff' % (sr(sT0), sr(sT0)))
                p('buffer_load_dword v255, v248, %s, %s offen nt' % (sr(sK if s.role == 'X' else sV, 4), sr(sT0)))
        for c, t in max_stream(vS[0], 16, vMx):
            p(t)
        p.ext(xhalf_op(vMx, 'v_max_f32'))
        for i in range(16):
            p('v_sub_f32 %s, 0, %s' % (vr(vNM + i), vr(vMx)))
        for i in range(16):
            p('v_sub_f32 %s, %s, %s' % (vr(vS[0] + i), vr(vS[0] + i), vr(vMx)))
        p('s_mov_b32 %s, 14' % sr(sCnt))
        fi, fr, _ = s.pair('first')
        li, lr, _ = s.pair('loop')
        la, lar, ep = s.pair('last')
        ft = resolve_waits(fi, [[]])
        lt = resolve_waits(li, [fi, li])
        lat = resolve_waits(la, [li])
        epi = []
        nread = LOOK
        for k, m in enumerate(ep):
            epi.append(('W', m[4]))
            epi.append(m[2])
            if nread < len(ep):
                for i, t in zip(ep[nread][4], ep[nread][3]):
                    epi.append(('R', i, t))
                nread += 1
        et = resolve_waits(epi, [la])
        p.ext(stamp(3))
        p.ext(ft)
        p.ext(stamp(4))
        p.label('LOOP_%s' % tag)
        if '--nocompute' in ARGS:
            p.ext([t for t in lt if not t.startswith(('v_', 'ds_', 's_cbranch_vcc', 's_waitcnt lgkm'))])
        elif '--prof' in ARGS:
            o = []
            nb = 0
            def timed(lines, acc):
                return (['s_memtime s[2:3]' if False else 's_memtime vcc', 's_waitcnt lgkmcnt(0)', 's_mov_b32 s3, vcc_lo'] + lines +
                        ['s_memtime vcc', 's_waitcnt lgkmcnt(0)', 's_sub_u32 s3, vcc_lo, s3', 's_add_u32 s%d, s%d, s3' % (acc, acc)])
            for t in lt:
                if t.startswith('s_waitcnt vmcnt') and '--prof2' not in ARGS:
                    o += timed([t], 88)
                elif t.startswith('buffer_load_dwordx4') and '--prof2' in ARGS:
                    nb += 1
                    o += (['s_nop 0'] + timed([t], 88 + 2 * ((nb >> 1) & 3))) if nb % 2 == 0 else [t]
                elif t == 's_barrier' and '--prof2' not in ARGS:
                    o += timed([t], 92 + 2 * (nb & 1 if s.typ else 0))
                    nb += 1
                else:
                    o.append(t)
            p.L.pop()
            for a in (88, 90, 92, 94):
                p('s_mov_b32 s%d, 0' % a)
            p.label('LOOP_%s' % tag)
            p.ext(o)
        elif '--nomem' in ARGS:
            p.ext([t for t in lt if not t.startswith(('buffer_load', 's_waitcnt vmcnt'))])
        else:
            p.ext(lt)
        p.ext(stamp(5))
        if s.loader:
            p.ext(voffwo_code(tWo, 2))
        p.ext(lat)
        p.ext(et)
        p.ext(stamp(6))
        p('v_add_f32 %s, %s, %s' % (vr(vL0), vr(vL0), vr(s.vL1)))
        p('s_branch TAIL_%s' % s.role)
        p.ext(s.rare_blocks(ft, fr) + s.rare_blocks(lt, lr) + s.rare_blocks(lat, lar))


def tail(p, role):
    heavy = role != 'L'
    p.label('TAIL_%s' % role)
    p('s_setprio 0')
    p.ext(xhalf_op(vL0, 'v_add_f32'))
    p('v_rcp_f32 %s, %s' % (vr(vL0), vr(vL0)))
    p('v_lshlrev_b32 %s, 4, %s' % (vr(vC), vr(vLane)))
    p('s_lshl_b32 %s, %s, 3' % (sr(sT0), sr(sTyp)))
    p('s_add_u32 %s, %s, %s' % (sr(sT0), sr(sT0), sr(sB)))
    p('s_lshl_b32 %s, %s, 4' % (sr(sT0), sr(sT0)))
    p('s_add_u32 %s, %s, %s' % (sr(sT0), sr(sT0), sr(sHP)))
    p('s_mul_i32 %s, %s, %d' % (sr(sT0), sr(sT0), OW_B))
    p('s_add_u32 %s, %s, %s' % (sr(sPt), sr(sWs), sr(sT0)))
    p('s_addc_u32 %s, %s, 0' % (sr(sPt + 1), sr(sWs + 1)))
    p('s_mov_b32 %s, %d' % (sr(sPt + 2), OW_B))
    p('s_mov_b32 %s, 0x20000' % sr(sPt + 3))
    if heavy:
        p.ext(x16_op(vLr, 'v_add_f32'))
        p.ext(xhalf_op(vLr, 'v_add_f32'))
        p('s_lshl_b32 %s, %s, 13' % (sr(sT0), sr(sE)))
        p('s_add_u32 %s, %s, %s' % (sr(sT0), sr(sT0), sr(sR + 2)))
        p('s_add_u32 %s, %s, 18432' % (sr(sT0), sr(sT0)))
        p('v_add_u32 %s, %s, %s' % (vr(vT[0]), sr(sT0), vr(vC)))
        p('s_lshl_b32 %s, %s, 10' % (sr(sT1), sr(sE)))
        p('s_add_u32 %s, %s, %s' % (sr(sT1), sr(sT1), sr(sR + 2)))
        p('s_add_u32 %s, %s, %d' % (sr(sT1), sr(sT1), 18432 + 16384))
        p('v_add_u32 %s, %s, %s' % (vr(vT[1]), sr(sT1), vr(vC)))
        if role == 'Y':
            for i in range(8):
                p('ds_write_b128 %s, %s offset:%d' % (vr(vT[0]), vr(vOr + 4 * i, 4), i * 1024))
            p('v_mov_b32 %s, %s' % (vr(vNMr + 1), vr(vLr)))
            p('ds_write_b128 %s, %s' % (vr(vT[1]), vr(vNMr, 4)))
    p('s_mul_i32 %s, %s, 36864' % (sr(sT0), sr(sE)))
    p('s_lshl_b32 %s, %s, 10' % (sr(sT1), sr(sWv)))
    p('s_add_u32 %s, %s, %s' % (sr(sT2), sr(sT0), sr(sT1)))
    p('v_add_u32 %s, %s, %s' % (vr(vMx), sr(sT2), vr(vC)))
    for jt in range(4):
        for i in range(16):
            p('v_mul_f32 %s, %s, %s' % (vr(vO + 16 * jt + i), vr(vO + 16 * jt + i), vr(vL0)))
        for i in range(8):
            p('v_cvt_pk_bf16_f32 %s, %s, %s' % (vr(vS[0] + 8 * jt + i), vr(vO + 16 * jt + 2 * i), vr(vO + 16 * jt + 2 * i + 1)))
        for u in range(2):
            p('s_mov_b32 %s, %d' % (sr(sT2), jt * 9216 + u * 4096))
            p('buffer_store_dwordx4 %s, %s, %s, %s offen sc1' % (vr(vS[0] + 8 * jt + 4 * u, 4), vr(vMx), sr(sPt, 4), sr(sT2)))
    p('s_cmp_eq_u32 %s, 0' % sr(sE))
    p('s_cselect_b32 %s, %s, %s' % (sr(sCur), sr(sR), sr(sR + 2)))
    p('s_cselect_b32 %s, %s, %s' % (sr(sWr), sr(sR + 1), sr(sR + 3)))
    p('v_add_u32 %s, %s, %s' % (vr(vA), sr(sT1), vr(vC)))
    p('v_add_u32 %s, %s, %s' % (vr(vB), sr(sWr), vr(vA)))
    p('v_add_u32 %s, %s, %s' % (vr(vA), sr(sCur), vr(vA)))
    p('s_waitcnt lgkmcnt(0)')
    p('s_barrier')
    p.ext(stamp('e1'))
    for jt in range(4):
        for u in range(2):
            p('ds_write_b128 %s, %s offset:%d' % (vr(vA if jt < 2 else vB), vr(vS[0] + 8 * jt + 4 * u, 4), (jt & 1) * 9216 + u * 4096))
    if role == 'X':
        for i in range(8):
            p('ds_read_b128 %s, %s offset:%d' % (vr(vO + 4 * i, 4), vr(vT[0]), i * 1024))
        p('ds_read_b128 %s, %s' % (vr(vO + 32, 4), vr(vT[1])))
        p('s_waitcnt lgkmcnt(0)')
        ym, yl = vO + 32, vO + 33
        p('v_min_f32 %s, %s, %s' % (vr(vMx), vr(vNMr), vr(ym)))
        p('v_sub_f32 %s, %s, %s' % (vr(vA), vr(vMx), vr(vNMr)))
        p('v_sub_f32 %s, %s, %s' % (vr(vB), vr(vMx), vr(ym)))
        p('v_exp_f32 %s, %s' % (vr(vA), vr(vA)))
        p('v_exp_f32 %s, %s' % (vr(vB), vr(vB)))
        p('s_nop 0')
        p('v_mul_f32 %s, %s, %s' % (vr(vLr), vr(vLr), vr(vA)))
        p('v_fmac_f32 %s, %s, %s' % (vr(vLr), vr(yl), vr(vB)))
        p('v_rcp_f32 %s, %s' % (vr(vLr), vr(vLr)))
        p('s_nop 0')
        p('v_mul_f32 %s, %s, %s' % (vr(vA), vr(vA), vr(vLr)))
        p('v_mul_f32 %s, %s, %s' % (vr(vB), vr(vB), vr(vLr)))
        for i in range(32):
            p('v_mul_f32 %s, %s, %s' % (vr(vOr + i), vr(vOr + i), vr(vA)))
            p('v_fmac_f32 %s, %s, %s' % (vr(vOr + i), vr(vO + i), vr(vB)))
        for i in range(16):
            p('v_cvt_pk_bf16_f32 %s, %s, %s' % (vr(vO + 40 + i), vr(vOr + 2 * i), vr(vOr + 2 * i + 1)))
        p('v_add_u32 %s, %s, %s' % (vr(vA), sr(sCur), vr(vC)))
        p('v_add_u32 %s, %s, %s' % (vr(vB), sr(sWr), vr(vC)))
        p('v_add_u32 %s, %s, %s' % (vr(vMx), sr(sT0), vr(vC)))
        for jt in range(4):
            p('ds_write_b128 %s, %s offset:%d' % (vr(vA if jt < 2 else vB), vr(vO + 40 + 4 * jt, 4), (jt & 1) * 9216 + 8192))
            p('s_mov_b32 %s, %d' % (sr(sT2), jt * 9216 + 8192))
            p('buffer_store_dwordx4 %s, %s, %s, %s offen sc1' % (vr(vO + 40 + 4 * jt, 4), vr(vMx), sr(sPt, 4), sr(sT2)))
    if role == 'L':
        p('s_waitcnt vmcnt(8)')
    if role != 'Y':
        p('s_branch TAILC')


def tail_common(p):
    p.label('TAILC')
    L = vLane
    ta, tb, tc = 200, 201, 202
    p('s_lshr_b32 %s, %s, 2' % (sr(sS), sr(sHP)))
    p('s_and_b32 %s, %s, 3' % (sr(sJ), sr(sHP)))
    p('v_bfe_u32 %s, %s, 2, 2' % (vr(ta), vr(L)))
    p('v_lshrrev_b32 %s, 5, %s' % (vr(tb), vr(L)))
    p('v_lshl_add_u32 %s, %s, 2, %s' % (vr(tb), vr(tb), vr(ta)))
    p('v_mul_u32_u24 %s, 0x140, %s' % (vr(tb), vr(tb)))
    p('v_and_b32 %s, 3, %s' % (vr(tc), vr(L)))
    p('v_lshl_add_u32 %s, %s, 3, %s' % (vr(tb), vr(tc), vr(tb)))
    p('v_bfe_u32 %s, %s, 4, 1' % (vr(ta), vr(L)))
    p('v_lshl_add_u32 %s, %s, 5, %s' % (vr(tb), vr(ta), vr(tb)))
    p('s_mul_i32 %s, %s, 192' % (sr(sT0), sr(sE)))
    p('s_add_u32 %s, %s, 18432' % (sr(sT0), sr(sT0)))
    p('v_add_u32 %s, %s, %s' % (vr(tRa), sr(sT0), vr(tb)))
    p('s_lshl_b32 %s, %s, 10' % (sr(sT0), sr(sWv)))
    p('v_add_u32 %s, %s, %s' % (vr(tRb), sr(sT0), vr(vC)))
    p('v_add_u32 %s, 0x2000, %s' % (vr(tRrb), vr(vC)))
    p('v_lshrrev_b32 %s, 2, %s' % (vr(tb), vr(L)))
    p('v_mul_u32_u24 %s, 0x140, %s' % (vr(tb), vr(tb)))
    p('v_lshl_add_u32 %s, %s, 3, %s' % (vr(tb), vr(tc), vr(tb)))
    p('s_mul_i32 %s, %s, 3' % (sr(sCv), sr(sWv)))
    p('s_min_u32 %s, %s, 7' % (sr(sCv), sr(sCv)))
    p('s_lshl_b32 %s, %s, 5' % (sr(sT0), sr(sCv)))
    p('s_add_u32 %s, %s, 18432' % (sr(sT0), sr(sT0)))
    p('v_add_u32 %s, %s, %s' % (vr(tRra), sr(sT0), vr(tb)))
    p('s_mul_i32 %s, %s, 24576' % (sr(sT0), sr(sE)))
    p('s_lshl_b32 %s, %s, 11' % (sr(sT1), sr(sWv)))
    p('s_add_u32 %s, %s, %s' % (sr(sT0), sr(sT0), sr(sT1)))
    p('v_add_u32 %s, %s, %s' % (vr(tPm), sr(sT0), vr(vC)))
    p('v_add_u32 %s, 0xa000, %s' % (vr(tPr), vr(vC)))
    p('v_and_b32 %s, 3, %s' % (vr(ta), vr(L)))
    p('s_lshl_b32 %s, %s, 2' % (sr(sT0), sr(sS)))
    p('v_add_u32 %s, %s, %s' % (vr(tb), sr(sT0), vr(ta)))
    p('v_lshl_add_u32 %s, %s, 2, %s' % (vr(tc), vr(ta), sr(sJ)))
    p('s_lshl_b32 %s, %s, 8' % (sr(sT0), sr(sHP)))
    p('v_lshl_add_u32 %s, %s, 2, %s' % (vr(tPo1), vr(tb), sr(sT0)))
    p('v_lshl_add_u32 %s, %s, 2, %s' % (vr(tPo2), vr(tc), sr(sT0)))
    p('s_lshl_b32 %s, %s, 2' % (sr(sT0), sr(sHP)))
    p('v_lshl_add_u32 %s, %s, 8, %s' % (vr(tFo1), vr(tb), sr(sT0)))
    p('v_lshl_add_u32 %s, %s, 8, %s' % (vr(tFo2), vr(tc), sr(sT0)))
    p('v_mov_b32 %s, 0x7f000000' % vr(ta))
    p('v_cmp_gt_u32 vcc, 4, %s' % vr(L))
    p('v_cndmask_b32 %s, %s, %s, vcc' % (vr(tFo1), vr(ta), vr(tFo1)))
    p('v_cndmask_b32 %s, %s, %s, vcc' % (vr(tFo2), vr(ta), vr(tFo2)))
    p('s_lshl_b32 %s, %s, 3' % (sr(sT0), sr(sTyp)))
    p('s_add_u32 %s, %s, %s' % (sr(sT0), sr(sT0), sr(sB)))
    p('s_lshl_b32 %s, %s, 2' % (sr(sT1), sr(sT0)))
    p('s_add_u32 %s, %s, %s' % (sr(sT2), sr(sT1), sr(sS)))
    p('s_lshl_b32 %s, %s, 2' % (sr(sT2), sr(sT2)))
    p('v_mov_b32 %s, %s' % (vr(tDb1), sr(sT2)))
    p('s_add_u32 %s, %s, %s' % (sr(sT2), sr(sT1), sr(sJ)))
    p('s_lshl_b32 %s, %s, 2' % (sr(sT2), sr(sT2)))
    p('v_mov_b32 %s, %s' % (vr(tDb2), sr(sT2)))
    p('s_mov_b32 %s, %s' % (sr(sW), sr(sDbg)))
    p('s_mov_b32 %s, %s' % (sr(sW + 1), sr(sDbg + 1)))
    p('s_mov_b32 %s, 256' % sr(sW + 2))
    p('s_mov_b32 %s, 0x20000' % sr(sW + 3))
    p('s_lshl_b32 %s, %s, 4' % (sr(sT0), sr(sT0)))
    p('s_lshl_b32 %s, %s, 2' % (sr(sT1), sr(sS)))
    p('s_add_u32 %s, %s, %s' % (sr(sT1), sr(sT1), sr(sT0)))
    p('s_mul_i32 %s, %s, %d' % (sr(sT1), sr(sT1), OW_B))
    p('s_add_u32 %s, %s, %s' % (sr(sK), sr(sWs), sr(sT1)))
    p('s_addc_u32 %s, %s, 0' % (sr(sK + 1), sr(sWs + 1)))
    p('s_mov_b32 %s, %d' % (sr(sK + 2), 4 * OW_B))
    p('s_mov_b32 %s, 0x20000' % sr(sK + 3))
    p('s_add_u32 %s, %s, %s' % (sr(sT1), sr(sT0), sr(sHP)))
    p('s_mul_i32 %s, %s, %d' % (sr(sT1), sr(sT1), PART_B))
    p('s_add_u32 %s, %s, 0x%x' % (sr(sT1), sr(sT1), POFF))
    p('s_add_u32 %s, %s, %s' % (sr(sV), sr(sWs), sr(sT1)))
    p('s_addc_u32 %s, %s, 0' % (sr(sV + 1), sr(sWs + 1)))
    p('s_mov_b32 %s, %d' % (sr(sV + 2), PART_B))
    p('s_mov_b32 %s, 0x20000' % sr(sV + 3))
    p('s_add_u32 %s, %s, %s' % (sr(sT1), sr(sT0), sr(sJ)))
    p('s_mul_i32 %s, %s, %d' % (sr(sT1), sr(sT1), PART_B))
    p('s_add_u32 %s, %s, 0x%x' % (sr(sT1), sr(sT1), POFF))
    p('s_add_u32 %s, %s, %s' % (sr(sG), sr(sWs), sr(sT1)))
    p('s_addc_u32 %s, %s, 0' % (sr(sG + 1), sr(sWs + 1)))
    p('s_mov_b32 %s, %d' % (sr(sG + 2), 13 * PART_B))
    p('s_mov_b32 %s, 0x20000' % sr(sG + 3))
    p('s_cmp_eq_u32 %s, 0' % sr(sE))
    p('s_cbranch_scc1 OUTP_0')
    p.ext(voffwo_code(128, 4))
    p('s_lshl_b32 %s, %s, 10' % (sr(sMb), sr(sWv)))
    p('s_cmp_lt_u32 %s, 2' % sr(sWv))
    p('s_cselect_b32 %s, 0, 0x%x' % (sr(sMw), LDS_DROP))


def gpoll(lab, ph, po, db, shift):
    return ['s_mov_b32 %s, 3000' % sr(sCnt),
            'RTP%s:' % lab,
            'buffer_load_dword %s, %s, %s, 0 offen sc1' % (vr(tPd), vr(po), sr(sFl, 4)),
            's_waitcnt vmcnt(0)',
            'v_cmp_gt_u32 vcc, %d, %s' % (ph, vr(tPd)),
            's_cbranch_vccz OKP%s' % lab,
            's_sleep 2',
            's_sub_u32 %s, %s, 1' % (sr(sCnt), sr(sCnt)),
            's_cmp_lg_u32 %s, 0' % sr(sCnt),
            's_cbranch_scc1 RTP%s' % lab,
            's_mov_b32 %s, 100000' % sr(sCnt),
            'RTQ%s:' % lab,
            'buffer_load_dword %s, %s, %s, 0 offen sc1' % (vr(tPd), vr(db), sr(sW, 4)),
            's_waitcnt vmcnt(0)',
            'v_bfe_u32 %s, %s, %d, 8' % (vr(tPd), vr(tPd), shift),
            'v_cmp_gt_u32 vcc, 4, %s' % vr(tPd),
            's_cbranch_vccz OKP%s' % lab,
            's_sleep 8',
            's_sub_u32 %s, %s, 1' % (sr(sCnt), sr(sCnt)),
            's_cmp_lg_u32 %s, 0' % sr(sCnt),
            's_cbranch_scc1 RTQ%s' % lab,
            'OKP%s:' % lab]


def gpublish(lab, wave, ph, fo, db, inc):
    return ['s_cmp_lg_u32 %s, %d' % (sr(sW8), wave), 's_cbranch_scc1 NOPUB%s' % lab,
            'v_mov_b32 %s, %d' % (vr(tFv), ph),
            'buffer_store_dword %s, %s, %s, 0 offen sc1' % (vr(tFv), vr(fo), sr(sFl, 4)),
            'v_mov_b32 %s, 0x%x' % (vr(tPd), inc),
            's_mov_b64 exec, 1',
            'buffer_atomic_add %s, %s, %s, 0 offen sc1' % (vr(tPd), vr(db), sr(sW, 4)),
            's_mov_b64 exec, -1',
            'NOPUB%s:' % lab]


def o_stage_dma(st):
    pre = ['s_add_u32 %s, %s, %d' % (sr(sT1), sr(sJ), st >> 2),
           's_and_b32 %s, %s, 3' % (sr(sT1), sr(sT1)),
           's_mul_i32 %s, %s, %d' % (sr(sT1), sr(sT1), OW_B),
           's_add_u32 %s, %s, %d' % (sr(sT1), sr(sT1), (st & 3) * 18432),
           's_add_u32 m0, %s, %s' % (sr(sR + st % 4), sr(sMb)), 's_nop 0']
    g = []
    for i in range(5):
        if i:
            pre = ['s_add_u32 m0, m0, 0x1000', 's_add_u32 %s, %s, 0x1000' % (sr(sT1), sr(sT1))]
            if i == 4:
                pre.append('s_max_u32 m0, m0, %s' % sr(sMw))
                pre.append('s_nop 0')
        g.append(pre + ['buffer_load_dwordx4 %s, %s, %s offen sc1 lds' % (vr(tRb), sr(sK, 4), sr(sT1))])
    return g


def outproj(p, e):
    if e == opt('oprio', 1):
        pass
    if e == 0:
        p.label('OUTP_0')
    if e == opt('oprio', 1):
        p('s_setprio 1')
    if e == 0:
        p.ext(wo_touch_voff(187, 188))
    NS = 16
    LK = 5
    nt = 3 if e == 0 else 2
    slots = []
    first_of = {}
    for st in range(NS):
        first_of[st] = len(slots)
        for ks in range(4):
            kk = 4 * st + ks
            Bq = tB + 4 * (kk % 4)
            for t in range(nt):
                def mk(f, ks=ks, kk=kk, t=t, Bq=Bq):
                    c = '0' if kk == 0 else vr(tAcc + 16 * t, 16)
                    mf = 'v_mfma_f32_32x32x16_bf16 %s, %s, %s, %s' % (vr(tAcc + 16 * t, 16), vr(f, 4), vr(Bq, 4), c)
                    rd = ['ds_read_b64_tr_b16 %s, %s offset:%d' % (vr(f + 2 * pp, 2), vr(tCa), ks * 5120 + pp * 2560 + t * 64) for pp in range(2)]
                    if t == 0:
                        rd.append('ds_read_b128 %s, %s offset:%d' % (vr(Bq, 4), vr(tCb), (ks >> 1) * 9216 + (ks & 1) * 4096))
                    return mf, rd
                slots.append((st, 'big', mk))
            if (ks & 1) and e == 1:
                m = ks >> 1
                mm = 2 * st + m
                Rq = tRB + 4 * (mm & 1)
                for i in range(3):
                    def mk(f, m=m, mm=mm, i=i, Rq=Rq):
                        c = '0' if mm == 0 else vr(tRac + 4 * i, 4)
                        mf = 'v_mfma_f32_16x16x32_bf16 %s, %s, %s, %s' % (vr(tRac + 4 * i, 4), vr(f, 4), vr(Rq, 4), c)
                        rd = ['ds_read_b64_tr_b16 %s, %s offset:%d' % (vr(f + 2 * pp, 2), vr(tCra), m * 10240 + pp * 5120 + i * 32) for pp in range(2)]
                        if i == 0:
                            rd.append('ds_read_b128 %s, %s offset:%d' % (vr(Rq, 4), vr(tCrb), m * 9216))
                        return mf, rd
                    slots.append((st, 'small', mk))
    n = len(slots)
    made = []
    for k, (st, cls, mk) in enumerate(slots):
        mf, rd = mk(tF + 4 * (k % 8))
        made.append((st, cls, mf, rd, ['o%d_%d' % (k, i) for i in range(len(rd))]))
    items = []
    vmq = []
    nread = 0
    opened = -1
    pend = []

    def emit_reads(upto):
        nonlocal nread
        while nread <= upto and nread < n and made[nread][0] <= opened:
            for i, t in zip(made[nread][4], made[nread][3]):
                items.append(('R', i, t))
            nread += 1

    def vm(lines, tag):
        for t in lines:
            items.append(t)
            if t.startswith('buffer_'):
                vmq.append(tag)

    def open_stage(st, k):
        nonlocal opened
        assert not any(tag[1] == st for g, tag in pend)
        w = 's_waitcnt lgkmcnt(0)'
        idx = [i for i, t in enumerate(vmq) if t[1] == st]
        if st == PUBST:
            w = 's_waitcnt vmcnt(%d) lgkmcnt(0)' % (len(vmq) - 1 - max(idx) if idx else len(vmq))
        elif idx:
            w = 's_waitcnt vmcnt(%d) lgkmcnt(0)' % (len(vmq) - 1 - max(idx))
        for c, r in ((tCa, tRa), (tCb, tRb)) + (((tCra, tRra), (tCrb, tRrb)) if e else ()):
            items.append('v_add_u32 %s, %s, %s' % (vr(c), sr(sR + st % 4), vr(r)))
        items.append(w)
        items.append('s_barrier')
        opened = st
        items.extend(stamp('s%d' % st))
        emit_reads(k + LK)
        if e == 0:
            if WOT and st % 2 == 0 and 8 <= st + WTD < NS:
                pend.append((['s_cmp_lg_u32 %s, 0' % sr(sW8), 's_cbranch_scc1 NWT%d' % st] + wo_row(st + WTD) +
                             ['buffer_load_dword %s, %s, %s, %s offen nt' % (vr(vDum), vr(187), sr(sWo, 4), sr(sT2)), 'NWT%d:' % st], ('poll', 99)))
            return
        if st == PUBST:
            items.extend(gpublish('1', 4, 1, tFo1, tDb1, 1))
        if st == 0:
            for s2 in (2, 3):
                pend.extend((g, ('wo', s2)) for g in wo_stage_dma(s2, 128))
            return
        if st + 3 < NS:
            pend.extend((g, ('wo', st + 3)) for g in wo_stage_dma(st + 3, 128))
        if st == PUBST:
            pend.append((gpoll('1', 1, tPo1, tDb1, 0), ('poll', -1)))
            for s2 in range(4, st + 3):
                pend.extend((g, ('O', s2)) for g in o_stage_dma(s2))
        if st >= PUBST and st + 3 < NS:
            pend.extend((g, ('O', st + 3)) for g in o_stage_dma(st + 3))

    open_stage(0, -1)
    BG = 3
    for k in range(n):
        st, cls, mf, rd, ids = made[k]
        items.append(('W', ids))
        items.append(mf)
        emit_reads(k + LK)
        if st + 1 < NS and k == first_of[st + 1] - 1 - BG:
            must = [x for x in pend if x[1][1] <= st + 1]
            assert must == pend[:len(must)]
            for g, tag in must:
                pend.remove((g, tag))
                (items.extend(g) if tag[0] == 'poll' else vm(g, tag))
            open_stage(st + 1, k)
        elif pend:
            for _ in range(2 if len(pend) > 9 else 1):
                g, tag = pend.pop(0)
                if tag[0] == 'poll':
                    items.extend(g)
                else:
                    vm(g, tag)
    assert not pend
    for t in range(nt):
        for hh in range(2):
            b = tAcc + 16 * t + 8 * hh
            items += ['v_cvt_pk_bf16_f32 %s, %s, %s' % (vr(b + j), vr(b + 2 * j), vr(b + 2 * j + 1)) for j in range(4)]
            items += ['s_mov_b32 %s, 0x%x' % (sr(sT1), t * 8192),
                      'buffer_store_dwordx4 %s, %s, %s, %s offen offset:%d sc1' % (vr(b, 4), vr(tPm), sr(sV, 4), sr(sT1), hh * 1024)]
    if e:
        for i in range(3):
            b = tRac + 4 * i
            items += ['v_cvt_pk_bf16_f32 %s, %s, %s' % (vr(b + j), vr(b + 2 * j), vr(b + 2 * j + 1)) for j in range(2)]
            items += ['s_add_u32 %s, %s, %d' % (sr(sT0), sr(sCv), i),
                      's_lshr_b32 %s, %s, 1' % (sr(sT1), sr(sT0)),
                      's_lshl_b32 %s, %s, 10' % (sr(sT1), sr(sT1)),
                      's_and_b32 %s, %s, 1' % (sr(sT0), sr(sT0)),
                      's_lshl_b32 %s, %s, 3' % (sr(sT0), sr(sT0)),
                      's_add_u32 %s, %s, %s' % (sr(sT1), sr(sT1), sr(sT0)),
                      'buffer_store_dwordx2 %s, %s, %s, %s offen sc1' % (vr(b, 2), vr(tPr), sr(sV, 4), sr(sT1))]
    p.ext(resolve_waits(items, [[]]))
    if e:
        p('s_branch SYNC')


def sync_reduce(p):
    U, VO, A0, acc = 128, [130, 131], [132, 134], [136, 148]
    t = [160, 161, 162, 163, 164, 165]
    p.label('SYNC')
    p.ext(stamp(7))
    p('s_lshr_b32 %s, %s, 1' % (sr(sT2), sr(sJ)))
    p('s_lshl_b32 %s, %s, 2' % (sr(sT1), sr(sJ)))
    p('s_add_u32 %s, %s, %s' % (sr(sT2), sr(sT2), sr(sT1)))
    p('s_lshl_b32 %s, %s, 6' % (sr(sT2), sr(sT2)))
    p('s_mul_i32 %s, %s, %d' % (sr(sT0), sr(sB), 144 * 2304))
    p('s_mul_i32 %s, %s, 1152' % (sr(sT1), sr(sTyp)))
    p('s_add_u32 %s, %s, %s' % (sr(sT1), sr(sT1), sr(sT2)))
    p('s_add_u32 %s, %s, %s' % (sr(sT0), sr(sT0), sr(sT1)))
    p('s_add_u32 %s, %s, %s' % (sr(sX), sr(sOut), sr(sT0)))
    p('s_addc_u32 %s, %s, 0' % (sr(sX + 1), sr(sOut + 1)))
    p('s_sub_u32 %s, %d, %s' % (sr(sX + 2), 144 * 2304, sr(sT1)))
    p('s_mov_b32 %s, 0x20000' % sr(sX + 3))
    p('s_and_b32 %s, %s, 1' % (sr(sCur), sr(sJ)))
    for u in range(2):
        f, ln, q, n0, d1, x = t
        p('s_lshl_b32 %s, %s, 6' % (sr(sT0), sr(sW8)))
        p('s_add_u32 %s, %s, %d' % (sr(sT0), sr(sT0), 512 * u))
        p('v_add_u32 %s, %s, %s' % (vr(x), sr(sT0), vr(vLane)))
        p('v_mov_b32 %s, 0x2d0' % vr(q))
        p('v_cmp_gt_u32 %s, %s, %s' % (sr(sEx, 2), vr(q), vr(x)))
        p('s_mul_i32 %s, %s, 720' % (sr(sT0), sr(sS)))
        p('v_add_u32 %s, %s, %s' % (vr(U), sr(sT0), vr(x)))
        p('v_lshlrev_b32 %s, 4, %s' % (vr(VO[u]), vr(U)))
        p('v_lshrrev_b32 %s, 6, %s' % (vr(f), vr(U)))
        p('v_and_b32 %s, 63, %s' % (vr(ln), vr(U)))
        p('v_cmp_gt_u32 vcc, 40, %s' % vr(f))
        p('v_bfe_u32 %s, %s, 1, 2' % (vr(q), vr(f)))
        p('v_and_b32 %s, 31, %s' % (vr(x), vr(ln)))
        p('v_lshl_add_u32 %s, %s, 5, %s' % (vr(q), vr(q), vr(x)))
        p('v_lshrrev_b32 %s, 3, %s' % (vr(d1), vr(f)))
        p('v_lshlrev_b32 %s, 5, %s' % (vr(n0), vr(d1)))
        p('v_and_b32 %s, 1, %s' % (vr(x), vr(f)))
        p('v_lshl_add_u32 %s, %s, 4, %s' % (vr(n0), vr(x), vr(n0)))
        p('v_lshrrev_b32 %s, 5, %s' % (vr(x), vr(ln)))
        p('v_lshl_add_u32 %s, %s, 2, %s' % (vr(n0), vr(x), vr(n0)))
        p('v_mul_u32_u24 %s, 0x900, %s' % (vr(q), vr(q)))
        p('v_lshl_add_u32 %s, %s, 1, %s' % (vr(A0[u]), vr(n0), vr(q)))
        p('v_and_b32 %s, 15, %s' % (vr(q), vr(ln)))
        p('v_add_u32 %s, 0x80, %s' % (vr(q), vr(q)))
        p('v_mul_u32_u24 %s, 0x900, %s' % (vr(q), vr(q)))
        p('v_subrev_u32 %s, 40, %s' % (vr(f), vr(f)))
        p('v_lshlrev_b32 %s, 5, %s' % (vr(n0), vr(f)))
        p('v_lshrrev_b32 %s, 4, %s' % (vr(x), vr(ln)))
        p('v_lshl_add_u32 %s, %s, 2, %s' % (vr(n0), vr(x), vr(n0)))
        p('v_lshl_add_u32 %s, %s, 1, %s' % (vr(q), vr(n0), vr(q)))
        p('v_cndmask_b32 %s, %s, %s, vcc' % (vr(A0[u]), vr(q), vr(A0[u])))
        p('v_cndmask_b32 %s, %s, %s, vcc' % (vr(f), vr(f), vr(d1)))
        p('v_mov_b32 %s, 32' % vr(x))
        p('v_mov_b32 %s, 16' % vr(d1))
        p('v_cndmask_b32 %s, %s, %s, vcc' % (vr(d1), vr(x), vr(d1)))
        p('v_cmp_le_u32 vcc, %s, %s' % (sr(sCur), vr(f)))
        p('s_and_b64 %s, %s, vcc' % (sr(sEx, 2), sr(sEx, 2)))
        p('v_mov_b32 %s, 0x7f000000' % vr(x))
        p('v_cndmask_b32 %s, %s, %s, %s' % (vr(A0[u]), vr(x), vr(A0[u]), sr(sEx, 2)))
        p('v_cndmask_b32 %s, %s, %s, %s' % (vr(VO[u]), vr(x), vr(VO[u]), sr(sEx, 2)))
        p('v_add_u32 %s, %s, %s' % (vr(A0[u] + 1), vr(A0[u]), vr(d1)))
    p('s_waitcnt vmcnt(0)')
    p('s_barrier')
    p.ext(stamp(8))
    p.ext(gpublish('2', 0, 2, tFo2, tDb2, 0x100))
    p.ext(gpoll('2', 2, tPo2, tDb2, 8))
    p.ext(stamp(9))
    for u in range(2):
        for h in range(4):
            p('s_mov_b32 %s, %d' % (sr(sT1), h * 4 * PART_B))
            p('buffer_load_dwordx4 %s, %s, %s, %s offen sc1' % (vr(16 * u + 4 * h, 4), vr(VO[u]), sr(sG, 4), sr(sT1)))
    p('s_mov_b32 %s, 0x3f80' % sr(sT1))
    p('s_mov_b32 %s, 0x3f800000' % sr(sT2))
    for u in range(2):
        for h in range(4):
            p('s_waitcnt vmcnt(%d)' % (7 - 4 * u - h + 2 * u))
            for j in range(4):
                for hi, sel in ((0, sT1), (1, sT2)):
                    a = acc[u] + 2 * j + hi
                    p('v_dot2_f32_bf16 %s, %s, %s, %s' % (vr(a), vr(16 * u + 4 * h + j), sr(sel), '0' if h == 0 else vr(a)))
        for j in range(4):
            p('v_cvt_pk_bf16_f32 %s, %s, %s' % (vr(acc[u] + 8 + j), vr(acc[u] + 2 * j), vr(acc[u] + 2 * j + 1)))
        p('buffer_store_dwordx2 %s, %s, %s, 0 offen' % (vr(acc[u] + 8, 2), vr(A0[u]), sr(sX, 4)))
        p('buffer_store_dwordx2 %s, %s, %s, 0 offen' % (vr(acc[u] + 10, 2), vr(A0[u] + 1), sr(sX, 4)))
    if STAMP:
        p('s_waitcnt vmcnt(0)')
    p.ext(stamp(10))
    stamp_flush(p, 11)
    p.label('K_END')
    p('s_endpgm')


def kernel():
    p = P()
    p('s_cmp_ge_u32 s2, 256')
    p('s_cbranch_scc1 K_END')
    p('s_load_dwordx16 %s, s[0:1], 0x0' % sr(sKA, 16))
    p('s_load_dwordx4 %s, s[0:1], 0x40' % sr(sKA + 16, 4))
    p('s_load_dwordx4 %s, s[0:1], 0x50' % sr(sOut, 4))
    p('s_load_dwordx2 %s, s[0:1], 0x60' % sr(sWs, 2))
    if STAMP:
        p('s_memtime s[100:101]')
        p('s_memrealtime s[2:3]') if False else None
        p('s_memrealtime vcc')
        p('s_waitcnt lgkmcnt(0)')
        p('v_mov_b32 v12, vcc_lo')
        p('s_lshl_b32 s3, s2, 9')
        p('s_add_u32 s3, s3, 0x%x' % STAMP_OFF)
        p('s_add_u32 %s, %s, s3' % (sr(sG), sr(sWs)))
        p('s_addc_u32 %s, %s, 0' % (sr(sG + 1), sr(sWs + 1)))
        p('s_mov_b32 %s, 512' % sr(sG + 2))
        p('s_mov_b32 %s, 0x20000' % sr(sG + 3))
        p('v_and_b32 v13, 0x1c0, v0')
        p('buffer_store_dword v12, v13, %s, 0 offen offset:56' % sr(sG, 4))
    L = vLane
    p('v_and_b32 %s, 63, v0' % vr(L))
    p('v_lshrrev_b32 v1, 6, v0')
    p('s_and_b32 %s, s2, 7' % sr(sT0))
    p('v_readfirstlane_b32 %s, v1' % sr(sW8))
    p('s_lshr_b32 %s, s2, 3' % sr(sT1))
    p('s_bfe_u32 %s, %s, 0x30001' % (sr(sB), sr(sT1)))
    p('s_lshr_b32 %s, %s, 4' % (sr(sT2), sr(sT1)))
    p('s_lshl_b32 %s, %s, 1' % (sr(sT0), sr(sT0)))
    p('s_add_u32 %s, %s, %s' % (sr(sHP), sr(sT2), sr(sT0)))
    p('s_bcnt1_i32_b32 %s, %s' % (sr(sTyp), sr(sT1)))
    p('s_and_b32 %s, %s, 1' % (sr(sTyp), sr(sTyp)))
    p('s_lshr_b32 %s, %s, 2' % (sr(sE), sr(sW8)))
    p('s_and_b32 %s, %s, 3' % (sr(sWv), sr(sW8)))
    q4, r4, u, h, a_, c7, rd, tA, tB, tC, tV = range(1, 12)
    p('v_lshrrev_b32 %s, 4, %s' % (vr(q4), vr(L)))
    p('v_bfe_u32 %s, %s, 2, 2' % (vr(r4), vr(L)))
    p('v_and_b32 %s, 3, %s' % (vr(u), vr(L)))
    p('v_lshrrev_b32 %s, 5, %s' % (vr(h), vr(L)))
    p('v_bfe_u32 %s, %s, 4, 1' % (vr(a_), vr(L)))
    p('v_and_b32 %s, 7, %s' % (vr(c7), vr(L)))
    p('v_bfe_u32 %s, %s, 3, 2' % (vr(rd), vr(L)))
    p('v_lshlrev_b32 %s, 2, %s' % (vr(tA), vr(a_)))
    p('v_xor_b32 %s, %s, %s' % (vr(tA), vr(tA), vr(c7)))
    p('v_lshlrev_b32 %s, 4, %s' % (vr(tA), vr(tA)))
    p('v_lshl_add_u32 %s, %s, 7, %s' % (vr(tV), vr(h), vr(tA)))
    p('v_lshl_add_u32 %s, %s, 13, %s' % (vr(tA), vr(rd), vr(tV)))
    p('s_and_b32 %s, %s, 1' % (sr(sCnt), sr(sW8)))
    p('s_lshl_b32 %s, %s, 15' % (sr(sT0), sr(sCnt)))
    p('s_lshl_b32 %s, %s, 8' % (sr(sT1), sr(sE)))
    p('s_add_u32 %s, %s, %s' % (sr(sT0), sr(sT0), sr(sT1)))
    p('v_add_u32 %s, %s, %s' % (vr(voffW), sr(sT0), vr(tA)))
    p('s_sub_u32 %s, %s, 2' % (sr(sMx), sr(sW8)))
    p('v_lshrrev_b32 %s, 3, %s' % (vr(tC), vr(L)))
    p('v_mul_u32_u24 %s, 0x480, %s' % (vr(tC), vr(tC)))
    p('v_xor_b32 %s, %s, %s' % (vr(tB), vr(c7), vr(q4)))
    p('v_lshl_add_u32 %s, %s, 4, %s' % (vr(tA), vr(tB), vr(tC)))
    p('s_and_b32 %s, %s, 1' % (sr(sT0), sr(sW8)))
    p('s_lshl_b32 %s, %s, 2' % (sr(sT0), sr(sT0)))
    p('v_xor_b32 %s, %s, %s' % (vr(tA), sr(sT0), vr(tB)))
    p('v_lshl_add_u32 %s, %s, 4, %s' % (vr(tA), vr(tA), vr(tC)))
    p('s_mul_i32 %s, %s, 9216' % (sr(sT0), sr(sMx)))
    p('v_add_u32 %s, %s, %s' % (vr(voffX), sr(sT0), vr(tA)))
    p('s_lshl_b32 %s, %s, 2' % (sr(sT0), sr(sE)))
    p('v_xor_b32 %s, %s, %s' % (vr(tA), sr(sT0), vr(tB)))
    p('v_lshl_add_u32 %s, %s, 4, %s' % (vr(tA), vr(tA), vr(tC)))
    p('s_mul_i32 %s, %s, 9216' % (sr(sT0), sr(sE)))
    p('s_add_u32 %s, %s, %d' % (sr(sT0), sr(sT0), 128 * 1152))
    p('v_add_u32 %s, %s, %s' % (vr(voffX9), sr(sT0), vr(tA)))
    p('s_lshl_b32 %s, %s, 13' % (sr(sMw), sr(sE)))
    p('s_lshl_b32 %s, %s, 10' % (sr(sT0), sr(sCnt)))
    p('s_add_u32 %s, %s, %s' % (sr(sMw), sr(sMw), sr(sT0)))
    p('s_lshl_b32 %s, %s, 10' % (sr(sMx), sr(sMx)))
    p('s_lshl_b32 %s, %s, 10' % (sr(sQx), sr(sE)))
    p('s_add_u32 %s, %s, 0x4000' % (sr(sQx), sr(sQx)))
    p('s_lshl_b32 %s, %s, 5' % (sr(sT0), sr(sCnt)))
    p('s_mov_b32 %s, -1' % sr(sEx))
    p('s_mov_b32 %s, 0' % sr(sEx + 1))
    p('s_lshl_b64 %s, %s, %s' % (sr(sEx, 2), sr(sEx, 2), sr(sT0)))
    p('s_mul_i32 %s, s2, 5' % sr(sRot))
    p('s_lshr_b32 %s, s2, 5' % sr(sT0))
    p('s_add_u32 %s, %s, %s' % (sr(sRot), sr(sRot), sr(sT0)))
    p('s_lshl_b32 %s, %s, 4' % (sr(sT0), sr(sE)))
    p('s_mul_i32 %s, %s, %s' % (sr(sT0), sr(sT0), sr(sTyp)))
    p('s_add_u32 %s, %s, %s' % (sr(sRot), sr(sRot), sr(sT0)))
    if opt('rot', 0) == 1:
        p('s_mov_b32 %s, 0' % sr(sRot))
    elif opt('rot', 0) == 2:
        p('s_lshl_b32 %s, s2, 1' % sr(sRot))
        p('s_mul_i32 %s, %s, %s' % (sr(sT0), sr(sE), sr(sTyp)))
        p('s_add_u32 %s, %s, %s' % (sr(sRot), sr(sRot), sr(sT0)))
        p('s_mul_i32 %s, %s, 0x9e3779b1' % (sr(sRot), sr(sRot)))
        p('s_lshr_b32 %s, %s, 27' % (sr(sRot), sr(sRot)))
    elif opt('rot', 0) == 3:
        p('s_lshr_b32 %s, s2, 3' % sr(sRot))
    p('s_and_b32 %s, %s, 31' % (sr(sRot), sr(sRot)))
    p('s_lshl_b32 %s, %s, 13' % (sr(sRot), sr(sRot)))
    p('s_waitcnt lgkmcnt(0)')
    p('s_cmp_eq_u32 %s, 0' % sr(sTyp))
    for i, srd in enumerate((sX, sK, sV, sW, sWo)):
        p('s_cselect_b64 %s, %s, %s' % (sr(srd, 2), sr(sKA + 2 * i, 2), sr(sKA + 10 + 2 * i, 2)))
    p('s_lshl_b32 %s, %s, 9' % (sr(sT0), sr(sHP)))
    p('s_add_u32 %s, %s, %s' % (sr(sW), sr(sW), sr(sT0)))
    p('s_addc_u32 %s, %s, 0' % (sr(sW + 1), sr(sW + 1)))
    p('s_sub_u32 %s, %d, %s' % (sr(sW + 2), 576 * 8192, sr(sT0)))
    p('s_mov_b32 %s, 0x20000' % sr(sW + 3))

    def w_groups(m0base, so):
        g = [[m0base, 's_nop 0', 'buffer_load_dwordx4 %s, %s, %s offen%s lds' % (vr(voffW), sr(sW, 4), sr(so), NTW)]]
        for i in range(1, 4):
            g.append(['s_add_u32 m0, m0, 0x800', 's_add_u32 %s, %s, 0x%x' % (sr(sT0), sr(so), i * 65536),
                      'buffer_load_dwordx4 %s, %s, %s offen%s lds' % (vr(voffW), sr(sW, 4), sr(sT0), NTW)])
        return g

    def x_groups(m0base, m0x9, so):
        g = [[m0base, 's_nop 0', 'buffer_load_dwordx4 %s, %s, %s offen%s lds' % (vr(voffX), sr(sX, 4), sr(so), NTW)]]
        for i in range(1, 4):
            g.append(['s_add_u32 m0, m0, 0x1000', 's_add_u32 %s, %s, 0x%x' % (sr(sT0), sr(so), i * 36864),
                      'buffer_load_dwordx4 %s, %s, %s offen%s lds' % (vr(voffX), sr(sX, 4), sr(sT0), NTW)])
        g.append([m0x9, 's_mov_b64 exec, %s' % sr(sEx, 2),
                  'buffer_load_dwordx4 %s, %s, %s offen%s lds' % (vr(voffX9), sr(sX, 4), sr(so), NTW),
                  's_mov_b64 exec, -1'])
        return g

    def w_static(n):
        p('s_mov_b32 %s, 0x%x' % (sr(sT1), n * 262144))
        for g in w_groups('s_add_u32 m0, %s, 0x%x' % (sr(sMw), (n % 6 // 2) * SUP + (n & 1) * WBUF), sT1):
            p.ext(g)

    def x_static(T):
        buf = (T % 3) * SUP + 2 * WBUF
        p('s_mov_b32 %s, 0x%x' % (sr(sT1), T * 128))
        for g in x_groups('s_add_u32 m0, %s, 0x%x' % (sr(sMx), buf), 's_add_u32 m0, %s, 0x%x' % (sr(sQx), buf), sT1):
            p.ext(g)

    def w_dyn():
        return w_groups('s_add_u32 m0, %s, %s' % (sr(sMw), sr(sBufW)), sSoW)

    def x_dyn():
        return x_groups('s_add_u32 m0, %s, %s' % (sr(sMx), sr(sXW)), 's_add_u32 m0, %s, %s' % (sr(sQx), sr(sXW)), sSoX)

    def touch():
        return ['buffer_load_dword %s, %s, %s, %s offen%s' % (vr(vDum), vr(voffT), sr(sTc, 4), sr(sTo), NTT),
                's_add_u32 %s, %s, %s' % (sr(sTo), sr(sTo), sr(sTs)),
                's_and_b32 %s, %s, 0x3ffff' % (sr(sTo), sr(sTo))]

    p('s_mul_i32 %s, %s, 165888' % (sr(sT0), sr(sB)))
    p('s_add_u32 %s, %s, %s' % (sr(sX), sr(sX), sr(sT0)))
    p('s_addc_u32 %s, %s, 0' % (sr(sX + 1), sr(sX + 1)))
    p('s_mov_b32 %s, 165888' % sr(sX + 2))
    p('s_mov_b32 %s, 0x20000' % sr(sX + 3))
    p('s_add_u32 %s, %s, 2' % (sr(sRole), sr(sW8)))
    p('s_and_b32 %s, %s, 7' % (sr(sRole), sr(sRole)))
    p('s_cmp_lt_u32 %s, 4' % sr(sRole))
    p('s_cbranch_scc1 INIT_H')
    w_static(0)
    w_static(1)
    x_static(0)
    w_static(2)
    w_static(3)
    x_static(1)
    w_static(4)
    p.label('INIT_H')
    p('s_lshl_b32 %s, %s, 4' % (sr(sT0), sr(sB)))
    p('s_add_u32 %s, %s, %s' % (sr(sT0), sr(sT0), sr(sHP)))
    p('s_lshl_b32 %s, %s, 1' % (sr(sT1), sr(sT0)))
    p('s_add_u32 %s, %s, %s' % (sr(sT1), sr(sT1), sr(sE)))
    p('s_cmp_eq_u32 %s, 0' % sr(sTyp))
    p('s_cselect_b32 %s, %s, %s' % (sr(sT0), sr(sT0), sr(sT1)))
    p('s_lshl_b32 %s, %s, 18' % (sr(sT0), sr(sT0)))
    for srd in (sK, sV):
        p('s_add_u32 %s, %s, %s' % (sr(srd), sr(srd), sr(sT0)))
        p('s_addc_u32 %s, %s, 0' % (sr(srd + 1), sr(srd + 1)))
        p('s_mov_b32 %s, 0x40000' % sr(srd + 2))
        p('s_mov_b32 %s, 0x20000' % sr(srd + 3))
    p('s_lshl_b32 %s, %s, 4' % (sr(sT0), sr(sB)))
    p('s_add_u32 %s, %s, %s' % (sr(sT0), sr(sT0), sr(sHP)))
    p('s_lshl_b32 %s, %s, 1' % (sr(sT0), sr(sT0)))
    p('s_add_u32 %s, %s, %s' % (sr(sT0), sr(sT0), sr(sE)))
    p('s_lshl_b32 %s, %s, 18' % (sr(sT0), sr(sT0)))
    p('s_cmp_eq_u32 %s, 0' % sr(sCnt))
    p('s_cselect_b64 %s, %s, %s' % (sr(sTc, 2), sr(sKA + 12, 2), sr(sKA + 14, 2)))
    p('s_cselect_b32 %s, 0x%x, 0x%x' % (sr(sTo), (TU0 + 1) if not LT else 5 + LTD, TU0 if not LT else 3 + LTD))
    p('s_add_u32 %s, %s, %s' % (sr(sTc), sr(sTc), sr(sT0)))
    p('s_addc_u32 %s, %s, 0' % (sr(sTc + 1), sr(sTc + 1)))
    p('s_cmp_eq_u32 %s, 0' % sr(sTyp))
    p('s_cselect_b32 %s, 0x40000, 0' % sr(sTc + 2))
    p('s_mov_b32 %s, 0x20000' % sr(sTc + 3))
    p('s_xor_b32 %s, s2, 8' % sr(sT0))
    p('s_mul_i32 %s, %s, 5' % (sr(sT1), sr(sT0)))
    p('s_lshr_b32 %s, %s, 5' % (sr(sT0), sr(sT0)))
    p('s_add_u32 %s, %s, %s' % (sr(sT1), sr(sT1), sr(sT0)))
    p('s_lshl_b32 %s, %s, 4' % (sr(sT0), sr(sE)))
    p('s_add_u32 %s, %s, %s' % (sr(sT1), sr(sT1), sr(sT0)))
    p('s_add_u32 %s, %s, %s' % (sr(sTo), sr(sTo), sr(sT1)))
    p('s_and_b32 %s, %s, 31' % (sr(sTo), sr(sTo)))
    p('s_lshl_b32 %s, %s, 13' % (sr(sTo), sr(sTo)))
    p('s_mov_b32 %s, 0x%x' % (sr(sTs), 1 << TSB))
    p('v_lshlrev_b32 %s, %d, %s' % (vr(voffT), TSB - 6, vr(L)))
    p('v_mov_b32 v72, 0')
    p('s_cmp_lt_u32 %s, 4' % sr(sRole))
    p('s_cbranch_scc0 INIT_J')
    for i in range(opt('t0', 4) if TOUCH else 0):
        p.ext(touch())
    p.label('INIT_J')
    p('s_sub_u32 %s, %s, 2' % (sr(sMb), sr(sW8)))
    p('s_and_b32 %s, %s, 3' % (sr(sMb), sr(sMb)))
    p('s_cmp_eq_u32 %s, 0' % sr(sTyp))
    p('s_cselect_b32 %s, %s, %s' % (sr(sMb), sr(sMb), sr(sCnt)))
    p('s_lshl_b32 %s, %s, 10' % (sr(sMb), sr(sMb)))
    p('v_lshl_add_u32 %s, %s, 8, %s' % (vr(tA), vr(rd), vr(tV)))
    p('v_add_u32 %s, %s, %s' % (vr(voffV), sr(sMb), vr(tA)))
    p('s_lshr_b32 %s, %s, 9' % (sr(sT0), sr(sMb)))
    p('v_xor_b32 %s, %s, %s' % (vr(tA), vr(c7), vr(a_)))
    p('v_xor_b32 %s, %s, %s' % (vr(tA), sr(sT0), vr(tA)))
    p('v_lshlrev_b32 %s, 4, %s' % (vr(tA), vr(tA)))
    p('v_lshl_add_u32 %s, %s, 7, %s' % (vr(tA), vr(h), vr(tA)))
    p('v_lshl_add_u32 %s, %s, 8, %s' % (vr(tA), vr(rd), vr(tA)))
    p('v_add_u32 %s, %s, %s' % (vr(voffK), sr(sMb), vr(tA)))
    p('s_lshl_b32 %s, %s, 13' % (sr(sCur), sr(sE)))
    p('s_mul_i32 %s, %s, %s' % (sr(sCur), sr(sCur), sr(sTyp)))
    p('s_mul_i32 %s, %s, 0x%x' % (sr(sDelta), sr(sTyp), VRING - 8192))
    p('s_add_u32 %s, %s, %s' % (sr(sDelta), sr(sDelta), sr(sCur)))
    p('s_mul_i32 %s, %s, 0xc000' % (sr(sWr), sr(sTyp)))
    p('v_bfe_u32 %s, %s, 1, 1' % (vr(tC), vr(L)))
    p('v_lshl_add_u32 %s, %s, 1, %s' % (vr(tV), vr(r4), vr(tC)))
    p('v_bfe_u32 %s, %s, 2, 3' % (vr(tA), vr(L)))
    p('v_lshlrev_b32 %s, 10, %s' % (vr(tA), vr(tA)))
    p('v_lshl_add_u32 %s, %s, 7, %s' % (vr(tA), vr(u), vr(tA)))
    p('v_xor_b32 %s, %s, %s' % (vr(tB), vr(h), vr(tV)))
    p('v_lshl_add_u32 %s, %s, 4, %s' % (vr(tA), vr(tB), vr(tA)))
    p('v_add_u32 %s, %s, %s' % (vr(vKa[0]), sr(sCur), vr(tA)))
    for i in range(1, 4):
        p('v_xor_b32 %s, 0x%x, %s' % (vr(vKa[i]), 32 * i, vr(vKa[0])))
    p('v_xor_b32 %s, %s, %s' % (vr(tB), vr(q4), vr(tV)))
    p('v_lshlrev_b32 %s, 4, %s' % (vr(tB), vr(tB)))
    p('v_lshl_add_u32 %s, %s, 7, %s' % (vr(tB), vr(u), vr(tB)))
    p('v_lshl_add_u32 %s, %s, 10, %s' % (vr(bKr), vr(r4), vr(tB)))
    p('v_add_u32 %s, %s, %s' % (vr(bKr), sr(sCur), vr(bKr)))
    tR = c7
    p('v_lshrrev_b32 %s, 1, %s' % (vr(tB), vr(r4)))
    p('v_lshlrev_b32 %s, 6, %s' % (vr(tB), vr(tB)))
    p('v_lshl_add_u32 %s, %s, 7, %s' % (vr(tR), vr(r4), vr(tB)))
    c0 = rd
    p('v_and_b32 %s, 1, %s' % (vr(c0), vr(L)))
    p('v_lshl_add_u32 %s, %s, 4, %s' % (vr(tA), vr(tC), vr(tR)))
    p('v_lshl_add_u32 %s, %s, 3, %s' % (vr(tA), vr(c0), vr(tA)))
    p('v_add_u32 %s, 0x2000, %s' % (vr(tA), vr(tA)))
    p('v_add_u32 %s, %s, %s' % (vr(tA), sr(sDelta), vr(tA)))
    p('v_lshl_add_u32 %s, %s, 10, %s' % (vr(bVr), vr(q4), vr(tA)))
    p('v_lshl_add_u32 %s, %s, 5, %s' % (vr(tA), vr(a_), vr(tA)))
    p('v_lshl_add_u32 %s, %s, 10, %s' % (vr(tA), vr(h), vr(tA)))
    p('v_add_u32 %s, %s, %s' % (vr(vVa[0]), sr(sWr), vr(tA)))
    p('s_add_u32 %s, %s, %s' % (sr(sMb), sr(sMb), sr(sCur)))
    p('s_mov_b32 %s, 0' % sr(sCur))
    p('v_xor_b32 %s, 64, %s' % (vr(vVa[1]), vr(vVa[0])))
    vWm, vWr, vXm, vXr = [qBase + i for i in range(4)]
    p('v_lshl_add_u32 %s, %s, 4, %s' % (vr(tA), vr(c0), vr(tR)))
    p('v_lshl_add_u32 %s, %s, 3, %s' % (vr(tA), vr(tC), vr(tA)))
    p('v_lshl_add_u32 %s, %s, 5, %s' % (vr(tA), vr(a_), vr(tA)))
    p('v_lshl_add_u32 %s, %s, 11, %s' % (vr(tA), vr(h), vr(tA)))
    p('s_lshl_b32 %s, %s, 13' % (sr(sT0), sr(sE)))
    p('v_add_u32 %s, %s, %s' % (vr(vWm), sr(sT0), vr(tA)))
    p('v_lshl_add_u32 %s, %s, 4, %s' % (vr(tA), vr(u), vr(tR)))
    p('s_and_b32 %s, %s, 1' % (sr(sT1), sr(sWv)))
    p('s_lshl_b32 %s, %s, 6' % (sr(sT1), sr(sT1)))
    p('v_xor_b32 %s, %s, %s' % (vr(tA), sr(sT1), vr(tA)))
    p('v_lshl_add_u32 %s, %s, 11, %s' % (vr(tA), vr(q4), vr(tA)))
    p('s_lshr_b32 %s, %s, 1' % (sr(sT1), sr(sWv)))
    p('s_lshl_b32 %s, %s, 9' % (sr(sT1), sr(sT1)))
    p('s_add_u32 %s, %s, %s' % (sr(sT1), sr(sT1), sr(sT0)))
    p('v_add_u32 %s, %s, %s' % (vr(vWr), sr(sT1), vr(tA)))
    p('v_bfe_u32 %s, %s, 1, 3' % (vr(tC), vr(L)))
    p('v_and_b32 %s, 31, %s' % (vr(tA), vr(L)))
    p('v_lshlrev_b32 %s, 7, %s' % (vr(tA), vr(tA)))
    p('v_xor_b32 %s, %s, %s' % (vr(tB), vr(h), vr(tC)))
    p('v_lshl_add_u32 %s, %s, 4, %s' % (vr(tA), vr(tB), vr(tA)))
    p('s_lshl_b32 %s, %s, 12' % (sr(sT1), sr(sWv)))
    p('s_add_u32 %s, %s, 0x8000' % (sr(sT1), sr(sT1)))
    p('v_add_u32 %s, %s, %s' % (vr(vXm), sr(sT1), vr(tA)))
    p('v_and_b32 %s, 15, %s' % (vr(tA), vr(L)))
    p('v_lshlrev_b32 %s, 7, %s' % (vr(tA), vr(tA)))
    p('v_xor_b32 %s, %s, %s' % (vr(tB), vr(q4), vr(tC)))
    p('v_lshl_add_u32 %s, %s, 4, %s' % (vr(tA), vr(tB), vr(tA)))
    p('v_add_u32 %s, 0xc000, %s' % (vr(vXr), vr(tA)))
    p('s_mov_b32 %s, %s' % (sr(sScale), f32(math.log2(math.e) / math.sqrt(128.0))))
    p('s_mov_b32 %s, %s' % (sr(sThr), f32(THR)))
    p('s_lshr_b32 %s, %s, 2' % (sr(sT0), sr(sHP)))
    p('s_mul_i32 %s, %s, %d' % (sr(sT0), sr(sT0), 1024 * 1152))
    p('s_and_b32 %s, %s, 3' % (sr(sT1), sr(sHP)))
    p('s_lshr_b32 %s, %s, 1' % (sr(sT2), sr(sT1)))
    p('s_lshl_b32 %s, %s, 2' % (sr(sT1), sr(sT1)))
    p('s_add_u32 %s, %s, %s' % (sr(sT1), sr(sT1), sr(sT2)))
    p('s_lshl_b32 %s, %s, 6' % (sr(sT1), sr(sT1)))
    p('s_add_u32 %s, %s, %s' % (sr(sT0), sr(sT0), sr(sT1)))
    p('s_add_u32 %s, %s, %s' % (sr(sWo), sr(sWo), sr(sT0)))
    p('s_addc_u32 %s, %s, 0' % (sr(sWo + 1), sr(sWo + 1)))
    p('s_sub_u32 %s, %d, %s' % (sr(sWo + 2), 1024 * 1152, sr(sT1)))
    p('s_mov_b32 %s, 0x20000' % sr(sWo + 3))
    p('s_lshl_b32 %s, %s, 3' % (sr(sT0), sr(sTyp)))
    p('s_add_u32 %s, %s, %s' % (sr(sT0), sr(sT0), sr(sB)))
    p('s_lshl_b32 %s, %s, 12' % (sr(sT0), sr(sT0)))
    p('s_add_u32 %s, %s, 0x%x' % (sr(sT0), sr(sT0), FLAG_OFF))
    p('s_add_u32 %s, %s, %s' % (sr(sFl), sr(sWs), sr(sT0)))
    p('s_addc_u32 %s, %s, 0' % (sr(sFl + 1), sr(sWs + 1)))
    p('s_mov_b32 %s, 4096' % sr(sFl + 2))
    p('s_mov_b32 %s, 0x20000' % sr(sFl + 3))
    p('s_cmp_lg_u32 %s, 0' % sr(sW8))
    p('s_cbranch_scc1 NOCLR')
    p('s_lshl_b32 %s, %s, 8' % (sr(sT0), sr(sHP)))
    p('v_mov_b32 %s, 0' % vr(tA))
    p('v_lshlrev_b32 %s, 2, %s' % (vr(tB), vr(L)))
    p('buffer_store_dword %s, %s, %s, %s offen sc1' % (vr(tA), vr(tB), sr(sFl, 4), sr(sT0)))
    p.label('NOCLR')
    p('s_cmp_eq_u32 %s, 0' % sr(sTyp))
    for i, (ra, rb) in enumerate(zip([1, 2, 3, 0], [1, 0, 2, 3])):
        p('s_mov_b32 %s, 0x%x' % (sr(sT0), ra * SB))
        p('s_cselect_b32 %s, %s, 0x%x' % (sr(sR + i), sr(sT0), rb * SB))
    for i in range(8):
        p('v_mov_b32 %s, 0' % vr(64 + i))
    p('s_mov_b32 %s, 0' % sr(sBufR))
    p('s_mov_b32 %s, 0x%x' % (sr(sBufW), 2 * SUP + WBUF))
    p('s_mov_b32 %s, 0x%x' % (sr(sSoW), 5 * 262144))
    p('s_mov_b32 %s, 0x%x' % (sr(sXW), 2 * SUP + 2 * WBUF))
    p('s_mov_b32 %s, 0x%x' % (sr(sSoX), 2 * 128))
    p('s_mov_b32 %s, 6' % sr(sCnt))

    cW0, cW1, cWr, cX0, cX1, cXr = [qCur + i for i in range(6)]

    def rd_set(ks):
        S = qSet[ks]
        o = []
        for jt in range(4):
            for pp in range(2):
                o.append('ds_read_b64_tr_b16 %s, %s offset:%d' % (vr(S + 4 * jt + 2 * pp, 2), vr(cW1 if jt & 1 else cW0), ks * 4096 + pp * 1024 + (jt >> 1) * 512))
        o.append('ds_read_b128 %s, %s' % (vr(S + 16, 4), vr(cX0 if ks == 0 else cX1)))
        return o

    def rd_rem():
        o = []
        for Ts in range(2):
            for pp in range(2):
                o.append('ds_read_b64_tr_b16 %s, %s offset:%d' % (vr(qRem + 4 * Ts + 2 * pp, 2), vr(cWr), pp * 1024 + 8 * Ts))
        o.append('ds_read_b128 %s, %s' % (vr(qRem + 8, 4), vr(cXr)))
        return o

    def mf_set(ks, init):
        S = qSet[ks]
        return ['v_mfma_f32_32x32x16_bf16 %s, %s, %s, %s' % (vr(16 * jt, 16), vr(S + 4 * jt, 4), vr(S + 16, 4), '0' if init else vr(16 * jt, 16)) for jt in range(4)]

    def mf_rem():
        return ['v_mfma_f32_16x16x32_bf16 %s, %s, %s, %s' % (vr(64 + 4 * Ts, 4), vr(qRem + 4 * Ts, 4), vr(qRem + 8, 4), vr(64 + 4 * Ts, 4)) for Ts in range(2)]

    def sub(cp, first, light, parts=None, nv=17, tailmode=False):
        if cp == 0:
            p('v_add_u32 %s, %s, %s' % (vr(cW0), sr(sBufR), vr(vWm)))
            p('v_add_u32 %s, %s, %s' % (vr(cWr), sr(sBufR), vr(vWr)))
            p('v_add_u32 %s, %s, %s' % (vr(cX0), sr(sBufR), vr(vXm)))
            p('v_add_u32 %s, %s, %s' % (vr(cXr), sr(sBufR), vr(vXr)))
        else:
            p('v_add_u32 %s, 0x4000, %s' % (vr(cW0), vr(cW0)))
            p('v_add_u32 %s, 0x4000, %s' % (vr(cWr), vr(cWr)))
            p('v_xor_b32 %s, 64, %s' % (vr(cX0), vr(cX0)))
            p('v_xor_b32 %s, 64, %s' % (vr(cXr), vr(cXr)))
        p('v_xor_b32 %s, 64, %s' % (vr(cW1), vr(cW0)))
        p('v_xor_b32 %s, 32, %s' % (vr(cX1), vr(cX0)))
        p('s_waitcnt vmcnt(%d) lgkmcnt(0)' % nv if (cp == 0 and light) else 's_waitcnt lgkmcnt(0)')
        p('s_barrier')
        if first:
            p.ext(stamp(1))
        p.ext(rd_set(0))
        if parts is None:
            parts = (w_dyn() + (x_dyn() if cp == 0 else [])) if light else ([touch()] if TOUCH else [])
        parts = list(parts)
        if not first:
            for i, m in enumerate(mf_set(1, False) + mf_rem()):
                p(m)
                if parts:
                    p.ext(parts.pop(0))
        else:
            for g in parts[:5]:
                p.ext(g)
            parts = parts[5:]
        r1 = rd_set(1) + rd_rem()
        p.ext(r1[:6])
        p('s_waitcnt lgkmcnt(6)')
        rest = r1[6:]
        upd = []
        if light and not tailmode:
            upd += ['s_add_u32 %s, %s, 0x%x' % (sr(sBufW), sr(sBufR), cp * WBUF),
                    's_add_u32 %s, %s, 0x40000' % (sr(sSoW), sr(sSoW)),
                    's_cmp_ge_u32 %s, 0x%x' % (sr(sSoW), 18 * 262144),
                    's_cselect_b32 %s, 0x%x, %s' % (sr(sBufW), LDS_DROP, sr(sBufW))]
            if cp == 1:
                upd += ['s_add_u32 %s, %s, 0x%x' % (sr(sXW), sr(sBufR), 2 * WBUF),
                        's_add_u32 %s, %s, 128' % (sr(sSoX), sr(sSoX))]
        if cp == 1:
            upd += ['s_add_u32 %s, %s, 0x%x' % (sr(sBufR), sr(sBufR), SUP),
                    's_cmp_ge_u32 %s, 0x%x' % (sr(sBufR), 3 * SUP),
                    's_cselect_b32 %s, 0, %s' % (sr(sBufR), sr(sBufR))]
        for i, m in enumerate(mf_set(0, first)):
            p(m)
            p.ext(rest[3 * i:3 * i + 3])
            if parts:
                p.ext(parts.pop(0))
        for g in parts:
            p.ext(g)
        p.ext(upd)

    def fill_units(typ, units):
        at = Attn(typ, 'L')
        fix = lambda g: [t.replace(vr(voffK1) + ',', vr(72) + ',') for t in g]
        out = []
        if typ == 1:
            for kind, i in units:
                so = sSk0 if kind == 'K' else sSv
                pre = ['s_add_u32 %s, %s, 0x%x' % (sr(so), sr(sRot), i * 8192), 's_and_b32 %s, %s, 0x3ffff' % (sr(so), sr(so)),
                       's_mov_b32 %s, 0x%x' % (sr(sWr), i * 16384)]
                if (kind, i) == ('K', 0):
                    pre = ['v_xor_b32 %s, 64, %s' % (vr(72), vr(voffK))] + pre
                cur = list(pre)
                for g in (at.k_dma(sWr, so) if kind == 'K' else at.v_dma(sWr, so)):
                    for t in fix(g):
                        cur.append(t)
                        if t.startswith('buffer_load'):
                            out.append(cur)
                            cur = []
            return out
        for un in units:
            d = [fix(g) for g in at.dma_singles()]
            if un == -1:
                d = d[:len(d) // 2]
                d[0] = ['v_xor_b32 %s, 64, %s' % (vr(72), vr(voffK)), 's_mov_b32 %s, %s' % (sr(sSk0), sr(sRot)),
                        's_mov_b32 %s, %s' % (sr(sWr), sr(sCur)), 's_mov_b32 %s, -1' % sr(sCv)] + d[0]
            else:
                d[0] = at.unit_adv() + ['s_add_u32 %s, %s, 0x%x' % (sr(sWr), sr(sCur), (un + 1) * at.stride)] + d[0]
            out += d
        return out

    p('s_cmp_lt_u32 %s, 4' % sr(sRole))
    p('s_cbranch_scc1 QH')
    for light in (True, False):
        if not light:
            p.label('QH')
        elif opt('qprio', 1):
            p('s_setprio 1')
        sub(0, True, light)
        sub(1, False, light)
        p.label('QLOOP%d' % light)
        sub(0, False, light)
        sub(1, False, light)
        p('s_sub_u32 %s, %s, 1' % (sr(sCnt), sr(sCnt)))
        p('s_cmp_lg_u32 %s, 0' % sr(sCnt))
        p('s_cbranch_scc1 QLOOP%d' % light)
        if light:
            p('s_cmp_eq_u32 %s, 0' % sr(sTyp))
            p('s_cbranch_scc0 QTB')
            for typ in (0, 1):
                if typ:
                    p.label('QTB')
                plan = [[-1, 0, 1], [2], [], []] if typ == 0 else [[('K', 0), ('K', 1), ('K', 2)], [('K', 3)], [('V', 0)], [('V', 1)]]
                if typ == 0:
                    plan = [[u for u in pl if u < DDA] for pl in plan]
                f = [fill_units(typ, pl) for pl in plan]
                sub(0, False, True, parts=f[0], nv=17, tailmode=True)
                sub(1, False, True, parts=f[1], tailmode=True)
                sub(0, False, True, parts=f[2], nv=4 + len(f[0]) + len(f[1]), tailmode=True)
                sub(1, False, True, parts=f[3], tailmode=True)
                p('s_branch QX')
        else:
            for T in range(2):
                sub(0, False, False, parts=[])
                sub(1, False, False, parts=[])
    p.label('QX')
    p('s_waitcnt lgkmcnt(0)')
    p('s_barrier')
    p.ext(stamp(2))
    p('s_add_u32 %s, %s, %s' % (sr(sT1), sr(sCur), sr(sMb)))
    p('s_lshl_b32 %s, %s, 12' % (sr(sT0), sr(sE)))
    p('s_mov_b32 %s, 0x2000' % sr(sT2))
    p('s_cmp_eq_u32 %s, 0' % sr(sTyp))
    p('s_cselect_b32 %s, %s, 0x%x' % (sr(sT2), sr(sT2), FLAGS + 1024))
    p('s_add_u32 %s, %s, %s' % (sr(sQx), sr(sT0), sr(sT2)))
    p('s_cmp_eq_u32 %s, 0' % sr(sTyp))
    p('s_cbranch_scc1 NOFLAGCLR')
    p('v_lshlrev_b32 %s, 2, %s' % (vr(vA), vr(vLane)))
    p('v_and_b32 %s, 0x7c, %s' % (vr(vA), vr(vA)))
    p('v_add_u32 %s, 0x%x, %s' % (vr(vA), FLAGS, vr(vA)))
    p('v_mov_b32 %s, 0' % vr(vB))
    p('ds_write_b32 %s, %s' % (vr(vA), vr(vB)))
    p.label('NOFLAGCLR')

    def rot_off(dst, off):
        return ['s_add_u32 %s, %s, 0x%x' % (sr(dst), sr(sRot), off), 's_and_b32 %s, %s, 0x3ffff' % (sr(dst), sr(dst))]

    def packq(nv):
        for i in range(36):
            p('v_pk_mul_f32 %s, %s, %s' % (vr(2 * i, 2), vr(2 * i, 2), sr(sScale, 2)))
        for i in range(32):
            p('v_cvt_pk_bf16_f32 %s, %s, %s' % (vr(vQ + i), vr(2 * i), vr(2 * i + 1)))
        for i in range(4):
            p('v_cvt_pk_bf16_f32 %s, %s, %s' % (vr(vQr + i), vr(64 + 2 * i), vr(64 + 2 * i + 1)))
        p('v_lshlrev_b32 %s, 4, %s' % (vr(vA), vr(vLane)))
        p('s_lshl_b32 %s, %s, 10' % (sr(sT0), sr(sWv)))
        p('s_add_u32 %s, %s, %s' % (sr(sT0), sr(sT0), sr(sQx)))
        p('v_add_u32 %s, %s, %s' % (vr(vA), sr(sT0), vr(vA)))
        p('ds_write_b128 %s, %s' % (vr(vA), vr(vQr, 4)))
        p('s_waitcnt vmcnt(%d) lgkmcnt(0)' % nv)
        p('s_barrier')

    def dispatch(T):
        p('s_add_u32 %s, %s, 2' % (sr(sT0), sr(sW8)))
        p('s_and_b32 %s, %s, 7' % (sr(sT0), sr(sT0)))
        p('s_cmp_ge_u32 %s, 4' % sr(sT0))
        p('s_cbranch_scc1 ATT_%sL' % T)
        p('s_bitcmp1_b32 %s, 0' % sr(sW8))
        p('s_cbranch_scc1 ATT_%sY' % T)

    for m in mf_set(1, False) + mf_rem():
        p(m)
    p('s_mov_b32 %s, %s' % (sr(sCnt), sr(sRole)))
    p('s_mov_b32 %s, %s' % (sr(sScale + 1), sr(sScale)))
    p('s_cmp_eq_u32 %s, 0' % sr(sTyp))
    p('s_cbranch_scc0 FILL_B')
    for typ, T in ((0, 'A'), (1, 'B')):
        if typ:
            p.label('FILL_B')
        at = Attn(typ, 'L')
        p('s_cmp_lt_u32 %s, 4' % sr(sCnt))
        p('s_cbranch_scc1 NOFILL_%s' % T)
        for g in fill_units(typ, range(3, at.DD) if typ == 0 else [('V', 2), ('K', 4)]):
            p.ext(g)
        p.label('NOFILL_%s' % T)
        packq(at.DD * at.nd)
        dispatch(T)
        for role in 'XLY':
            Attn(typ, role).emit(p)
    tail(p, 'L')
    tail(p, 'X')
    tail(p, 'Y')
    tail_common(p)
    outproj(p, 1)
    outproj(p, 0)
    sync_reduce(p)
    return p.L


def desc(name, vg, sg=102):
    return """.amdhsa_kernel %s
  .amdhsa_next_free_vgpr %d
  .amdhsa_next_free_sgpr %d
  .amdhsa_accum_offset %d
  .amdhsa_group_segment_fixed_size 0
  .amdhsa_kernarg_size 104
  .amdhsa_user_sgpr_count 2
  .amdhsa_user_sgpr_kernarg_segment_ptr 1
  .amdhsa_system_sgpr_workgroup_id_x 1
.end_amdhsa_kernel
""" % (name, vg, sg, (vg + 3) // 4 * 4)


def main():
    out_path = opt('o', 'cdna_kernels/%s.s' % NAME)
    kn = NAME + '_kernel'
    hdr = open('cdna_kernels/%s.s.ref' % NAME).read().split('; Override launch')[0]
    out = [hdr.rstrip('\n')]
    if '--list' in ARGS:
        out.append('; @launch kernel=%s grid=(256,1,1) block=(512,1,1) lds=%d' % (kn, LDS_TOTAL))
    else:
        out.append('; @launch grid=(256,1,1) block=(512,1,1) lds=%d' % LDS_TOTAL)
    out.append('.amdgcn_target "amdgcn-amd-amdhsa--gfx950"')
    out.append('.text')
    L2, tot = chk.fix_hazards(kernel(), verbose='-v' in ARGS)
    errs = [e for e in chk.check_waits(L2, ignore=('v%d' % vDum,)) if "['v%d']" % vDum not in e]
    if '--nomem' in ARGS or '--nocompute' in ARGS:
        errs = []
    print('%d lines, %d nop states inserted, %d wait errors' % (len(L2), tot, len(errs)))
    for e in errs[:20]:
        print('   ', e)
    out += ['.globl %s' % kn, '.p2align 8', '.type %s,@function' % kn, '%s:' % kn] + L2
    out.append('.section .rodata,"a"')
    out.append('.p2align 6')
    out.append(desc(kn, 256, 102))
    open(out_path, 'w').write('\n'.join(out) + '\n')


if __name__ == '__main__':
    main()
```

```python
import math
import struct
import sys

sys.path.insert(0, 'gen')
import chk

NAME = 'concat_heads__gqa_block_cached__mha_block_cached__near_ridge'
ARGS = sys.argv[1:]


def opt(name, default):
    for a in ARGS:
        if a.startswith('--%s=' % name):
            return type(default)(a.split('=')[1])
    return default


def f32(x):
    return '0x%08x' % struct.unpack('<I', struct.pack('<f', x))[0]


def vr(a, n=1):
    return 'v%d' % a if n == 1 else 'v[%d:%d]' % (a, a + n - 1)


def sr(a, n=1):
    return 's%d' % a if n == 1 else 's[%d:%d]' % (a, a + n - 1)


class P:
    def __init__(s):
        s.L = []

    def __call__(s, t):
        for x in t.strip('\n').split('\n'):
            x = x.strip()
            if x:
                s.L.append('    ' + x)

    def label(s, n):
        s.L.append(n + ':')

    def c(s, t):
        s.L.append('    ; ' + t)

    def ext(s, items):
        for x in items:
            if x.endswith(':'):
                s.L.append(x)
            else:
                s.L.append('    ' + x)


LDS_TOTAL = 163840
SLOT = 16384
PART_B = 46080
OW_B = 73728
POFF = 24 << 20
SB = 38912
FLAG_OFF = 48 << 20
LDS_DROP = 0x30000

vO = 0
vOr = 64
vQ = 96
vQr = 128
vS = [144, 160]
vNM = 176
vSr = 192
vNMr = 200
vF = 204
vL0, vLr = 236, 237
vKa = [238, 239, 240, 241]
vVa = [242, 243]
bKr, bVr = 244, 245
vT = [246, 247]
voffK, voffV = 248, 249
vMx, vA, vB, vC = 250, 251, 252, 253
vLane = 254
vDum = 255
voffWo = voffK
voffK1 = 64
qSet = [144, 164]
qRem = 184
qBase = 196
qCur = 200
voffW, voffX, voffX9, voffT = 206, 207, 208, 209
WBUF, XBUF, SUP = 16384, 18432, 51200
tAcc = 0
tRac = 48
tB = 64
tRB = 80
tF = 96
tWo = 73
tRa, tRb, tRra, tRrb, tCa, tCb, tCra, tCrb = range(136, 144)
tOo, tPm, tPr, tFo1, tFo2, tPo1, tPo2, tFv, tPd, tDb1, tDb2 = range(176, 187)

sX, sW, sK, sV, sWo, sPt, sTc, sG = 4, 8, 12, 16, 20, 24, 28, 32
sW8, sE, sWv, sB, sHP, sTyp = 36, 37, 38, 39, 40, 41
sCur, sQx, sWr, sDelta = 42, 43, 44, 45
sSv, sSv1, sSk0, sSk1 = 46, 47, 48, 49
sCnt, sT0, sT1, sT2 = 50, 51, 52, 53
sEx = 54
sScale, sThr = 56, 58
sMb, sMw, sMx = 59, 60, 61
sCv, sRot = 62, 63
sR = 64
sBufR, sBufW, sSoW, sSoX, sTo = 69, 70, 71, 72, 73
sXR, sXW = 46, 47
sWs, sOut, sDbg = 74, 76, 78
sS, sJ = 72, 73
sKA = 80
sFl = sTc
sFl = 96 if '--stamp' not in ARGS else 96

LOOK = opt('look', 6)
THR = 8.0
NT = ' ' + opt('kvpol', 'nt').replace('+', ' ')
NTW = ' nt' if opt('ntw', 1) else ''
NTO = ' nt' if opt('ntwo', 0) else ''
NTT = ' nt' if opt('ntt', 0) else ''
STAMP = '--stamp' in ARGS
STAMP_OFF = 64 << 20
BA, BB = opt('ba', 3), opt('bb', 5)
ONEBAR = '--onebar' in ARGS
DSP = opt('dsp', 1)
PAIRW = opt('pairw', 1)
TOUCH = '--touch' in ARGS
TU0 = opt('tu0', 2)
TSB, TSA = opt('tsb', 11), opt('tsa', 10)
sTs = 49
sVc, sVw, sDv, sVal = 47, 69, 70, 71
VRING, FLAGS = 81920, 147456
SOFT = opt('soft', 0)
sF, sD = 72, 73
DQ = opt('dq', 0)
PUBST = opt('pubst', 2)
BSIG = opt('bsig', 0)
LT = opt('lt', 0)
LTD = opt('ltd', 1)
LTN = ' nt' if opt('ltn', 1) else ''
WOB = opt('wob', 3)
WOT = opt('wot', 0)
WTD = opt('wtd', 6)
TLB = opt('tlb', 0)
sRole = 57
DDA = opt('dda', 3)


TST = '--tstamp' in ARGS
TMAP = {5: 1, 6: 2, 'e1': 3, 's0': 4, 's4': 5, 's8': 6, 7: 7, 8: 8, 9: 9, 10: 10}


def stamp_reg(i):
    return {0: 100, 9: 46, 10: 48}.get(i, 80 + 2 * (i - 1))


def stamp(i):
    if not STAMP:
        return []
    if '--prof' in ARGS and i in (5, 6, 7, 8):
        return []
    if TST:
        if i not in TMAP:
            return []
        i = TMAP[i]
    elif not isinstance(i, int):
        return []
    r = stamp_reg(i)
    return ['s_memtime s[%d:%d]' % (r, r + 1), 's_waitcnt lgkmcnt(0)']


def stamp_flush(p, n):
    if not STAMP:
        return
    if '--dbgout' in ARGS:
        p('s_and_b32 %s, s2, 0xe7' % sr(sT0))
        p('s_cmp_lg_u32 %s, 0' % sr(sT0))
        p('s_cbranch_scc1 NODBG')
        p('s_cmp_lg_u32 %s, 2' % sr(sW8))
        p('s_cbranch_scc1 NODBG')
        p('s_mov_b32 %s, %s' % (sr(sG), sr(sDbg)))
        p('s_mov_b32 %s, %s' % (sr(sG + 1), sr(sDbg + 1)))
        p('s_mov_b32 %s, 256' % sr(sG + 2))
        p('s_mov_b32 %s, 0x20000' % sr(sG + 3))
        p('s_lshl_b32 %s, s2, 1' % sr(sT0))
        p('v_mov_b32 v1, %s' % sr(sT0))
        for j, (a, b) in enumerate(((3, 0), (5, 4), (10, 6))):
            p('s_sub_u32 %s, s%d, s%d' % (sr(sT1), stamp_reg(a), stamp_reg(b)))
            p('v_mov_b32 v2, %s' % sr(sT1))
            p('buffer_store_dword v2, v1, %s, 0 offen offset:%d' % (sr(sG, 4), 4 + 4 * j))
        p.label('NODBG')
    p('s_mul_i32 %s, s2, 8' % sr(sT0))
    p('s_add_u32 %s, %s, %s' % (sr(sT0), sr(sT0), sr(sW8)))
    p('s_lshl_b32 %s, %s, 6' % (sr(sT0), sr(sT0)))
    p('s_add_u32 %s, %s, 0x%x' % (sr(sT0), sr(sT0), STAMP_OFF))
    p('s_add_u32 %s, %s, %s' % (sr(sG), sr(sWs), sr(sT0)))
    p('s_addc_u32 %s, %s, 0' % (sr(sG + 1), sr(sWs + 1)))
    p('s_mov_b32 %s, 64' % sr(sG + 2))
    p('s_mov_b32 %s, 0x20000' % sr(sG + 3))
    p('v_mov_b32 v1, 0')
    p('s_memrealtime vcc')
    p('s_waitcnt lgkmcnt(0)')
    p('v_mov_b32 v2, vcc_lo')
    p('buffer_store_dword v2, v1, %s, 0 offen offset:60' % sr(sG, 4))
    p('s_getreg_b32 %s, hwreg(HW_REG_HW_ID)' % sr(sT0))
    p('s_getreg_b32 %s, hwreg(HW_REG_XCC_ID)' % sr(sT1))
    p('v_mov_b32 v2, %s' % sr(sT0))
    p('buffer_store_dword v2, v1, %s, 0 offen offset:48' % sr(sG, 4))
    p('v_mov_b32 v2, %s' % sr(sT1))
    p('buffer_store_dword v2, v1, %s, 0 offen offset:52' % sr(sG, 4))
    for i in range(n):
        p('v_mov_b32 v2, s%d' % stamp_reg(i))
        p('buffer_store_dword v2, v1, %s, 0 offen offset:%d' % (sr(sG, 4), 4 * i))
    p('s_waitcnt vmcnt(0)')


def resolve_waits(items, ctxs):
    def is_lds(x):
        return (isinstance(x, tuple) and x[0] == 'R') or (isinstance(x, str) and x.startswith('ds_'))
    res = {}
    for ctx in ctxs:
        seq = list(ctx) + list(items)
        off = len(ctx)
        cnt = 0
        pos = {}
        done = 0
        inretry = False
        for k, x in enumerate(seq):
            if isinstance(x, str) and x.startswith('RT') and x.endswith(':'):
                inretry = True
            elif isinstance(x, str) and x.startswith('OK') and x.endswith(':'):
                inretry = False
            if inretry:
                continue
            if is_lds(x):
                cnt += 1
                if isinstance(x, tuple):
                    pos[x[1]] = cnt
            elif isinstance(x, str) and x.startswith('s_waitcnt') and 'lgkmcnt(0)' in x:
                done = cnt
            elif isinstance(x, tuple) and x[0] == 'W':
                last = max(pos[i] for i in x[1]) if all(i in pos for i in x[1]) else None
                if last is None:
                    assert k < off
                    continue
                n = min(cnt - last, 15)
                skip = last <= done
                done = max(done, last)
                if k >= off:
                    old = res.get(k - off, (99, True))
                    res[k - off] = (min(old[0], n), old[1] and skip)
    out = []
    for k, x in enumerate(items):
        if isinstance(x, tuple):
            if x[0] == 'R':
                out.append(x[2])
            else:
                n, skip = res[k]
                out.append('; (wait implied)' if skip else 's_waitcnt lgkmcnt(%d)' % n)
        else:
            out.append(x)
    return out


def softmax_stream(S, n, lregs):
    seq = []
    pend = []
    for i in range(0, n, 2):
        seq.append(('e', i))
        seq += pend
        seq.append(('e', i + 1))
        pend = [('a', i), ('a', i + 1), ('c', i)]
    seq += pend
    st = []
    for k, i in seq:
        if k == 'e':
            st.append((2, 'v_exp_f32 %s, %s' % (vr(S + i), vr(S + i))))
        elif k == 'a':
            l = lregs[i % len(lregs)]
            st.append((1, 'v_add_f32 %s, %s, %s' % (vr(l), vr(l), vr(S + i))))
        elif k == 'c':
            dst = S + (i // 8) * 8 + (i % 8) // 2
            st.append((1, 'v_cvt_pk_bf16_f32 %s, %s, %s' % (vr(dst), vr(S + i), vr(S + i + 1))))
    return st


def max_stream(S, n, dst):
    st = [(1, 'v_max3_f32 %s, %s, %s, %s' % (vr(dst), vr(S), vr(S + 1), vr(S + 2)))]
    i = 3
    while i + 1 < n:
        st.append((1, 'v_max3_f32 %s, %s, %s, %s' % (vr(dst), vr(dst), vr(S + i), vr(S + i + 1))))
        i += 2
    if i < n:
        st.append((1, 'v_max_f32 %s, %s, %s' % (vr(dst), vr(dst), vr(S + i))))
    return st


def x16_op(x, op):
    return ['ds_swizzle_b32 %s, %s offset:0x401F' % (vr(vA), vr(x)), 's_waitcnt lgkmcnt(0)',
            '%s %s, %s, %s' % (op, vr(x), vr(x), vr(vA))]


def xhalf_op(x, op):
    return ['v_mov_b32 %s, %s' % (vr(vA), vr(x)), 'v_mov_b32 %s, %s' % (vr(vB), vr(x)),
            'v_permlane32_swap_b32 %s, %s' % (vr(vA), vr(vB)),
            '%s %s, %s, %s' % (op, vr(x), vr(vA), vr(vB))]


def tile_off(dst, c, add):
    return ['s_add_u32 %s, %s, 0x%x' % (sr(sT0), sr(c), add),
            's_add_u32 %s, %s, %s' % (sr(dst), sr(sT0), sr(sRot)),
            's_and_b32 %s, %s, 0x3ffff' % (sr(dst), sr(dst)),
            's_and_b32 %s, %s, 0x40000' % (sr(sT0), sr(sT0)),
            's_or_b32 %s, %s, %s' % (sr(dst), sr(dst), sr(sT0))]


def wo_row(st):
    return ['s_add_u32 %s, %s, %d' % (sr(sT2), sr(sHP), st >> 2),
            's_and_b32 %s, %s, 3' % (sr(sT2), sr(sT2)),
            's_mul_i32 %s, %s, %d' % (sr(sT2), sr(sT2), 256 * 1152),
            's_add_u32 %s, %s, %d' % (sr(sT2), sr(sT2), (st & 3) * 64 * 1152)]


def wo_stage_dma(st, vo):
    g = []
    for i in range(5):
        g.append((wo_row(st) + ['s_add_u32 m0, %s, %s' % (sr(sR + st % 4), sr(sMx)), 's_nop 0'] if i == 0 else ['s_add_u32 m0, m0, 0x400', 's_nop 0']) +
                 ['buffer_load_dwordx4 %s, %s, %s offen%s lds' % (vr(vo + i), sr(sWo, 4), sr(sT2), NTO)])
    return g


def voffwo_code(vo, sub):
    o = ['s_sub_u32 %s, %s, %d' % (sr(sT0), sr(sW8), sub),
         's_mul_i32 %s, %s, 5120' % (sr(sMx), sr(sT0)),
         's_add_u32 %s, %s, 18432' % (sr(sMx), sr(sMx)),
         's_mul_i32 %s, %s, 18432' % (sr(sT0), sr(sT0))]
    for i in range(5):
        o += ['v_add_u32 %s, %d, %s' % (vr(vA), 64 * i, vr(vLane)),
              'v_mul_u32_u24 %s, 0xccd, %s' % (vr(vB), vr(vA)),
              'v_lshrrev_b32 %s, 16, %s' % (vr(vB), vr(vB)),
              'v_mul_u32_u24 %s, 20, %s' % (vr(vo + i), vr(vB)),
              'v_sub_u32 %s, %s, %s' % (vr(vA), vr(vA), vr(vo + i)),
              'v_mul_u32_u24 %s, 0x480, %s' % (vr(vB), vr(vB)),
              'v_lshl_add_u32 %s, %s, 4, %s' % (vr(vA), vr(vA), vr(vB)),
              'v_add_u32 %s, %s, %s' % (vr(vo + i), sr(sT0), vr(vA))]
    return o


def wo_touch_voff(dst, tmp):
    return ['v_and_b32 %s, 3, %s' % (vr(dst), vr(vLane)),
            'v_lshlrev_b32 %s, 7, %s' % (vr(dst), vr(dst)),
            'v_min_u32 %s, 0x13c, %s' % (vr(dst), vr(dst)),
            'v_bfe_u32 %s, %s, 2, 3' % (vr(tmp), vr(vLane)),
            'v_mul_u32_u24 %s, 0x480, %s' % (vr(tmp), vr(tmp)),
            'v_add_u32 %s, %s, %s' % (vr(dst), vr(dst), vr(tmp)),
            'v_lshrrev_b32 %s, 5, %s' % (vr(tmp), vr(vLane)),
            'v_mul_u32_u24 %s, 0x12000, %s' % (vr(tmp), vr(tmp)),
            's_mul_i32 %s, %s, 9216' % (sr(sT0), sr(sB)),
            'v_add3_u32 %s, %s, %s, %s' % (vr(dst), vr(dst), vr(tmp), sr(sT0))]


class Attn:
    def __init__(s, typ, role):
        s.typ, s.role = typ, role
        s.heavy = role != 'L'
        s.tag = ('A' if typ == 0 else 'B') + role
        s.DD = DDA if typ == 0 else 4
        s.onebar = ONEBAR or (typ == 0 and DDA < 9)
        s.early = typ == 0 and DDA < 9
        s.loader = role == 'L'
        s.vFl = 70 if role == 'L' else 248
        s.vFb = 71 if role == 'L' else 255
        s.nd = (4 if typ == 0 else 8) if s.loader else 0
        s.vL1 = 65 if s.loader else 249
        s.stride = SLOT if typ == 0 else 2 * SLOT

    def pv_slots(s, par, init):
        So = vS[1 - par]
        out = []
        for us in range(2):
            for jt in range(4):
                def mk(f, us=us, jt=jt):
                    c = '0' if (init and us == 0) else vr(vO + 16 * jt, 16)
                    mf = 'v_mfma_f32_32x32x16_bf16 %s, %s, %s, %s' % (vr(vO + 16 * jt, 16), vr(f, 4), vr(So + 8 * us, 4), c)
                    rd = ['ds_read_b64_tr_b16 %s, %s offset:%d' % (vr(f + 2 * p, 2), vr(vVa[jt & 1]), us * 4096 + p * 2048 + (jt >> 1) * 512) for p in range(2)]
                    return mf, rd
                out.append(('big', 'pv', mk))
        return out

    def qk_slots(s, par, czero=False):
        So = vS[1 - par]
        out = []
        for st in range(8):
            def mk(f, st=st):
                c = ('0' if czero else vr(vNM, 16)) if st == 0 else vr(So, 16)
                mf = 'v_mfma_f32_32x32x16_bf16 %s, %s, %s, %s' % (vr(So, 16), vr(f, 4), vr(vQ + 4 * st, 4), c)
                rd = ['ds_read_b128 %s, %s offset:%d' % (vr(f, 4), vr(vKa[st & 3]), (st >> 2) * 512)]
                return mf, rd
            out.append(('big', 'qk', mk))
        return out

    def rqk_slots(s, init):
        out = []
        for st in range(4):
            for z in range(2):
                def mk(f, st=st, z=z):
                    c = ('0' if init else vr(vNMr, 4)) if st == 0 else vr(vSr + 4 * z, 4)
                    mf = 'v_mfma_f32_16x16x32_bf16 %s, %s, %s, %s' % (vr(vSr + 4 * z, 4), vr(f, 4), vr(vQr + 4 * st, 4), c)
                    rd = ['ds_read_b128 %s, %s offset:%d' % (vr(f, 4), vr(vT[st & 1]), z * 4096 + (st >> 1) * 512)]
                    return mf, rd
                out.append(('small', 'rqk', mk))
        return out

    def rpv_slots(s):
        out = []
        for T in range(8):
            def mk(f, T=T):
                mf = 'v_mfma_f32_16x16x32_bf16 %s, %s, %s, %s' % (vr(vOr + 4 * T, 4), vr(f, 4), vr(vSr, 4), vr(vOr + 4 * T, 4))
                rd = ['ds_read_b64_tr_b16 %s, %s offset:%d' % (vr(f + 2 * p, 2), vr(vT[(T >> 1) & 1]), p * 4096 + (T >> 2) * 512 + (T & 1) * 32) for p in range(2)]
                return mf, rd
            out.append(('small', 'rpv', mk))
        return out

    def rem_kind(s, par):
        if not s.heavy:
            return None
        return 'rqk' if (par == 0) == (s.role == 'X') else 'rpv'

    def dma_items(s):
        if not s.loader:
            return []
        ld = 'buffer_load_dwordx4 %s, %s, %s offen%s%s lds'
        if s.typ == 1:
            return s.v_dma(sVw, sSv) + s.k_dma(sWr, sSk0)
        return [['s_add_u32 m0, %s, %s' % (sr(sWr), sr(sMb)), 's_add_u32 %s, %s, 0x1000' % (sr(sT1), sr(sSk0)),
                 ld % (vr(voffK), sr(sK, 4), sr(sSk0), '', NT)],
                ['s_add_u32 m0, m0, 0x1000', 's_add_u32 %s, %s, 0x1000' % (sr(sT2), sr(sSv)),
                 ld % (vr(voffK), sr(sK, 4), sr(sT1), '', NT)],
                ['s_add_u32 m0, m0, 0x1000', 's_nop 0', ld % (vr(voffV), sr(sV, 4), sr(sSv), '', NT)],
                ['s_add_u32 m0, m0, 0x1000', 's_nop 0', ld % (vr(voffV), sr(sV, 4), sr(sT2), '', NT)]]

    def k_dma(s, w, so):
        ld = 'buffer_load_dwordx4 %s, %s, %s offen%s%s lds'
        return [['s_add_u32 m0, %s, %s' % (sr(w), sr(sMb)), 's_add_u32 %s, %s, 0x1000' % (sr(sT1), sr(so)),
                 ld % (vr(voffK), sr(sK, 4), sr(so), '', NT), ld % (vr(voffK1), sr(sK, 4), sr(so), ' offset:2048', NT)],
                ['s_add_u32 m0, m0, 0x1000', 's_nop 0',
                 ld % (vr(voffK), sr(sK, 4), sr(sT1), '', NT), ld % (vr(voffK1), sr(sK, 4), sr(sT1), ' offset:2048', NT)]]

    def v_dma(s, w, so):
        ld = 'buffer_load_dwordx4 %s, %s, %s offen%s%s lds'
        return [['s_add_u32 %s, %s, 0x%x' % (sr(sT2), sr(w), VRING), 's_add_u32 m0, %s, %s' % (sr(sT2), sr(sMb)),
                 's_add_u32 %s, %s, 0x1000' % (sr(sT2), sr(so)),
                 ld % (vr(voffV), sr(sV, 4), sr(so), '', NT), ld % (vr(voffV), sr(sV, 4), sr(so), ' offset:2048', NT)],
                ['s_add_u32 m0, m0, 0x1000', 's_nop 0',
                 ld % (vr(voffV), sr(sV, 4), sr(sT2), '', NT), ld % (vr(voffV), sr(sV, 4), sr(sT2), ' offset:2048', NT)]]

    def adv_scalar_b(s, dma):
        o = []
        for cur, w, d, ring in ((sCur, sWr, sDelta, 81920), (sVc, sVw, sDv, 65536)):
            o += ['s_mov_b32 %s, %s' % (sr(w), sr(cur)),
                  's_add_u32 %s, %s, 0x4000' % (sr(cur), sr(cur)),
                  's_cmp_ge_u32 %s, 0x%x' % (sr(cur), ring),
                  's_cselect_b32 %s, 0, %s' % (sr(cur), sr(cur)),
                  's_sub_u32 %s, %s, %s' % (sr(d), sr(cur), sr(w)), 's_nop 0']
        o = [t for t in o if t != 's_nop 0']
        if dma and s.loader:
            o += ['s_add_u32 %s, %s, 0x2000' % (sr(sSk0), sr(sSk0)),
                  's_and_b32 %s, %s, 0x3ffff' % (sr(sSk0), sr(sSk0)),
                  's_add_u32 %s, %s, 0x2000' % (sr(sSv), sr(sSv)),
                  's_and_b32 %s, %s, 0x3ffff' % (sr(sSv), sr(sSv)), 's_nop 0', 's_nop 0', 's_nop 0',
                  's_cmp_lt_u32 %s, 28' % sr(sVal),
                  's_cselect_b32 %s, 0x40000, 0' % sr(sK + 2),
                  's_cselect_b32 %s, %s, 0x%x' % (sr(sWr), sr(sWr), LDS_DROP),
                  's_cmp_lt_u32 %s, 30' % sr(sVal),
                  's_cselect_b32 %s, 0x40000, 0' % sr(sV + 2),
                  's_cselect_b32 %s, %s, 0x%x' % (sr(sVw), sr(sVw), LDS_DROP - VRING)]
            o = [t for t in o if t != 's_nop 0']
        return o

    def poll(s, lab, rd, regs, first_wait='s_waitcnt lgkmcnt(0)'):
        def chk():
            o = ['s_waitcnt lgkmcnt(0)']
            if len(regs) == 4:
                o += ['v_min3_u32 %s, %s, %s, %s' % (vr(regs[0]), vr(regs[0]), vr(regs[1]), vr(regs[2])),
                      'v_min_u32 %s, %s, %s' % (vr(regs[0]), vr(regs[0]), vr(regs[3]))]
            else:
                o += ['v_min_u32 %s, %s, %s' % (vr(regs[0]), vr(regs[0]), vr(regs[1]))]
            return o + ['v_cmp_gt_u32 vcc, %s, %s' % (sr(sVal), vr(regs[0]))]
        return [first_wait] + chk()[1:] + ['s_cbranch_vccz OK%s' % lab, 'RT%s:' % lab, rd] + chk() + ['s_cbranch_vccnz RT%s' % lab, 'OK%s:' % lab]

    def dma_singles(s):
        out = []
        for g in s.dma_items():
            cur = []
            for t in g:
                cur.append(t)
                if t.startswith('buffer_load'):
                    out.append(cur)
                    cur = []
        return out

    def unit_adv(s):
        return ['s_mov_b32 %s, %s' % (sr(sSv), sr(sSk0)),
                's_add_u32 %s, %s, 0x2000' % (sr(sSk0), sr(sSk0)),
                's_and_b32 %s, %s, 0x3ffff' % (sr(sSk0), sr(sSk0)),
                's_add_u32 %s, %s, 1' % (sr(sCv), sr(sCv))]

    def adv_scalar(s, dma):
        if s.typ == 1:
            return s.adv_scalar_b(dma)
        o = ['s_mov_b32 %s, %s' % (sr(sWr), sr(sCur)),
             's_add_u32 %s, %s, 0x%x' % (sr(sCur), sr(sCur), s.stride),
             's_cmp_ge_u32 %s, 0x%x' % (sr(sCur), LDS_TOTAL),
             's_cselect_b32 %s, 0x%x, 0' % (sr(sT0), LDS_TOTAL),
             's_sub_u32 %s, %s, %s' % (sr(sCur), sr(sCur), sr(sT0)),
             's_sub_u32 %s, %s, %s' % (sr(sDelta), sr(sCur), sr(sWr))]
        if dma and s.loader:
            if s.early:
                o += ['s_add_u32 %s, %s, 0x%x' % (sr(sWr), sr(sCur), s.DD * SLOT),
                      's_cmp_ge_u32 %s, 0x%x' % (sr(sWr), LDS_TOTAL),
                      's_cselect_b32 %s, 0x%x, 0' % (sr(sT0), LDS_TOTAL),
                      's_sub_u32 %s, %s, %s' % (sr(sWr), sr(sWr), sr(sT0))]
            o += s.unit_adv()
            o += ['s_cmp_lt_u32 %s, 31' % sr(sCv),
                  's_cselect_b32 %s, 0x40000, 0' % sr(sK + 2),
                  's_cmp_lt_u32 %s, 32' % sr(sCv),
                  's_cselect_b32 %s, 0x40000, 0' % sr(sV + 2),
                  's_cselect_b32 %s, %s, 0x%x' % (sr(sWr), sr(sWr), LDS_DROP)]
        return o

    def rem_addr(s, par):
        k = s.rem_kind(par)
        if not k:
            return []
        return ['v_add_u32 %s, %s, %s' % (vr(vT[0]), sr(sCur if (k == 'rqk' or s.typ == 0) else sVc), vr(bKr if k == 'rqk' else bVr)),
                'v_xor_b32 %s, 64, %s' % (vr(vT[1]), vr(vT[0]))]

    def adv_vector(s, nextpar):
        o = ['v_add_u32 %s, %s, %s' % (vr(x), sr(sDelta), vr(x)) for x in vKa]
        o += ['v_add_u32 %s, %s, %s' % (vr(x), sr(sDelta if s.typ == 0 else sDv), vr(x)) for x in vVa]
        return o + s.rem_addr(nextpar)

    def iter_slots(s, par, kind):
        first, last = kind == 'first', kind == 'last'
        sl = []
        k = s.rem_kind(par)
        if k == 'rqk':
            sl += s.rqk_slots(init=first)
        elif k == 'rpv':
            sl += [None] * 8 if (first and par == 0) else s.rpv_slots()
        npv = len(sl)
        sl += [None] * 8 if (first and par == 0) else s.pv_slots(par, init=(first and par == 1))
        sl += [None] * 8 if (last and par == 1) else s.qk_slots(par)
        return sl, npv

    def epi_slots(s):
        sl = s.rpv_slots() if s.rem_kind(0) == 'rpv' else []
        return sl + s.pv_slots(0, init=False)

    def pair(s, kind):
        first, last = kind == 'first', kind == 'last'
        slots, starts, pvs = [], [], []
        for par in range(2):
            starts.append(len(slots))
            sl, npv = s.iter_slots(par, kind)
            pvs.append(len(slots) + npv)
            slots += sl
        n = len(slots)
        assert n % 8 == 0
        nxt = s.epi_slots() if last else s.iter_slots(0, 'loop')[0]
        made = []
        for k, sl in enumerate(slots + nxt):
            if sl is None:
                made.append(None)
            else:
                mf, rd = sl[2](vF + 4 * (k % 8))
                ids = ['%d_%d' % (k if k < n else k - n, i) for i in range(len(rd))]
                made.append((sl[0], sl[1], mf, rd, ids))
        items = []
        nread = 0 if first else LOOK
        gate = [pvs[0] + 8]
        rares = []

        def emit_reads(upto):
            nonlocal nread
            while nread <= upto and nread < n + LOOK and nread < gate[0]:
                m = made[nread]
                if m is not None:
                    for i, t in zip(m[4], m[3]):
                        items.append(('R', i, t))
                nread += 1

        for par in range(2):
            a = starts[par]
            b = starts[1] if par == 0 else n
            pv0 = pvs[par]
            S = vS[par]
            gate[0] = pv0 + 8
            nocheck = first and par == 0
            if last:
                dma = wo_stage_dma(par, tWo) if s.loader else []
                nv = (s.DD - 1 - par) * s.nd + 5 + 5 * par
            else:
                dma = s.dma_singles()
                nv = s.DD * s.nd
            if s.typ == 1 and s.loader:
                nv = (25 if par == 0 else 22) if last else ((20, 24)[par] if first else 28)
            soft = SOFT and s.typ == 1 and not last
            slab = '_%s_%s%d' % (s.tag, kind, par)
            mainq = []
            if not nocheck:
                mainq += max_stream(S, 16, vMx)
                mainq.append((1, 'v_cmp_lt_f32 vcc, %s, %s' % (sr(sThr), vr(vMx))))
                mainq.append((0, 'BR_MAIN'))
            mainq += softmax_stream(S, 16, [vL0, s.vL1])
            remq = []
            if s.rem_kind(par) == 'rqk':
                remq += max_stream(vSr, 8, vC)
                if first:
                    blk = x16_op(vC, 'v_max_f32') + xhalf_op(vC, 'v_max_f32')
                    blk += ['v_sub_f32 %s, 0, %s' % (vr(vNMr + i), vr(vC)) for i in range(4)]
                    blk += ['v_sub_f32 %s, %s, %s' % (vr(vSr + i), vr(vSr + i), vr(vC)) for i in range(8)]
                    remq += [(1, t) for t in blk]
                else:
                    remq.append((1, 'v_cmp_lt_f32 vcc, %s, %s' % (sr(sThr), vr(vC))))
                    remq.append((0, 'BR_REM'))
                remq += softmax_stream(vSr, 8, [vLr])
            rem_ready = pv0 + 7
            present = [k for k in range(a, b) if made[k] is not None]
            cap = {k: (6 if made[k][0] == 'big' else 2) for k in present}
            firstgap = present[1] if not nocheck else present[0]
            seg_start = None
            misc = s.adv_scalar(not last)
            if LT and s.heavy and s.typ == 0 and not last:
                misc = misc + ['buffer_load_dword v255, v248, %s, %s offen%s' % (sr(sTc, 4), sr(sTo), LTN),
                               's_add_u32 %s, %s, 0x2000' % (sr(sTo), sr(sTo)), 's_and_b32 %s, %s, 0x3ffff' % (sr(sTo), sr(sTo))]
                if par == 1 and kind == 'loop':
                    misc = misc + ['s_cmp_gt_u32 %s, %d' % (sr(sCnt), (LTD + (5 if s.role == 'X' else 3)) // 2),
                                   's_cselect_b32 %s, 0x40000, 0' % sr(sTc + 2)]
            if TLB and s.heavy and not last:
                misc = misc + ['s_add_u32 %s, %s, 0x2000' % (sr(sSk0), sr(sSk0)), 's_and_b32 %s, %s, 0x3ffff' % (sr(sSk0), sr(sSk0)),
                               'buffer_load_dword v255, v248, %s, %s offen nt' % (sr(sK if s.role == 'X' else sV, 4), sr(sSk0))]
            if s.typ == 1:
                items.append('s_add_u32 %s, %s, 1' % (sr(sVal), sr(sVal)))
                if soft and s.loader and SOFT == 1:
                    items.append('v_mov_b32 %s, %s' % (vr(vA), sr(sVal)))
                    items.append('s_waitcnt vmcnt(%d)' % (nv - 8))
                    items.append('ds_write_b32 %s, %s offset:16' % (vr(72), vr(vA)))
                if soft and s.loader and SOFT == 2:
                    items += ['s_getreg_b32 %s, hwreg(HW_REG_IB_STS, 0, 4)' % sr(sT0),
                              's_getreg_b32 %s, hwreg(HW_REG_IB_STS, 22, 2)' % sr(sT1),
                              'v_mov_b32 %s, %s' % (vr(vA), sr(sVal)),
                              's_lshl_b32 %s, %s, 4' % (sr(sT1), sr(sT1)),
                              's_or_b32 %s, %s, %s' % (sr(sT0), sr(sT0), sr(sT1)),
                              's_cmp_le_u32 %s, %d' % (sr(sT0), nv - 8) if not opt('fslow', 0) else 's_cmp_lg_u32 0, 0',
                              's_cselect_b32 %s, 1, 0' % sr(sF),
                              's_cbranch_scc0 OKF%s' % slab,
                              'RTF%s:' % slab,
                              's_waitcnt vmcnt(%d)' % (nv - 8),
                              'ds_write_b32 %s, %s offset:16' % (vr(72), vr(vA)),
                              'OKF%s:' % slab]
            emit_reads(present[0] - 1 + LOOK)

            def bar_a(k):
                nonlocal misc
                items.extend(misc)
                misc = []
                assert nread >= gate[0] or all(made[j] is None for j in range(nread, gate[0]))
                items.extend(s.adv_vector(1 - par))
                if s.onebar:
                    items.append('s_waitcnt vmcnt(%d) lgkmcnt(0)' % (nv - len(dma)) if s.loader else 's_waitcnt lgkmcnt(0)')
                    items.append('s_barrier')
                    gate[0] = 10 ** 6
                    emit_reads(k + LOOK)
                elif soft:
                    items.append('v_mov_b32 %s, %s' % (vr(vA), sr(sVal)))
                    items.append('s_waitcnt lgkmcnt(0)')
                    items.append('ds_write_b32 %s, %s' % (vr(s.vFl), vr(vA)))
                    items.append(rdfree if (SOFT == 2 and s.loader) else rdfull)
                else:
                    items.append('s_waitcnt lgkmcnt(0)')
                    items.append('s_barrier')

            rdfree = 'ds_read_b128 v[66:69], %s' % vr(71)
            rdfull = 'ds_read_b64 %s, %s offset:16' % (vr(vA + 1, 2) if False else 'v[252:253]', vr(71 if s.loader else 249 if False else s.vFb))

            def bar_b(k):
                if soft:
                    return
                if s.onebar:
                    return
                if s.loader:
                    items.append('s_waitcnt vmcnt(%d)' % (nv - len(dma)))
                items.append('s_barrier')
                gate[0] = 10 ** 6
                emit_reads(k + LOOK)

            for k in range(a, b):
                m = made[k]
                if m is not None:
                    ids = m[4]
                    if PAIRW and k % 2 == 0 and made[k + 1] is not None and nread > k + 1:
                        ids = ids + made[k + 1][4]
                    items.append(('W', ids))
                    items.append(m[2])
                    if k == pv0 + 7 and seg_start is not None:
                        lab = 'REJ_%s_%s%d' % (s.tag, kind, par)
                        items.append(lab + ':')
                        rares.append(('main', seg_start, len(items) - 1, lab, par, kind))
                        seg_start = None
                emit_reads(k + LOOK)
                if k == pv0 + BA - 1:
                    bar_a(k)
                burst = [t for g in dma for t in g]
                if soft and k == pv0 + BA:
                    if SOFT == 2 and s.loader:
                        pl = s.poll('A' + slab, rdfree, [66, 67, 68, 69])
                        nchk = pl.index('s_cbranch_vccz OKA%s' % slab)
                        items += pl[:nchk]
                        items += ['s_mov_b32 %s, 0' % sr(sD),
                                  's_cmp_eq_u32 %s, 0' % sr(sF),
                                  's_cbranch_scc1 RTM%s' % slab,
                                  's_cbranch_vccnz OKS%s' % slab,
                                  'RTM%s:' % slab]
                        items += [t.replace('OKA', 'GOA') for t in pl[nchk:]]
                        items += burst
                        items += ['s_mov_b32 %s, 1' % sr(sD),
                                  's_cmp_eq_u32 %s, 1' % sr(sF),
                                  's_cbranch_scc1 OKS%s' % slab,
                                  'v_mov_b32 %s, %s' % (vr(vA), sr(sVal)),
                                  's_waitcnt vmcnt(%d)' % nv,
                                  'ds_write_b32 %s, %s offset:16' % (vr(72), vr(vA)),
                                  'OKS%s:' % slab,
                                  rdfull]
                    items.extend(s.poll('B' + slab, rdfull, [252, 253]))
                    gate[0] = 10 ** 6
                    emit_reads(k + LOOK)
                if soft and s.loader and SOFT == 2 and k == pv0 + 9 + DQ:
                    items += ['s_cmp_eq_u32 %s, 1' % sr(sD), 's_cbranch_scc1 OKD%s' % slab, 'RTD%s:' % slab, rdfree]
                    items += [t.replace('OKC', 'GOC') for t in s.poll('C' + slab, rdfree, [66, 67, 68, 69])]
                    items += burst
                    items += ['OKD%s:' % slab]
                    del dma[:]
                if soft and s.loader and SOFT == 1 and k == pv0 + 8 + DQ:
                    items.append(('R', 'fr' + slab, rdfree))
                if soft and s.loader and SOFT == 1 and k == pv0 + 9 + DQ:
                    items.extend(s.poll('A' + slab, rdfree, [66, 67, 68, 69], ('W', ['fr' + slab])))
                if soft and s.loader and SOFT == 1 and k >= pv0 + 9 + DQ and dma:
                    left = b - k
                    for _ in range(-(-len(dma) // left)):
                        items.extend(dma.pop(0))
                if k == pv0 + BB - 1:
                    bar_b(k)
                if not soft and k >= pv0 + BA - 1 and dma and (m is not None or k == b - 1):
                    left = len([j for j in present if j >= k]) or 1
                    for _ in range(-(-len(dma) // left) if DSP else len(dma)):
                        items.extend(dma.pop(0))
                if m is None:
                    continue
                if misc and k < pv0 + BA - 1:
                    take = 6
                    items.extend(misc[:take])
                    misc = misc[take:]
                if k < firstgap:
                    continue
                remaining = sum(c for c, _ in mainq) + sum(c for c, _ in remq)
                capleft = sum(cap[j] for j in present if j >= k)
                bud = math.ceil(remaining * cap[k] / capleft)
                while bud > 0 and (mainq or remq):
                    use_rem = remq and k >= rem_ready and (not mainq or sum(c for c, _ in remq) * 2 >= sum(c for c, _ in mainq) or k >= b - 3)
                    q = remq if use_rem else mainq
                    if not q:
                        break
                    c, t = q.pop(0)
                    bud -= c
                    s.put(items, t, kind, par, rares)
                    if t == 'BR_MAIN':
                        seg_start = len(items)
                    elif q and q[0][1] in ('BR_MAIN', 'BR_REM'):
                        c, t = q.pop(0)
                        s.put(items, t, kind, par, rares)
                        if t == 'BR_MAIN':
                            seg_start = len(items)
            assert seg_start is None
            for g in dma:
                items.extend(g)
            for c, t in mainq + remq:
                s.put(items, t, kind, par, rares)
            if par == 1 and kind == 'loop':
                if s.heavy and WOB:
                    dm = 'v%d' % (255 if not SOFT or s.typ == 0 else 252)
                    items += ['s_cmp_lg_u32 %s, %d' % (sr(sCnt), WOB), 's_cbranch_scc1 NOT_%s' % s.tag,
                              'v_and_b32 %s, 3, %s' % (vr(vA), vr(vLane)),
                              'v_lshlrev_b32 %s, 7, %s' % (vr(vA), vr(vA)),
                              'v_min_u32 %s, 0x13c, %s' % (vr(vA), vr(vA)),
                              'v_lshrrev_b32 %s, 2, %s' % (vr(vB), vr(vLane)),
                              'v_mul_u32_u24 %s, 0x480, %s' % (vr(vB), vr(vB)),
                              'v_add_u32 %s, %s, %s' % (vr(vA), vr(vA), vr(vB)),
                              's_add_u32 %s, %s, 2' % (sr(sT0), sr(sW8)),
                              's_and_b32 %s, %s, 3' % (sr(sT0), sr(sT0)),
                              's_mul_i32 %s, %s, 36864' % (sr(sT0), sr(sT0)),
                              's_mul_i32 %s, %s, 147456' % (sr(sT1), sr(sB)),
                              's_add_u32 %s, %s, %s' % (sr(sT0), sr(sT0), sr(sT1))]
                    if SOFT and s.typ == 1:
                        items += ['s_nop 0']
                    else:
                        items += ['buffer_load_dword %s, %s, %s, %s offen' % (dm, vr(vA), sr(sWo, 4), sr(sT0)),
                                  's_add_u32 %s, %s, 18432' % (sr(sT0), sr(sT0)),
                                  'buffer_load_dword %s, %s, %s, %s offen' % (dm, vr(vA), sr(sWo, 4), sr(sT0))]
                    items += ['NOT_%s:' % s.tag]
                elif s.heavy and WOT:
                    items += ['s_cmp_lg_u32 %s, %d' % (sr(sCnt), WOT), 's_cbranch_scc1 NOT_%s' % s.tag]
                    items += wo_touch_voff(vA, vB)
                    items += ['s_add_u32 %s, %s, %s' % (sr(sT2), sr(sHP), sr(sE)),
                              's_and_b32 %s, %s, 3' % (sr(sT2), sr(sT2)),
                              's_mul_i32 %s, %s, %d' % (sr(sT2), sr(sT2), 256 * 1152),
                              's_add_u32 %s, %s, %d' % (sr(sT2), sr(sT2), (128 * 1152) if s.role == 'Y' else 0),
                              'buffer_load_dword %s, %s, %s, %s offen nt' % (vr(vDum), vr(vA), sr(sWo, 4), sr(sT2)),
                              'NOT_%s:' % s.tag]
                if BSIG and s.typ == 1 and s.role == 'Y':
                    items += ['s_cmp_lg_u32 %s, %d' % (sr(sCnt), BSIG), 's_cbranch_scc1 NOSIG',
                              's_cmp_lg_u32 %s, 1' % sr(sW8), 's_cbranch_scc1 NOSIG',
                              's_sub_u32 %s, %s, 0x8000' % (sr(sG), sr(sFl)),
                              's_subb_u32 %s, %s, 0' % (sr(sG + 1), sr(sFl + 1)),
                              's_mov_b32 %s, 4096' % sr(sG + 2),
                              's_mov_b32 %s, 0x20000' % sr(sG + 3),
                              's_lshl_b32 %s, %s, 8' % (sr(sT0), sr(sHP)),
                              'v_mov_b32 %s, 64' % vr(vA),
                              'buffer_store_dword %s, %s, %s, %s offen sc1' % (vr(vA), vr(vA), sr(sG, 4), sr(sT0)),
                              'NOSIG:']
                items += ['s_sub_u32 %s, %s, 1' % (sr(sCnt), sr(sCnt)), 's_cmp_lg_u32 %s, 0' % sr(sCnt),
                          's_cbranch_scc1 LOOP_%s' % s.tag]
        return items, rares, made[n:]

    def put(s, items, t, kind, par, rares):
        if t == 'BR_MAIN':
            items.append('s_cbranch_vccnz RARE_%s_%s%d' % (s.tag, kind, par))
        elif t == 'BR_REM':
            lab = 'RREJ_%s_%s' % (s.tag, kind)
            items.append('s_cbranch_vccnz RRARE_%s_%s' % (s.tag, kind))
            items.append(lab + ':')
            rares.append(('rem', lab, kind))
        else:
            items.append(t)

    def rare_blocks(s, text, rares):
        out = []
        for r in rares:
            if r[0] == 'main':
                _, a, b, lab, par, kind = r
                S = vS[par]
                seg = text[a:b]
                issoft = lambda t: t.startswith(('v_exp_f32', 'v_add_f32', 'v_cvt_pk'))
                inner = [t[:-1] for t in seg if t.endswith(':')]
                for il in inner:
                    seg = [t.replace(il + ':', il + 'r:') if t == il + ':' else (t + 'r' if t.endswith(' ' + il) else t) for t in seg]
                out.append('RARE_%s_%s%d:' % (s.tag, kind, par))
                out += [t for t in seg if not issoft(t)]
                out += xhalf_op(vMx, 'v_max_f32')
                out += ['v_max_f32 %s, 0, %s' % (vr(vMx), vr(vMx)),
                        'v_exp_f32 %s, -%s' % (vr(vA), vr(vMx))]
                out += ['v_sub_f32 %s, %s, %s' % (vr(S + i), vr(S + i), vr(vMx)) for i in range(16)]
                out += ['v_sub_f32 %s, %s, %s' % (vr(vNM + i), vr(vNM + i), vr(vMx)) for i in range(16)]
                out += ['v_mul_f32 %s, %s, %s' % (vr(x), vr(x), vr(vA)) for x in [vL0, s.vL1] + list(range(vO, vO + 64))]
                out += [t for t in seg if issoft(t)]
                out.append('s_branch %s' % lab)
            else:
                _, lab, kind = r
                out.append('RRARE_%s_%s:' % (s.tag, kind))
                out += x16_op(vC, 'v_max_f32') + xhalf_op(vC, 'v_max_f32')
                out += ['v_max_f32 %s, 0, %s' % (vr(vC), vr(vC)),
                        'v_exp_f32 %s, -%s' % (vr(vA), vr(vC))]
                out += ['v_sub_f32 %s, %s, %s' % (vr(vSr + i), vr(vSr + i), vr(vC)) for i in range(8)]
                out += ['v_sub_f32 %s, %s, %s' % (vr(vNMr + i), vr(vNMr + i), vr(vC)) for i in range(4)]
                out += ['v_mul_f32 %s, %s, %s' % (vr(x), vr(x), vr(vA)) for x in [vLr] + list(range(vOr, vOr + 32))]
                out.append('s_branch %s' % lab)
        return out

    def emit(s, p):
        tag = s.tag
        p.label('ATT_%s' % tag)
        pr = opt('prioh', 1) if s.heavy else opt('priol', 0)
        if pr or opt('qprio', 1):
            p('s_setprio %d' % pr)
        if s.heavy:
            p('v_lshlrev_b32 %s, 4, %s' % (vr(vA), vr(vLane)))
            p('v_add_u32 %s, %s, %s' % (vr(vA), sr(sQx), vr(vA)))
            for i in range(4):
                p('ds_read_b128 %s, %s offset:%d' % (vr(vQr + 4 * i, 4), vr(vA), i * 1024))
        qk0 = [sl[2](vF + 4 * k) for k, sl in enumerate(s.qk_slots(1, czero=True))]
        for mf, rd in qk0:
            p(rd[0])
        for k, (mf, rd) in enumerate(qk0):
            p('s_waitcnt lgkmcnt(%d)' % (7 - k))
            p(mf)
        for x in [vL0, s.vL1, vLr] + (list(range(vOr, vOr + 32)) if s.heavy else []):
            p('v_mov_b32 %s, 0' % vr(x))
        if s.role == 'X':
            p.ext(s.rem_addr(0))
        if s.loader:
            p('v_xor_b32 %s, 64, %s' % (vr(voffK1), vr(voffK)))
        if s.typ == 1:
            if s.heavy:
                p('s_waitcnt vmcnt(0)')
            p('s_lshl_b32 %s, %s, 6' % (sr(sT0), sr(sE)))
            p('s_add_u32 %s, %s, 0x%x' % (sr(sT0), sr(sT0), FLAGS))
            p('v_mov_b32 %s, %s' % (vr(s.vFb), sr(sT0))) if SOFT else None
            p('s_lshl_b32 %s, %s, 2' % (sr(sT1), sr(sWv)))
            p('s_add_u32 %s, %s, %s' % (sr(sT1), sr(sT1), sr(sT0)))
            p('v_mov_b32 %s, %s' % (vr(s.vFl), sr(sT1))) if SOFT else None
            if s.loader:
                p('s_and_b32 %s, %s, 1' % (sr(sT1), sr(sW8)))
                p('s_lshl_b32 %s, %s, 2' % (sr(sT1), sr(sT1)))
                p('s_add_u32 %s, %s, %s' % (sr(sT1), sr(sT1), sr(sT0)))
                p('v_mov_b32 v72, %s' % sr(sT1))
            p('s_mov_b32 %s, 0' % sr(sVal))
            p('s_mov_b32 %s, 0xc000' % sr(sVc))
        if LT and s.heavy and s.typ == 0:
            p('v_and_b32 v248, %d, %s' % ((1 << LT) - 1, vr(vLane)))
            p('v_lshlrev_b32 v248, 7, v248')
        if TLB and s.heavy:
            p('v_and_b32 v248, 1, %s' % vr(vLane))
            p('v_lshlrev_b32 v248, 12, v248')
            tb = (4 if s.role == 'X' else 2) if s.typ else (DDA if s.role == 'X' else DDA - 1)
            p('s_add_u32 %s, %s, 0x%x' % (sr(sSk0), sr(sRot), (tb + TLB) * 8192))
            for i in range(TLB):
                p('s_add_u32 %s, %s, 0x%x' % (sr(sT0), sr(sRot), (tb + 1 + i) * 8192))
                p('s_and_b32 %s, %s, 0x3ffff' % (sr(sT0), sr(sT0)))
                p('buffer_load_dword v255, v248, %s, %s offen nt' % (sr(sK if s.role == 'X' else sV, 4), sr(sT0)))
        for c, t in max_stream(vS[0], 16, vMx):
            p(t)
        p.ext(xhalf_op(vMx, 'v_max_f32'))
        for i in range(16):
            p('v_sub_f32 %s, 0, %s' % (vr(vNM + i), vr(vMx)))
        for i in range(16):
            p('v_sub_f32 %s, %s, %s' % (vr(vS[0] + i), vr(vS[0] + i), vr(vMx)))
        p('s_mov_b32 %s, 14' % sr(sCnt))
        fi, fr, _ = s.pair('first')
        li, lr, _ = s.pair('loop')
        la, lar, ep = s.pair('last')
        ft = resolve_waits(fi, [[]])
        lt = resolve_waits(li, [fi, li])
        lat = resolve_waits(la, [li])
        epi = []
        nread = LOOK
        for k, m in enumerate(ep):
            epi.append(('W', m[4]))
            epi.append(m[2])
            if nread < len(ep):
                for i, t in zip(ep[nread][4], ep[nread][3]):
                    epi.append(('R', i, t))
                nread += 1
        et = resolve_waits(epi, [la])
        p.ext(stamp(3))
        p.ext(ft)
        p.ext(stamp(4))
        p.label('LOOP_%s' % tag)
        if '--nocompute' in ARGS:
            p.ext([t for t in lt if not t.startswith(('v_', 'ds_', 's_cbranch_vcc', 's_waitcnt lgkm'))])
        elif '--prof' in ARGS:
            o = []
            nb = 0
            def timed(lines, acc):
                return (['s_memtime s[2:3]' if False else 's_memtime vcc', 's_waitcnt lgkmcnt(0)', 's_mov_b32 s3, vcc_lo'] + lines +
                        ['s_memtime vcc', 's_waitcnt lgkmcnt(0)', 's_sub_u32 s3, vcc_lo, s3', 's_add_u32 s%d, s%d, s3' % (acc, acc)])
            for t in lt:
                if t.startswith('s_waitcnt vmcnt') and '--prof2' not in ARGS:
                    o += timed([t], 88)
                elif t.startswith('buffer_load_dwordx4') and '--prof2' in ARGS:
                    nb += 1
                    o += (['s_nop 0'] + timed([t], 88 + 2 * ((nb >> 1) & 3))) if nb % 2 == 0 else [t]
                elif t == 's_barrier' and '--prof2' not in ARGS:
                    o += timed([t], 92 + 2 * (nb & 1 if s.typ else 0))
                    nb += 1
                else:
                    o.append(t)
            p.L.pop()
            for a in (88, 90, 92, 94):
                p('s_mov_b32 s%d, 0' % a)
            p.label('LOOP_%s' % tag)
            p.ext(o)
        elif '--nomem' in ARGS:
            p.ext([t for t in lt if not t.startswith(('buffer_load', 's_waitcnt vmcnt'))])
        else:
            p.ext(lt)
        p.ext(stamp(5))
        if s.loader:
            p.ext(voffwo_code(tWo, 2))
        p.ext(lat)
        p.ext(et)
        p.ext(stamp(6))
        p('v_add_f32 %s, %s, %s' % (vr(vL0), vr(vL0), vr(s.vL1)))
        if BSIG and s.typ == 0:
            p('s_mov_b32 %s, 300' % sr(sCnt))
            p('s_lshl_b32 %s, %s, 8' % (sr(sT0), sr(sHP)))
            p('v_mov_b32 %s, 64' % vr(vA))
            p.label('BW_%s' % tag)
            p('buffer_load_dword %s, %s, %s, %s offen sc1' % (vr(vB), vr(vA), sr(sFl, 4), sr(sT0)))
            p('s_waitcnt vmcnt(0)')
            p('v_cmp_eq_u32 vcc, %s, %s' % (vr(vA), vr(vB)))
            p('s_cbranch_vccnz TAIL_%s' % s.role)
            p('s_sleep 4')
            p('s_sub_u32 %s, %s, 1' % (sr(sCnt), sr(sCnt)))
            p('s_cmp_lg_u32 %s, 0' % sr(sCnt))
            p('s_cbranch_scc1 BW_%s' % tag)
        p('s_branch TAIL_%s' % s.role)
        p.ext(s.rare_blocks(ft, fr) + s.rare_blocks(lt, lr) + s.rare_blocks(lat, lar))


def tail(p, role):
    heavy = role != 'L'
    p.label('TAIL_%s' % role)
    p('s_setprio 0')
    p.ext(xhalf_op(vL0, 'v_add_f32'))
    p('v_rcp_f32 %s, %s' % (vr(vL0), vr(vL0)))
    p('v_lshlrev_b32 %s, 4, %s' % (vr(vC), vr(vLane)))
    p('s_lshl_b32 %s, %s, 3' % (sr(sT0), sr(sTyp)))
    p('s_add_u32 %s, %s, %s' % (sr(sT0), sr(sT0), sr(sB)))
    p('s_lshl_b32 %s, %s, 4' % (sr(sT0), sr(sT0)))
    p('s_add_u32 %s, %s, %s' % (sr(sT0), sr(sT0), sr(sHP)))
    p('s_mul_i32 %s, %s, %d' % (sr(sT0), sr(sT0), OW_B))
    p('s_add_u32 %s, %s, %s' % (sr(sPt), sr(sWs), sr(sT0)))
    p('s_addc_u32 %s, %s, 0' % (sr(sPt + 1), sr(sWs + 1)))
    p('s_mov_b32 %s, %d' % (sr(sPt + 2), OW_B))
    p('s_mov_b32 %s, 0x20000' % sr(sPt + 3))
    if heavy:
        p.ext(x16_op(vLr, 'v_add_f32'))
        p.ext(xhalf_op(vLr, 'v_add_f32'))
        p('s_lshl_b32 %s, %s, 13' % (sr(sT0), sr(sE)))
        p('s_add_u32 %s, %s, %s' % (sr(sT0), sr(sT0), sr(sR + 2)))
        p('s_add_u32 %s, %s, 18432' % (sr(sT0), sr(sT0)))
        p('v_add_u32 %s, %s, %s' % (vr(vT[0]), sr(sT0), vr(vC)))
        p('s_lshl_b32 %s, %s, 10' % (sr(sT1), sr(sE)))
        p('s_add_u32 %s, %s, %s' % (sr(sT1), sr(sT1), sr(sR + 2)))
        p('s_add_u32 %s, %s, %d' % (sr(sT1), sr(sT1), 18432 + 16384))
        p('v_add_u32 %s, %s, %s' % (vr(vT[1]), sr(sT1), vr(vC)))
        if role == 'Y':
            for i in range(8):
                p('ds_write_b128 %s, %s offset:%d' % (vr(vT[0]), vr(vOr + 4 * i, 4), i * 1024))
            p('v_mov_b32 %s, %s' % (vr(vNMr + 1), vr(vLr)))
            p('ds_write_b128 %s, %s' % (vr(vT[1]), vr(vNMr, 4)))
    p('s_mul_i32 %s, %s, 36864' % (sr(sT0), sr(sE)))
    p('s_lshl_b32 %s, %s, 10' % (sr(sT1), sr(sWv)))
    p('s_add_u32 %s, %s, %s' % (sr(sT2), sr(sT0), sr(sT1)))
    p('v_add_u32 %s, %s, %s' % (vr(vMx), sr(sT2), vr(vC)))
    for jt in range(4):
        for i in range(16):
            p('v_mul_f32 %s, %s, %s' % (vr(vO + 16 * jt + i), vr(vO + 16 * jt + i), vr(vL0)))
        for i in range(8):
            p('v_cvt_pk_bf16_f32 %s, %s, %s' % (vr(vS[0] + 8 * jt + i), vr(vO + 16 * jt + 2 * i), vr(vO + 16 * jt + 2 * i + 1)))
        for u in range(2):
            p('s_mov_b32 %s, %d' % (sr(sT2), jt * 9216 + u * 4096))
            p('buffer_store_dwordx4 %s, %s, %s, %s offen sc1' % (vr(vS[0] + 8 * jt + 4 * u, 4), vr(vMx), sr(sPt, 4), sr(sT2)))
    p('s_cmp_eq_u32 %s, 0' % sr(sE))
    p('s_cselect_b32 %s, %s, %s' % (sr(sCur), sr(sR), sr(sR + 2)))
    p('s_cselect_b32 %s, %s, %s' % (sr(sWr), sr(sR + 1), sr(sR + 3)))
    p('v_add_u32 %s, %s, %s' % (vr(vA), sr(sT1), vr(vC)))
    p('v_add_u32 %s, %s, %s' % (vr(vB), sr(sWr), vr(vA)))
    p('v_add_u32 %s, %s, %s' % (vr(vA), sr(sCur), vr(vA)))
    p('s_waitcnt lgkmcnt(0)')
    p('s_barrier')
    p.ext(stamp('e1'))
    for jt in range(4):
        for u in range(2):
            p('ds_write_b128 %s, %s offset:%d' % (vr(vA if jt < 2 else vB), vr(vS[0] + 8 * jt + 4 * u, 4), (jt & 1) * 9216 + u * 4096))
    if role == 'X':
        for i in range(8):
            p('ds_read_b128 %s, %s offset:%d' % (vr(vO + 4 * i, 4), vr(vT[0]), i * 1024))
        p('ds_read_b128 %s, %s' % (vr(vO + 32, 4), vr(vT[1])))
        p('s_waitcnt lgkmcnt(0)')
        ym, yl = vO + 32, vO + 33
        p('v_min_f32 %s, %s, %s' % (vr(vMx), vr(vNMr), vr(ym)))
        p('v_sub_f32 %s, %s, %s' % (vr(vA), vr(vMx), vr(vNMr)))
        p('v_sub_f32 %s, %s, %s' % (vr(vB), vr(vMx), vr(ym)))
        p('v_exp_f32 %s, %s' % (vr(vA), vr(vA)))
        p('v_exp_f32 %s, %s' % (vr(vB), vr(vB)))
        p('s_nop 0')
        p('v_mul_f32 %s, %s, %s' % (vr(vLr), vr(vLr), vr(vA)))
        p('v_fmac_f32 %s, %s, %s' % (vr(vLr), vr(yl), vr(vB)))
        p('v_rcp_f32 %s, %s' % (vr(vLr), vr(vLr)))
        p('s_nop 0')
        p('v_mul_f32 %s, %s, %s' % (vr(vA), vr(vA), vr(vLr)))
        p('v_mul_f32 %s, %s, %s' % (vr(vB), vr(vB), vr(vLr)))
        for i in range(32):
            p('v_mul_f32 %s, %s, %s' % (vr(vOr + i), vr(vOr + i), vr(vA)))
            p('v_fmac_f32 %s, %s, %s' % (vr(vOr + i), vr(vO + i), vr(vB)))
        for i in range(16):
            p('v_cvt_pk_bf16_f32 %s, %s, %s' % (vr(vO + 40 + i), vr(vOr + 2 * i), vr(vOr + 2 * i + 1)))
        p('v_add_u32 %s, %s, %s' % (vr(vA), sr(sCur), vr(vC)))
        p('v_add_u32 %s, %s, %s' % (vr(vB), sr(sWr), vr(vC)))
        p('v_add_u32 %s, %s, %s' % (vr(vMx), sr(sT0), vr(vC)))
        for jt in range(4):
            p('ds_write_b128 %s, %s offset:%d' % (vr(vA if jt < 2 else vB), vr(vO + 40 + 4 * jt, 4), (jt & 1) * 9216 + 8192))
            p('s_mov_b32 %s, %d' % (sr(sT2), jt * 9216 + 8192))
            p('buffer_store_dwordx4 %s, %s, %s, %s offen sc1' % (vr(vO + 40 + 4 * jt, 4), vr(vMx), sr(sPt, 4), sr(sT2)))
    if role == 'L':
        p('s_waitcnt vmcnt(8)')
    if role != 'Y':
        p('s_branch TAILC')


def tail_common(p):
    p.label('TAILC')
    L = vLane
    ta, tb, tc = 200, 201, 202
    p('s_lshr_b32 %s, %s, 2' % (sr(sS), sr(sHP)))
    p('s_and_b32 %s, %s, 3' % (sr(sJ), sr(sHP)))
    p('v_bfe_u32 %s, %s, 2, 2' % (vr(ta), vr(L)))
    p('v_lshrrev_b32 %s, 5, %s' % (vr(tb), vr(L)))
    p('v_lshl_add_u32 %s, %s, 2, %s' % (vr(tb), vr(tb), vr(ta)))
    p('v_mul_u32_u24 %s, 0x140, %s' % (vr(tb), vr(tb)))
    p('v_and_b32 %s, 3, %s' % (vr(tc), vr(L)))
    p('v_lshl_add_u32 %s, %s, 3, %s' % (vr(tb), vr(tc), vr(tb)))
    p('v_bfe_u32 %s, %s, 4, 1' % (vr(ta), vr(L)))
    p('v_lshl_add_u32 %s, %s, 5, %s' % (vr(tb), vr(ta), vr(tb)))
    p('s_mul_i32 %s, %s, 192' % (sr(sT0), sr(sE)))
    p('s_add_u32 %s, %s, 18432' % (sr(sT0), sr(sT0)))
    p('v_add_u32 %s, %s, %s' % (vr(tRa), sr(sT0), vr(tb)))
    p('s_lshl_b32 %s, %s, 10' % (sr(sT0), sr(sWv)))
    p('v_add_u32 %s, %s, %s' % (vr(tRb), sr(sT0), vr(vC)))
    p('v_add_u32 %s, 0x2000, %s' % (vr(tRrb), vr(vC)))
    p('v_lshrrev_b32 %s, 2, %s' % (vr(tb), vr(L)))
    p('v_mul_u32_u24 %s, 0x140, %s' % (vr(tb), vr(tb)))
    p('v_lshl_add_u32 %s, %s, 3, %s' % (vr(tb), vr(tc), vr(tb)))
    p('s_mul_i32 %s, %s, 3' % (sr(sCv), sr(sWv)))
    p('s_min_u32 %s, %s, 7' % (sr(sCv), sr(sCv)))
    p('s_lshl_b32 %s, %s, 5' % (sr(sT0), sr(sCv)))
    p('s_add_u32 %s, %s, 18432' % (sr(sT0), sr(sT0)))
    p('v_add_u32 %s, %s, %s' % (vr(tRra), sr(sT0), vr(tb)))
    p('s_mul_i32 %s, %s, 24576' % (sr(sT0), sr(sE)))
    p('s_lshl_b32 %s, %s, 11' % (sr(sT1), sr(sWv)))
    p('s_add_u32 %s, %s, %s' % (sr(sT0), sr(sT0), sr(sT1)))
    p('v_add_u32 %s, %s, %s' % (vr(tPm), sr(sT0), vr(vC)))
    p('v_add_u32 %s, 0xa000, %s' % (vr(tPr), vr(vC)))
    p('v_and_b32 %s, 3, %s' % (vr(ta), vr(L)))
    p('s_lshl_b32 %s, %s, 2' % (sr(sT0), sr(sS)))
    p('v_add_u32 %s, %s, %s' % (vr(tb), sr(sT0), vr(ta)))
    p('v_lshl_add_u32 %s, %s, 2, %s' % (vr(tc), vr(ta), sr(sJ)))
    p('s_lshl_b32 %s, %s, 8' % (sr(sT0), sr(sHP)))
    p('v_lshl_add_u32 %s, %s, 2, %s' % (vr(tPo1), vr(tb), sr(sT0)))
    p('v_lshl_add_u32 %s, %s, 2, %s' % (vr(tPo2), vr(tc), sr(sT0)))
    p('s_lshl_b32 %s, %s, 2' % (sr(sT0), sr(sHP)))
    p('v_lshl_add_u32 %s, %s, 8, %s' % (vr(tFo1), vr(tb), sr(sT0)))
    p('v_lshl_add_u32 %s, %s, 8, %s' % (vr(tFo2), vr(tc), sr(sT0)))
    p('v_mov_b32 %s, 0x7f000000' % vr(ta))
    p('v_cmp_gt_u32 vcc, 4, %s' % vr(L))
    p('v_cndmask_b32 %s, %s, %s, vcc' % (vr(tFo1), vr(ta), vr(tFo1)))
    p('v_cndmask_b32 %s, %s, %s, vcc' % (vr(tFo2), vr(ta), vr(tFo2)))
    p('s_lshl_b32 %s, %s, 3' % (sr(sT0), sr(sTyp)))
    p('s_add_u32 %s, %s, %s' % (sr(sT0), sr(sT0), sr(sB)))
    p('s_lshl_b32 %s, %s, 2' % (sr(sT1), sr(sT0)))
    p('s_add_u32 %s, %s, %s' % (sr(sT2), sr(sT1), sr(sS)))
    p('s_lshl_b32 %s, %s, 2' % (sr(sT2), sr(sT2)))
    p('v_mov_b32 %s, %s' % (vr(tDb1), sr(sT2)))
    p('s_add_u32 %s, %s, %s' % (sr(sT2), sr(sT1), sr(sJ)))
    p('s_lshl_b32 %s, %s, 2' % (sr(sT2), sr(sT2)))
    p('v_mov_b32 %s, %s' % (vr(tDb2), sr(sT2)))
    p('s_mov_b32 %s, %s' % (sr(sW), sr(sDbg)))
    p('s_mov_b32 %s, %s' % (sr(sW + 1), sr(sDbg + 1)))
    p('s_mov_b32 %s, 256' % sr(sW + 2))
    p('s_mov_b32 %s, 0x20000' % sr(sW + 3))
    p('s_lshl_b32 %s, %s, 4' % (sr(sT0), sr(sT0)))
    p('s_lshl_b32 %s, %s, 2' % (sr(sT1), sr(sS)))
    p('s_add_u32 %s, %s, %s' % (sr(sT1), sr(sT1), sr(sT0)))
    p('s_mul_i32 %s, %s, %d' % (sr(sT1), sr(sT1), OW_B))
    p('s_add_u32 %s, %s, %s' % (sr(sK), sr(sWs), sr(sT1)))
    p('s_addc_u32 %s, %s, 0' % (sr(sK + 1), sr(sWs + 1)))
    p('s_mov_b32 %s, %d' % (sr(sK + 2), 4 * OW_B))
    p('s_mov_b32 %s, 0x20000' % sr(sK + 3))
    p('s_add_u32 %s, %s, %s' % (sr(sT1), sr(sT0), sr(sHP)))
    p('s_mul_i32 %s, %s, %d' % (sr(sT1), sr(sT1), PART_B))
    p('s_add_u32 %s, %s, 0x%x' % (sr(sT1), sr(sT1), POFF))
    p('s_add_u32 %s, %s, %s' % (sr(sV), sr(sWs), sr(sT1)))
    p('s_addc_u32 %s, %s, 0' % (sr(sV + 1), sr(sWs + 1)))
    p('s_mov_b32 %s, %d' % (sr(sV + 2), PART_B))
    p('s_mov_b32 %s, 0x20000' % sr(sV + 3))
    p('s_add_u32 %s, %s, %s' % (sr(sT1), sr(sT0), sr(sJ)))
    p('s_mul_i32 %s, %s, %d' % (sr(sT1), sr(sT1), PART_B))
    p('s_add_u32 %s, %s, 0x%x' % (sr(sT1), sr(sT1), POFF))
    p('s_add_u32 %s, %s, %s' % (sr(sG), sr(sWs), sr(sT1)))
    p('s_addc_u32 %s, %s, 0' % (sr(sG + 1), sr(sWs + 1)))
    p('s_mov_b32 %s, %d' % (sr(sG + 2), 13 * PART_B))
    p('s_mov_b32 %s, 0x20000' % sr(sG + 3))
    p('s_cmp_eq_u32 %s, 0' % sr(sE))
    p('s_cbranch_scc1 OUTP_0')
    p.ext(voffwo_code(128, 4))
    p('s_lshl_b32 %s, %s, 10' % (sr(sMb), sr(sWv)))
    p('s_cmp_lt_u32 %s, 2' % sr(sWv))
    p('s_cselect_b32 %s, 0, 0x%x' % (sr(sMw), LDS_DROP))


def gpoll(lab, ph, po, db, shift):
    return ['s_mov_b32 %s, 3000' % sr(sCnt),
            'RTP%s:' % lab,
            'buffer_load_dword %s, %s, %s, 0 offen sc1' % (vr(tPd), vr(po), sr(sFl, 4)),
            's_waitcnt vmcnt(0)',
            'v_cmp_gt_u32 vcc, %d, %s' % (ph, vr(tPd)),
            's_cbranch_vccz OKP%s' % lab,
            's_sleep 2',
            's_sub_u32 %s, %s, 1' % (sr(sCnt), sr(sCnt)),
            's_cmp_lg_u32 %s, 0' % sr(sCnt),
            's_cbranch_scc1 RTP%s' % lab,
            's_mov_b32 %s, 100000' % sr(sCnt),
            'RTQ%s:' % lab,
            'buffer_load_dword %s, %s, %s, 0 offen sc1' % (vr(tPd), vr(db), sr(sW, 4)),
            's_waitcnt vmcnt(0)',
            'v_bfe_u32 %s, %s, %d, 8' % (vr(tPd), vr(tPd), shift),
            'v_cmp_gt_u32 vcc, 4, %s' % vr(tPd),
            's_cbranch_vccz OKP%s' % lab,
            's_sleep 8',
            's_sub_u32 %s, %s, 1' % (sr(sCnt), sr(sCnt)),
            's_cmp_lg_u32 %s, 0' % sr(sCnt),
            's_cbranch_scc1 RTQ%s' % lab,
            'OKP%s:' % lab]


def gpublish(lab, wave, ph, fo, db, inc):
    return ['s_cmp_lg_u32 %s, %d' % (sr(sW8), wave), 's_cbranch_scc1 NOPUB%s' % lab,
            'v_mov_b32 %s, %d' % (vr(tFv), ph),
            'buffer_store_dword %s, %s, %s, 0 offen sc1' % (vr(tFv), vr(fo), sr(sFl, 4)),
            'v_mov_b32 %s, 0x%x' % (vr(tPd), inc),
            's_mov_b64 exec, 1',
            'buffer_atomic_add %s, %s, %s, 0 offen sc1' % (vr(tPd), vr(db), sr(sW, 4)),
            's_mov_b64 exec, -1',
            'NOPUB%s:' % lab]


def o_stage_dma(st):
    pre = ['s_add_u32 %s, %s, %d' % (sr(sT1), sr(sJ), st >> 2),
           's_and_b32 %s, %s, 3' % (sr(sT1), sr(sT1)),
           's_mul_i32 %s, %s, %d' % (sr(sT1), sr(sT1), OW_B),
           's_add_u32 %s, %s, %d' % (sr(sT1), sr(sT1), (st & 3) * 18432),
           's_add_u32 m0, %s, %s' % (sr(sR + st % 4), sr(sMb)), 's_nop 0']
    g = []
    for i in range(5):
        if i:
            pre = ['s_add_u32 m0, m0, 0x1000', 's_add_u32 %s, %s, 0x1000' % (sr(sT1), sr(sT1))]
            if i == 4:
                pre.append('s_max_u32 m0, m0, %s' % sr(sMw))
                pre.append('s_nop 0')
        g.append(pre + ['buffer_load_dwordx4 %s, %s, %s offen sc1 lds' % (vr(tRb), sr(sK, 4), sr(sT1))])
    return g


def outproj(p, e):
    if e == opt('oprio', 1):
        pass
    if e == 0:
        p.label('OUTP_0')
    if e == opt('oprio', 1):
        p('s_setprio 1')
    if e == 0:
        p.ext(wo_touch_voff(187, 188))
    NS = 16
    LK = 5
    nt = 3 if e == 0 else 2
    slots = []
    first_of = {}
    for st in range(NS):
        first_of[st] = len(slots)
        for ks in range(4):
            kk = 4 * st + ks
            Bq = tB + 4 * (kk % 4)
            for t in range(nt):
                def mk(f, ks=ks, kk=kk, t=t, Bq=Bq):
                    c = '0' if kk == 0 else vr(tAcc + 16 * t, 16)
                    mf = 'v_mfma_f32_32x32x16_bf16 %s, %s, %s, %s' % (vr(tAcc + 16 * t, 16), vr(f, 4), vr(Bq, 4), c)
                    rd = ['ds_read_b64_tr_b16 %s, %s offset:%d' % (vr(f + 2 * pp, 2), vr(tCa), ks * 5120 + pp * 2560 + t * 64) for pp in range(2)]
                    if t == 0:
                        rd.append('ds_read_b128 %s, %s offset:%d' % (vr(Bq, 4), vr(tCb), (ks >> 1) * 9216 + (ks & 1) * 4096))
                    return mf, rd
                slots.append((st, 'big', mk))
            if (ks & 1) and e == 1:
                m = ks >> 1
                mm = 2 * st + m
                Rq = tRB + 4 * (mm & 1)
                for i in range(3):
                    def mk(f, m=m, mm=mm, i=i, Rq=Rq):
                        c = '0' if mm == 0 else vr(tRac + 4 * i, 4)
                        mf = 'v_mfma_f32_16x16x32_bf16 %s, %s, %s, %s' % (vr(tRac + 4 * i, 4), vr(f, 4), vr(Rq, 4), c)
                        rd = ['ds_read_b64_tr_b16 %s, %s offset:%d' % (vr(f + 2 * pp, 2), vr(tCra), m * 10240 + pp * 5120 + i * 32) for pp in range(2)]
                        if i == 0:
                            rd.append('ds_read_b128 %s, %s offset:%d' % (vr(Rq, 4), vr(tCrb), m * 9216))
                        return mf, rd
                    slots.append((st, 'small', mk))
    n = len(slots)
    made = []
    for k, (st, cls, mk) in enumerate(slots):
        mf, rd = mk(tF + 4 * (k % 8))
        made.append((st, cls, mf, rd, ['o%d_%d' % (k, i) for i in range(len(rd))]))
    items = []
    vmq = []
    nread = 0
    opened = -1
    pend = []

    def emit_reads(upto):
        nonlocal nread
        while nread <= upto and nread < n and made[nread][0] <= opened:
            for i, t in zip(made[nread][4], made[nread][3]):
                items.append(('R', i, t))
            nread += 1

    def vm(lines, tag):
        for t in lines:
            items.append(t)
            if t.startswith('buffer_'):
                vmq.append(tag)

    def open_stage(st, k):
        nonlocal opened
        assert not any(tag[1] == st for g, tag in pend)
        w = 's_waitcnt lgkmcnt(0)'
        idx = [i for i, t in enumerate(vmq) if t[1] == st]
        if st == PUBST:
            w = 's_waitcnt vmcnt(%d) lgkmcnt(0)' % (len(vmq) - 1 - max(idx) if idx else len(vmq))
        elif idx:
            w = 's_waitcnt vmcnt(%d) lgkmcnt(0)' % (len(vmq) - 1 - max(idx))
        for c, r in ((tCa, tRa), (tCb, tRb)) + (((tCra, tRra), (tCrb, tRrb)) if e else ()):
            items.append('v_add_u32 %s, %s, %s' % (vr(c), sr(sR + st % 4), vr(r)))
        items.append(w)
        items.append('s_barrier')
        opened = st
        items.extend(stamp('s%d' % st))
        emit_reads(k + LK)
        if e == 0:
            if WOT and st % 2 == 0 and 8 <= st + WTD < NS:
                pend.append((['s_cmp_lg_u32 %s, 0' % sr(sW8), 's_cbranch_scc1 NWT%d' % st] + wo_row(st + WTD) +
                             ['buffer_load_dword %s, %s, %s, %s offen nt' % (vr(vDum), vr(187), sr(sWo, 4), sr(sT2)), 'NWT%d:' % st], ('poll', 99)))
            return
        if st == PUBST:
            items.extend(gpublish('1', 4, 1, tFo1, tDb1, 1))
        if st == 0:
            for s2 in (2, 3):
                pend.extend((g, ('wo', s2)) for g in wo_stage_dma(s2, 128))
            return
        if st + 3 < NS:
            pend.extend((g, ('wo', st + 3)) for g in wo_stage_dma(st + 3, 128))
        if st == PUBST:
            pend.append((gpoll('1', 1, tPo1, tDb1, 0), ('poll', -1)))
            for s2 in range(4, st + 3):
                pend.extend((g, ('O', s2)) for g in o_stage_dma(s2))
        if st >= PUBST and st + 3 < NS:
            pend.extend((g, ('O', st + 3)) for g in o_stage_dma(st + 3))

    open_stage(0, -1)
    BG = 3
    for k in range(n):
        st, cls, mf, rd, ids = made[k]
        items.append(('W', ids))
        items.append(mf)
        emit_reads(k + LK)
        if st + 1 < NS and k == first_of[st + 1] - 1 - BG:
            must = [x for x in pend if x[1][1] <= st + 1]
            assert must == pend[:len(must)]
            for g, tag in must:
                pend.remove((g, tag))
                (items.extend(g) if tag[0] == 'poll' else vm(g, tag))
            open_stage(st + 1, k)
        elif pend:
            for _ in range(2 if len(pend) > 9 else 1):
                g, tag = pend.pop(0)
                if tag[0] == 'poll':
                    items.extend(g)
                else:
                    vm(g, tag)
    assert not pend
    for t in range(nt):
        for hh in range(2):
            b = tAcc + 16 * t + 8 * hh
            items += ['v_cvt_pk_bf16_f32 %s, %s, %s' % (vr(b + j), vr(b + 2 * j), vr(b + 2 * j + 1)) for j in range(4)]
            items += ['s_mov_b32 %s, 0x%x' % (sr(sT1), t * 8192),
                      'buffer_store_dwordx4 %s, %s, %s, %s offen offset:%d sc1' % (vr(b, 4), vr(tPm), sr(sV, 4), sr(sT1), hh * 1024)]
    if e:
        for i in range(3):
            b = tRac + 4 * i
            items += ['v_cvt_pk_bf16_f32 %s, %s, %s' % (vr(b + j), vr(b + 2 * j), vr(b + 2 * j + 1)) for j in range(2)]
            items += ['s_add_u32 %s, %s, %d' % (sr(sT0), sr(sCv), i),
                      's_lshr_b32 %s, %s, 1' % (sr(sT1), sr(sT0)),
                      's_lshl_b32 %s, %s, 10' % (sr(sT1), sr(sT1)),
                      's_and_b32 %s, %s, 1' % (sr(sT0), sr(sT0)),
                      's_lshl_b32 %s, %s, 3' % (sr(sT0), sr(sT0)),
                      's_add_u32 %s, %s, %s' % (sr(sT1), sr(sT1), sr(sT0)),
                      'buffer_store_dwordx2 %s, %s, %s, %s offen sc1' % (vr(b, 2), vr(tPr), sr(sV, 4), sr(sT1))]
    p.ext(resolve_waits(items, [[]]))
    if e:
        p('s_branch SYNC')


def sync_reduce(p):
    U, VO, A0, acc = 128, [130, 131], [132, 134], [136, 148]
    t = [160, 161, 162, 163, 164, 165]
    p.label('SYNC')
    p.ext(stamp(7))
    p('s_lshr_b32 %s, %s, 1' % (sr(sT2), sr(sJ)))
    p('s_lshl_b32 %s, %s, 2' % (sr(sT1), sr(sJ)))
    p('s_add_u32 %s, %s, %s' % (sr(sT2), sr(sT2), sr(sT1)))
    p('s_lshl_b32 %s, %s, 6' % (sr(sT2), sr(sT2)))
    p('s_mul_i32 %s, %s, %d' % (sr(sT0), sr(sB), 144 * 2304))
    p('s_mul_i32 %s, %s, 1152' % (sr(sT1), sr(sTyp)))
    p('s_add_u32 %s, %s, %s' % (sr(sT1), sr(sT1), sr(sT2)))
    p('s_add_u32 %s, %s, %s' % (sr(sT0), sr(sT0), sr(sT1)))
    p('s_add_u32 %s, %s, %s' % (sr(sX), sr(sOut), sr(sT0)))
    p('s_addc_u32 %s, %s, 0' % (sr(sX + 1), sr(sOut + 1)))
    p('s_sub_u32 %s, %d, %s' % (sr(sX + 2), 144 * 2304, sr(sT1)))
    p('s_mov_b32 %s, 0x20000' % sr(sX + 3))
    p('s_and_b32 %s, %s, 1' % (sr(sCur), sr(sJ)))
    for u in range(2):
        f, ln, q, n0, d1, x = t
        p('s_lshl_b32 %s, %s, 6' % (sr(sT0), sr(sW8)))
        p('s_add_u32 %s, %s, %d' % (sr(sT0), sr(sT0), 512 * u))
        p('v_add_u32 %s, %s, %s' % (vr(x), sr(sT0), vr(vLane)))
        p('v_mov_b32 %s, 0x2d0' % vr(q))
        p('v_cmp_gt_u32 %s, %s, %s' % (sr(sEx, 2), vr(q), vr(x)))
        p('s_mul_i32 %s, %s, 720' % (sr(sT0), sr(sS)))
        p('v_add_u32 %s, %s, %s' % (vr(U), sr(sT0), vr(x)))
        p('v_lshlrev_b32 %s, 4, %s' % (vr(VO[u]), vr(U)))
        p('v_lshrrev_b32 %s, 6, %s' % (vr(f), vr(U)))
        p('v_and_b32 %s, 63, %s' % (vr(ln), vr(U)))
        p('v_cmp_gt_u32 vcc, 40, %s' % vr(f))
        p('v_bfe_u32 %s, %s, 1, 2' % (vr(q), vr(f)))
        p('v_and_b32 %s, 31, %s' % (vr(x), vr(ln)))
        p('v_lshl_add_u32 %s, %s, 5, %s' % (vr(q), vr(q), vr(x)))
        p('v_lshrrev_b32 %s, 3, %s' % (vr(d1), vr(f)))
        p('v_lshlrev_b32 %s, 5, %s' % (vr(n0), vr(d1)))
        p('v_and_b32 %s, 1, %s' % (vr(x), vr(f)))
        p('v_lshl_add_u32 %s, %s, 4, %s' % (vr(n0), vr(x), vr(n0)))
        p('v_lshrrev_b32 %s, 5, %s' % (vr(x), vr(ln)))
        p('v_lshl_add_u32 %s, %s, 2, %s' % (vr(n0), vr(x), vr(n0)))
        p('v_mul_u32_u24 %s, 0x900, %s' % (vr(q), vr(q)))
        p('v_lshl_add_u32 %s, %s, 1, %s' % (vr(A0[u]), vr(n0), vr(q)))
        p('v_and_b32 %s, 15, %s' % (vr(q), vr(ln)))
        p('v_add_u32 %s, 0x80, %s' % (vr(q), vr(q)))
        p('v_mul_u32_u24 %s, 0x900, %s' % (vr(q), vr(q)))
        p('v_subrev_u32 %s, 40, %s' % (vr(f), vr(f)))
        p('v_lshlrev_b32 %s, 5, %s' % (vr(n0), vr(f)))
        p('v_lshrrev_b32 %s, 4, %s' % (vr(x), vr(ln)))
        p('v_lshl_add_u32 %s, %s, 2, %s' % (vr(n0), vr(x), vr(n0)))
        p('v_lshl_add_u32 %s, %s, 1, %s' % (vr(q), vr(n0), vr(q)))
        p('v_cndmask_b32 %s, %s, %s, vcc' % (vr(A0[u]), vr(q), vr(A0[u])))
        p('v_cndmask_b32 %s, %s, %s, vcc' % (vr(f), vr(f), vr(d1)))
        p('v_mov_b32 %s, 32' % vr(x))
        p('v_mov_b32 %s, 16' % vr(d1))
        p('v_cndmask_b32 %s, %s, %s, vcc' % (vr(d1), vr(x), vr(d1)))
        p('v_cmp_le_u32 vcc, %s, %s' % (sr(sCur), vr(f)))
        p('s_and_b64 %s, %s, vcc' % (sr(sEx, 2), sr(sEx, 2)))
        p('v_mov_b32 %s, 0x7f000000' % vr(x))
        p('v_cndmask_b32 %s, %s, %s, %s' % (vr(A0[u]), vr(x), vr(A0[u]), sr(sEx, 2)))
        p('v_cndmask_b32 %s, %s, %s, %s' % (vr(VO[u]), vr(x), vr(VO[u]), sr(sEx, 2)))
        p('v_add_u32 %s, %s, %s' % (vr(A0[u] + 1), vr(A0[u]), vr(d1)))
    p('s_waitcnt vmcnt(0)')
    p('s_barrier')
    p.ext(stamp(8))
    p.ext(gpublish('2', 0, 2, tFo2, tDb2, 0x100))
    p.ext(gpoll('2', 2, tPo2, tDb2, 8))
    p.ext(stamp(9))
    for u in range(2):
        for h in range(4):
            p('s_mov_b32 %s, %d' % (sr(sT1), h * 4 * PART_B))
            p('buffer_load_dwordx4 %s, %s, %s, %s offen sc1' % (vr(16 * u + 4 * h, 4), vr(VO[u]), sr(sG, 4), sr(sT1)))
    p('s_mov_b32 %s, 0x3f80' % sr(sT1))
    p('s_mov_b32 %s, 0x3f800000' % sr(sT2))
    for u in range(2):
        for h in range(4):
            p('s_waitcnt vmcnt(%d)' % (7 - 4 * u - h + 2 * u))
            for j in range(4):
                for hi, sel in ((0, sT1), (1, sT2)):
                    a = acc[u] + 2 * j + hi
                    p('v_dot2_f32_bf16 %s, %s, %s, %s' % (vr(a), vr(16 * u + 4 * h + j), sr(sel), '0' if h == 0 else vr(a)))
        for j in range(4):
            p('v_cvt_pk_bf16_f32 %s, %s, %s' % (vr(acc[u] + 8 + j), vr(acc[u] + 2 * j), vr(acc[u] + 2 * j + 1)))
        p('buffer_store_dwordx2 %s, %s, %s, 0 offen' % (vr(acc[u] + 8, 2), vr(A0[u]), sr(sX, 4)))
        p('buffer_store_dwordx2 %s, %s, %s, 0 offen' % (vr(acc[u] + 10, 2), vr(A0[u] + 1), sr(sX, 4)))
    if STAMP:
        p('s_waitcnt vmcnt(0)')
    p.ext(stamp(10))
    stamp_flush(p, 11)
    p.label('K_END')
    p('s_endpgm')


def kernel():
    p = P()
    p('s_cmp_ge_u32 s2, 256')
    p('s_cbranch_scc1 K_END')
    p('s_load_dwordx16 %s, s[0:1], 0x0' % sr(sKA, 16))
    p('s_load_dwordx4 %s, s[0:1], 0x40' % sr(sKA + 16, 4))
    p('s_load_dwordx4 %s, s[0:1], 0x50' % sr(sOut, 4))
    p('s_load_dwordx2 %s, s[0:1], 0x60' % sr(sWs, 2))
    if STAMP:
        p('s_memtime s[100:101]')
        p('s_memrealtime s[2:3]') if False else None
        p('s_memrealtime vcc')
        p('s_waitcnt lgkmcnt(0)')
        p('v_mov_b32 v12, vcc_lo')
        p('s_lshl_b32 s3, s2, 9')
        p('s_add_u32 s3, s3, 0x%x' % STAMP_OFF)
        p('s_add_u32 %s, %s, s3' % (sr(sG), sr(sWs)))
        p('s_addc_u32 %s, %s, 0' % (sr(sG + 1), sr(sWs + 1)))
        p('s_mov_b32 %s, 512' % sr(sG + 2))
        p('s_mov_b32 %s, 0x20000' % sr(sG + 3))
        p('v_and_b32 v13, 0x1c0, v0')
        p('buffer_store_dword v12, v13, %s, 0 offen offset:56' % sr(sG, 4))
    L = vLane
    p('v_and_b32 %s, 63, v0' % vr(L))
    p('v_lshrrev_b32 v1, 6, v0')
    p('s_and_b32 %s, s2, 7' % sr(sT0))
    p('v_readfirstlane_b32 %s, v1' % sr(sW8))
    p('s_lshr_b32 %s, s2, 3' % sr(sT1))
    p('s_bfe_u32 %s, %s, 0x30001' % (sr(sB), sr(sT1)))
    p('s_lshr_b32 %s, %s, 4' % (sr(sT2), sr(sT1)))
    p('s_lshl_b32 %s, %s, 1' % (sr(sT0), sr(sT0)))
    p('s_add_u32 %s, %s, %s' % (sr(sHP), sr(sT2), sr(sT0)))
    p('s_bcnt1_i32_b32 %s, %s' % (sr(sTyp), sr(sT1)))
    p('s_and_b32 %s, %s, 1' % (sr(sTyp), sr(sTyp)))
    p('s_lshr_b32 %s, %s, 2' % (sr(sE), sr(sW8)))
    p('s_and_b32 %s, %s, 3' % (sr(sWv), sr(sW8)))
    q4, r4, u, h, a_, c7, rd, tA, tB, tC, tV = range(1, 12)
    p('v_lshrrev_b32 %s, 4, %s' % (vr(q4), vr(L)))
    p('v_bfe_u32 %s, %s, 2, 2' % (vr(r4), vr(L)))
    p('v_and_b32 %s, 3, %s' % (vr(u), vr(L)))
    p('v_lshrrev_b32 %s, 5, %s' % (vr(h), vr(L)))
    p('v_bfe_u32 %s, %s, 4, 1' % (vr(a_), vr(L)))
    p('v_and_b32 %s, 7, %s' % (vr(c7), vr(L)))
    p('v_bfe_u32 %s, %s, 3, 2' % (vr(rd), vr(L)))
    p('v_lshlrev_b32 %s, 2, %s' % (vr(tA), vr(a_)))
    p('v_xor_b32 %s, %s, %s' % (vr(tA), vr(tA), vr(c7)))
    p('v_lshlrev_b32 %s, 4, %s' % (vr(tA), vr(tA)))
    p('v_lshl_add_u32 %s, %s, 7, %s' % (vr(tV), vr(h), vr(tA)))
    p('v_lshl_add_u32 %s, %s, 13, %s' % (vr(tA), vr(rd), vr(tV)))
    p('s_and_b32 %s, %s, 1' % (sr(sCnt), sr(sW8)))
    p('s_lshl_b32 %s, %s, 15' % (sr(sT0), sr(sCnt)))
    p('s_lshl_b32 %s, %s, 8' % (sr(sT1), sr(sE)))
    p('s_add_u32 %s, %s, %s' % (sr(sT0), sr(sT0), sr(sT1)))
    p('v_add_u32 %s, %s, %s' % (vr(voffW), sr(sT0), vr(tA)))
    p('s_sub_u32 %s, %s, 2' % (sr(sMx), sr(sW8)))
    p('v_lshrrev_b32 %s, 3, %s' % (vr(tC), vr(L)))
    p('v_mul_u32_u24 %s, 0x480, %s' % (vr(tC), vr(tC)))
    p('v_xor_b32 %s, %s, %s' % (vr(tB), vr(c7), vr(q4)))
    p('v_lshl_add_u32 %s, %s, 4, %s' % (vr(tA), vr(tB), vr(tC)))
    p('s_and_b32 %s, %s, 1' % (sr(sT0), sr(sW8)))
    p('s_lshl_b32 %s, %s, 2' % (sr(sT0), sr(sT0)))
    p('v_xor_b32 %s, %s, %s' % (vr(tA), sr(sT0), vr(tB)))
    p('v_lshl_add_u32 %s, %s, 4, %s' % (vr(tA), vr(tA), vr(tC)))
    p('s_mul_i32 %s, %s, 9216' % (sr(sT0), sr(sMx)))
    p('v_add_u32 %s, %s, %s' % (vr(voffX), sr(sT0), vr(tA)))
    p('s_lshl_b32 %s, %s, 2' % (sr(sT0), sr(sE)))
    p('v_xor_b32 %s, %s, %s' % (vr(tA), sr(sT0), vr(tB)))
    p('v_lshl_add_u32 %s, %s, 4, %s' % (vr(tA), vr(tA), vr(tC)))
    p('s_mul_i32 %s, %s, 9216' % (sr(sT0), sr(sE)))
    p('s_add_u32 %s, %s, %d' % (sr(sT0), sr(sT0), 128 * 1152))
    p('v_add_u32 %s, %s, %s' % (vr(voffX9), sr(sT0), vr(tA)))
    p('s_lshl_b32 %s, %s, 13' % (sr(sMw), sr(sE)))
    p('s_lshl_b32 %s, %s, 10' % (sr(sT0), sr(sCnt)))
    p('s_add_u32 %s, %s, %s' % (sr(sMw), sr(sMw), sr(sT0)))
    p('s_lshl_b32 %s, %s, 10' % (sr(sMx), sr(sMx)))
    p('s_lshl_b32 %s, %s, 10' % (sr(sQx), sr(sE)))
    p('s_add_u32 %s, %s, 0x4000' % (sr(sQx), sr(sQx)))
    p('s_lshl_b32 %s, %s, 5' % (sr(sT0), sr(sCnt)))
    p('s_mov_b32 %s, -1' % sr(sEx))
    p('s_mov_b32 %s, 0' % sr(sEx + 1))
    p('s_lshl_b64 %s, %s, %s' % (sr(sEx, 2), sr(sEx, 2), sr(sT0)))
    p('s_mul_i32 %s, s2, 5' % sr(sRot))
    p('s_lshr_b32 %s, s2, 5' % sr(sT0))
    p('s_add_u32 %s, %s, %s' % (sr(sRot), sr(sRot), sr(sT0)))
    p('s_lshl_b32 %s, %s, 4' % (sr(sT0), sr(sE)))
    p('s_mul_i32 %s, %s, %s' % (sr(sT0), sr(sT0), sr(sTyp)))
    p('s_add_u32 %s, %s, %s' % (sr(sRot), sr(sRot), sr(sT0)))
    if opt('rot', 0) == 1:
        p('s_mov_b32 %s, 0' % sr(sRot))
    elif opt('rot', 0) == 2:
        p('s_lshl_b32 %s, s2, 1' % sr(sRot))
        p('s_mul_i32 %s, %s, %s' % (sr(sT0), sr(sE), sr(sTyp)))
        p('s_add_u32 %s, %s, %s' % (sr(sRot), sr(sRot), sr(sT0)))
        p('s_mul_i32 %s, %s, 0x9e3779b1' % (sr(sRot), sr(sRot)))
        p('s_lshr_b32 %s, %s, 27' % (sr(sRot), sr(sRot)))
    elif opt('rot', 0) == 3:
        p('s_lshr_b32 %s, s2, 3' % sr(sRot))
    p('s_and_b32 %s, %s, 31' % (sr(sRot), sr(sRot)))
    p('s_lshl_b32 %s, %s, 13' % (sr(sRot), sr(sRot)))
    p('s_waitcnt lgkmcnt(0)')
    p('s_cmp_eq_u32 %s, 0' % sr(sTyp))
    for i, srd in enumerate((sX, sK, sV, sW, sWo)):
        p('s_cselect_b64 %s, %s, %s' % (sr(srd, 2), sr(sKA + 2 * i, 2), sr(sKA + 10 + 2 * i, 2)))
    p('s_lshl_b32 %s, %s, 9' % (sr(sT0), sr(sHP)))
    p('s_add_u32 %s, %s, %s' % (sr(sW), sr(sW), sr(sT0)))
    p('s_addc_u32 %s, %s, 0' % (sr(sW + 1), sr(sW + 1)))
    p('s_sub_u32 %s, %d, %s' % (sr(sW + 2), 576 * 8192, sr(sT0)))
    p('s_mov_b32 %s, 0x20000' % sr(sW + 3))

    def w_groups(m0base, so):
        g = [[m0base, 's_nop 0', 'buffer_load_dwordx4 %s, %s, %s offen%s lds' % (vr(voffW), sr(sW, 4), sr(so), NTW)]]
        for i in range(1, 4):
            g.append(['s_add_u32 m0, m0, 0x800', 's_add_u32 %s, %s, 0x%x' % (sr(sT0), sr(so), i * 65536),
                      'buffer_load_dwordx4 %s, %s, %s offen%s lds' % (vr(voffW), sr(sW, 4), sr(sT0), NTW)])
        return g

    def x_groups(m0base, m0x9, so):
        g = [[m0base, 's_nop 0', 'buffer_load_dwordx4 %s, %s, %s offen%s lds' % (vr(voffX), sr(sX, 4), sr(so), NTW)]]
        for i in range(1, 4):
            g.append(['s_add_u32 m0, m0, 0x1000', 's_add_u32 %s, %s, 0x%x' % (sr(sT0), sr(so), i * 36864),
                      'buffer_load_dwordx4 %s, %s, %s offen%s lds' % (vr(voffX), sr(sX, 4), sr(sT0), NTW)])
        g.append([m0x9, 's_mov_b64 exec, %s' % sr(sEx, 2),
                  'buffer_load_dwordx4 %s, %s, %s offen%s lds' % (vr(voffX9), sr(sX, 4), sr(so), NTW),
                  's_mov_b64 exec, -1'])
        return g

    def w_static(n):
        p('s_mov_b32 %s, 0x%x' % (sr(sT1), n * 262144))
        for g in w_groups('s_add_u32 m0, %s, 0x%x' % (sr(sMw), (n % 6 // 2) * SUP + (n & 1) * WBUF), sT1):
            p.ext(g)

    def x_static(T):
        buf = (T % 3) * SUP + 2 * WBUF
        p('s_mov_b32 %s, 0x%x' % (sr(sT1), T * 128))
        for g in x_groups('s_add_u32 m0, %s, 0x%x' % (sr(sMx), buf), 's_add_u32 m0, %s, 0x%x' % (sr(sQx), buf), sT1):
            p.ext(g)

    def w_dyn():
        return w_groups('s_add_u32 m0, %s, %s' % (sr(sMw), sr(sBufW)), sSoW)

    def x_dyn():
        return x_groups('s_add_u32 m0, %s, %s' % (sr(sMx), sr(sXW)), 's_add_u32 m0, %s, %s' % (sr(sQx), sr(sXW)), sSoX)

    def touch():
        return ['buffer_load_dword %s, %s, %s, %s offen%s' % (vr(vDum), vr(voffT), sr(sTc, 4), sr(sTo), NTT),
                's_add_u32 %s, %s, %s' % (sr(sTo), sr(sTo), sr(sTs)),
                's_and_b32 %s, %s, 0x3ffff' % (sr(sTo), sr(sTo))]

    p('s_mul_i32 %s, %s, 165888' % (sr(sT0), sr(sB)))
    p('s_add_u32 %s, %s, %s' % (sr(sX), sr(sX), sr(sT0)))
    p('s_addc_u32 %s, %s, 0' % (sr(sX + 1), sr(sX + 1)))
    p('s_mov_b32 %s, 165888' % sr(sX + 2))
    p('s_mov_b32 %s, 0x20000' % sr(sX + 3))
    p('s_add_u32 %s, %s, 2' % (sr(sRole), sr(sW8)))
    p('s_and_b32 %s, %s, 7' % (sr(sRole), sr(sRole)))
    p('s_cmp_lt_u32 %s, 4' % sr(sRole))
    p('s_cbranch_scc1 INIT_H')
    w_static(0)
    w_static(1)
    x_static(0)
    w_static(2)
    w_static(3)
    x_static(1)
    w_static(4)
    p.label('INIT_H')
    p('s_lshl_b32 %s, %s, 4' % (sr(sT0), sr(sB)))
    p('s_add_u32 %s, %s, %s' % (sr(sT0), sr(sT0), sr(sHP)))
    p('s_lshl_b32 %s, %s, 1' % (sr(sT1), sr(sT0)))
    p('s_add_u32 %s, %s, %s' % (sr(sT1), sr(sT1), sr(sE)))
    p('s_cmp_eq_u32 %s, 0' % sr(sTyp))
    p('s_cselect_b32 %s, %s, %s' % (sr(sT0), sr(sT0), sr(sT1)))
    p('s_lshl_b32 %s, %s, 18' % (sr(sT0), sr(sT0)))
    for srd in (sK, sV):
        p('s_add_u32 %s, %s, %s' % (sr(srd), sr(srd), sr(sT0)))
        p('s_addc_u32 %s, %s, 0' % (sr(srd + 1), sr(srd + 1)))
        p('s_mov_b32 %s, 0x40000' % sr(srd + 2))
        p('s_mov_b32 %s, 0x20000' % sr(srd + 3))
    p('s_lshl_b32 %s, %s, 4' % (sr(sT0), sr(sB)))
    p('s_add_u32 %s, %s, %s' % (sr(sT0), sr(sT0), sr(sHP)))
    p('s_lshl_b32 %s, %s, 1' % (sr(sT0), sr(sT0)))
    p('s_add_u32 %s, %s, %s' % (sr(sT0), sr(sT0), sr(sE)))
    p('s_lshl_b32 %s, %s, 18' % (sr(sT0), sr(sT0)))
    p('s_cmp_eq_u32 %s, 0' % sr(sCnt))
    p('s_cselect_b64 %s, %s, %s' % (sr(sTc, 2), sr(sKA + 12, 2), sr(sKA + 14, 2)))
    p('s_cselect_b32 %s, 0x%x, 0x%x' % (sr(sTo), (TU0 + 1) if not LT else 5 + LTD, TU0 if not LT else 3 + LTD))
    p('s_add_u32 %s, %s, %s' % (sr(sTc), sr(sTc), sr(sT0)))
    p('s_addc_u32 %s, %s, 0' % (sr(sTc + 1), sr(sTc + 1)))
    p('s_cmp_eq_u32 %s, 0' % sr(sTyp))
    p('s_cselect_b32 %s, 0x40000, 0' % sr(sTc + 2))
    p('s_mov_b32 %s, 0x20000' % sr(sTc + 3))
    p('s_xor_b32 %s, s2, 8' % sr(sT0))
    p('s_mul_i32 %s, %s, 5' % (sr(sT1), sr(sT0)))
    p('s_lshr_b32 %s, %s, 5' % (sr(sT0), sr(sT0)))
    p('s_add_u32 %s, %s, %s' % (sr(sT1), sr(sT1), sr(sT0)))
    p('s_lshl_b32 %s, %s, 4' % (sr(sT0), sr(sE)))
    p('s_add_u32 %s, %s, %s' % (sr(sT1), sr(sT1), sr(sT0)))
    p('s_add_u32 %s, %s, %s' % (sr(sTo), sr(sTo), sr(sT1)))
    p('s_and_b32 %s, %s, 31' % (sr(sTo), sr(sTo)))
    p('s_lshl_b32 %s, %s, 13' % (sr(sTo), sr(sTo)))
    p('s_mov_b32 %s, 0x%x' % (sr(sTs), 1 << TSB))
    p('v_lshlrev_b32 %s, %d, %s' % (vr(voffT), TSB - 6, vr(L)))
    p('v_mov_b32 v72, 0')
    p('s_cmp_lt_u32 %s, 4' % sr(sRole))
    p('s_cbranch_scc0 INIT_J')
    for i in range(opt('t0', 4) if TOUCH else 0):
        p.ext(touch())
    p.label('INIT_J')
    p('s_sub_u32 %s, %s, 2' % (sr(sMb), sr(sW8)))
    p('s_and_b32 %s, %s, 3' % (sr(sMb), sr(sMb)))
    p('s_cmp_eq_u32 %s, 0' % sr(sTyp))
    p('s_cselect_b32 %s, %s, %s' % (sr(sMb), sr(sMb), sr(sCnt)))
    p('s_lshl_b32 %s, %s, 10' % (sr(sMb), sr(sMb)))
    p('v_lshl_add_u32 %s, %s, 8, %s' % (vr(tA), vr(rd), vr(tV)))
    p('v_add_u32 %s, %s, %s' % (vr(voffV), sr(sMb), vr(tA)))
    p('s_lshr_b32 %s, %s, 9' % (sr(sT0), sr(sMb)))
    p('v_xor_b32 %s, %s, %s' % (vr(tA), vr(c7), vr(a_)))
    p('v_xor_b32 %s, %s, %s' % (vr(tA), sr(sT0), vr(tA)))
    p('v_lshlrev_b32 %s, 4, %s' % (vr(tA), vr(tA)))
    p('v_lshl_add_u32 %s, %s, 7, %s' % (vr(tA), vr(h), vr(tA)))
    p('v_lshl_add_u32 %s, %s, 8, %s' % (vr(tA), vr(rd), vr(tA)))
    p('v_add_u32 %s, %s, %s' % (vr(voffK), sr(sMb), vr(tA)))
    p('s_lshl_b32 %s, %s, 13' % (sr(sCur), sr(sE)))
    p('s_mul_i32 %s, %s, %s' % (sr(sCur), sr(sCur), sr(sTyp)))
    p('s_mul_i32 %s, %s, 0x%x' % (sr(sDelta), sr(sTyp), VRING - 8192))
    p('s_add_u32 %s, %s, %s' % (sr(sDelta), sr(sDelta), sr(sCur)))
    p('s_mul_i32 %s, %s, 0xc000' % (sr(sWr), sr(sTyp)))
    p('v_bfe_u32 %s, %s, 1, 1' % (vr(tC), vr(L)))
    p('v_lshl_add_u32 %s, %s, 1, %s' % (vr(tV), vr(r4), vr(tC)))
    p('v_bfe_u32 %s, %s, 2, 3' % (vr(tA), vr(L)))
    p('v_lshlrev_b32 %s, 10, %s' % (vr(tA), vr(tA)))
    p('v_lshl_add_u32 %s, %s, 7, %s' % (vr(tA), vr(u), vr(tA)))
    p('v_xor_b32 %s, %s, %s' % (vr(tB), vr(h), vr(tV)))
    p('v_lshl_add_u32 %s, %s, 4, %s' % (vr(tA), vr(tB), vr(tA)))
    p('v_add_u32 %s, %s, %s' % (vr(vKa[0]), sr(sCur), vr(tA)))
    for i in range(1, 4):
        p('v_xor_b32 %s, 0x%x, %s' % (vr(vKa[i]), 32 * i, vr(vKa[0])))
    p('v_xor_b32 %s, %s, %s' % (vr(tB), vr(q4), vr(tV)))
    p('v_lshlrev_b32 %s, 4, %s' % (vr(tB), vr(tB)))
    p('v_lshl_add_u32 %s, %s, 7, %s' % (vr(tB), vr(u), vr(tB)))
    p('v_lshl_add_u32 %s, %s, 10, %s' % (vr(bKr), vr(r4), vr(tB)))
    p('v_add_u32 %s, %s, %s' % (vr(bKr), sr(sCur), vr(bKr)))
    tR = c7
    p('v_lshrrev_b32 %s, 1, %s' % (vr(tB), vr(r4)))
    p('v_lshlrev_b32 %s, 6, %s' % (vr(tB), vr(tB)))
    p('v_lshl_add_u32 %s, %s, 7, %s' % (vr(tR), vr(r4), vr(tB)))
    c0 = rd
    p('v_and_b32 %s, 1, %s' % (vr(c0), vr(L)))
    p('v_lshl_add_u32 %s, %s, 4, %s' % (vr(tA), vr(tC), vr(tR)))
    p('v_lshl_add_u32 %s, %s, 3, %s' % (vr(tA), vr(c0), vr(tA)))
    p('v_add_u32 %s, 0x2000, %s' % (vr(tA), vr(tA)))
    p('v_add_u32 %s, %s, %s' % (vr(tA), sr(sDelta), vr(tA)))
    p('v_lshl_add_u32 %s, %s, 10, %s' % (vr(bVr), vr(q4), vr(tA)))
    p('v_lshl_add_u32 %s, %s, 5, %s' % (vr(tA), vr(a_), vr(tA)))
    p('v_lshl_add_u32 %s, %s, 10, %s' % (vr(tA), vr(h), vr(tA)))
    p('v_add_u32 %s, %s, %s' % (vr(vVa[0]), sr(sWr), vr(tA)))
    p('s_add_u32 %s, %s, %s' % (sr(sMb), sr(sMb), sr(sCur)))
    p('s_mov_b32 %s, 0' % sr(sCur))
    p('v_xor_b32 %s, 64, %s' % (vr(vVa[1]), vr(vVa[0])))
    vWm, vWr, vXm, vXr = [qBase + i for i in range(4)]
    p('v_lshl_add_u32 %s, %s, 4, %s' % (vr(tA), vr(c0), vr(tR)))
    p('v_lshl_add_u32 %s, %s, 3, %s' % (vr(tA), vr(tC), vr(tA)))
    p('v_lshl_add_u32 %s, %s, 5, %s' % (vr(tA), vr(a_), vr(tA)))
    p('v_lshl_add_u32 %s, %s, 11, %s' % (vr(tA), vr(h), vr(tA)))
    p('s_lshl_b32 %s, %s, 13' % (sr(sT0), sr(sE)))
    p('v_add_u32 %s, %s, %s' % (vr(vWm), sr(sT0), vr(tA)))
    p('v_lshl_add_u32 %s, %s, 4, %s' % (vr(tA), vr(u), vr(tR)))
    p('s_and_b32 %s, %s, 1' % (sr(sT1), sr(sWv)))
    p('s_lshl_b32 %s, %s, 6' % (sr(sT1), sr(sT1)))
    p('v_xor_b32 %s, %s, %s' % (vr(tA), sr(sT1), vr(tA)))
    p('v_lshl_add_u32 %s, %s, 11, %s' % (vr(tA), vr(q4), vr(tA)))
    p('s_lshr_b32 %s, %s, 1' % (sr(sT1), sr(sWv)))
    p('s_lshl_b32 %s, %s, 9' % (sr(sT1), sr(sT1)))
    p('s_add_u32 %s, %s, %s' % (sr(sT1), sr(sT1), sr(sT0)))
    p('v_add_u32 %s, %s, %s' % (vr(vWr), sr(sT1), vr(tA)))
    p('v_bfe_u32 %s, %s, 1, 3' % (vr(tC), vr(L)))
    p('v_and_b32 %s, 31, %s' % (vr(tA), vr(L)))
    p('v_lshlrev_b32 %s, 7, %s' % (vr(tA), vr(tA)))
    p('v_xor_b32 %s, %s, %s' % (vr(tB), vr(h), vr(tC)))
    p('v_lshl_add_u32 %s, %s, 4, %s' % (vr(tA), vr(tB), vr(tA)))
    p('s_lshl_b32 %s, %s, 12' % (sr(sT1), sr(sWv)))
    p('s_add_u32 %s, %s, 0x8000' % (sr(sT1), sr(sT1)))
    p('v_add_u32 %s, %s, %s' % (vr(vXm), sr(sT1), vr(tA)))
    p('v_and_b32 %s, 15, %s' % (vr(tA), vr(L)))
    p('v_lshlrev_b32 %s, 7, %s' % (vr(tA), vr(tA)))
    p('v_xor_b32 %s, %s, %s' % (vr(tB), vr(q4), vr(tC)))
    p('v_lshl_add_u32 %s, %s, 4, %s' % (vr(tA), vr(tB), vr(tA)))
    p('v_add_u32 %s, 0xc000, %s' % (vr(vXr), vr(tA)))
    p('s_mov_b32 %s, %s' % (sr(sScale), f32(math.log2(math.e) / math.sqrt(128.0))))
    p('s_mov_b32 %s, %s' % (sr(sThr), f32(THR)))
    p('s_lshr_b32 %s, %s, 2' % (sr(sT0), sr(sHP)))
    p('s_mul_i32 %s, %s, %d' % (sr(sT0), sr(sT0), 1024 * 1152))
    p('s_and_b32 %s, %s, 3' % (sr(sT1), sr(sHP)))
    p('s_lshr_b32 %s, %s, 1' % (sr(sT2), sr(sT1)))
    p('s_lshl_b32 %s, %s, 2' % (sr(sT1), sr(sT1)))
    p('s_add_u32 %s, %s, %s' % (sr(sT1), sr(sT1), sr(sT2)))
    p('s_lshl_b32 %s, %s, 6' % (sr(sT1), sr(sT1)))
    p('s_add_u32 %s, %s, %s' % (sr(sT0), sr(sT0), sr(sT1)))
    p('s_add_u32 %s, %s, %s' % (sr(sWo), sr(sWo), sr(sT0)))
    p('s_addc_u32 %s, %s, 0' % (sr(sWo + 1), sr(sWo + 1)))
    p('s_sub_u32 %s, %d, %s' % (sr(sWo + 2), 1024 * 1152, sr(sT1)))
    p('s_mov_b32 %s, 0x20000' % sr(sWo + 3))
    p('s_lshl_b32 %s, %s, 3' % (sr(sT0), sr(sTyp)))
    p('s_add_u32 %s, %s, %s' % (sr(sT0), sr(sT0), sr(sB)))
    p('s_lshl_b32 %s, %s, 12' % (sr(sT0), sr(sT0)))
    p('s_add_u32 %s, %s, 0x%x' % (sr(sT0), sr(sT0), FLAG_OFF))
    p('s_add_u32 %s, %s, %s' % (sr(sFl), sr(sWs), sr(sT0)))
    p('s_addc_u32 %s, %s, 0' % (sr(sFl + 1), sr(sWs + 1)))
    p('s_mov_b32 %s, 4096' % sr(sFl + 2))
    p('s_mov_b32 %s, 0x20000' % sr(sFl + 3))
    p('s_cmp_lg_u32 %s, 0' % sr(sW8))
    p('s_cbranch_scc1 NOCLR')
    p('s_lshl_b32 %s, %s, 8' % (sr(sT0), sr(sHP)))
    p('v_mov_b32 %s, 0' % vr(tA))
    p('v_lshlrev_b32 %s, 2, %s' % (vr(tB), vr(L)))
    p('buffer_store_dword %s, %s, %s, %s offen sc1' % (vr(tA), vr(tB), sr(sFl, 4), sr(sT0)))
    p.label('NOCLR')
    p('s_cmp_eq_u32 %s, 0' % sr(sTyp))
    for i, (ra, rb) in enumerate(zip([1, 2, 3, 0], [1, 0, 2, 3])):
        p('s_mov_b32 %s, 0x%x' % (sr(sT0), ra * SB))
        p('s_cselect_b32 %s, %s, 0x%x' % (sr(sR + i), sr(sT0), rb * SB))
    for i in range(8):
        p('v_mov_b32 %s, 0' % vr(64 + i))
    p('s_mov_b32 %s, 0' % sr(sBufR))
    p('s_mov_b32 %s, 0x%x' % (sr(sBufW), 2 * SUP + WBUF))
    p('s_mov_b32 %s, 0x%x' % (sr(sSoW), 5 * 262144))
    p('s_mov_b32 %s, 0x%x' % (sr(sXW), 2 * SUP + 2 * WBUF))
    p('s_mov_b32 %s, 0x%x' % (sr(sSoX), 2 * 128))
    p('s_mov_b32 %s, 6' % sr(sCnt))

    cW0, cW1, cWr, cX0, cX1, cXr = [qCur + i for i in range(6)]

    def rd_set(ks):
        S = qSet[ks]
        o = []
        for jt in range(4):
            for pp in range(2):
                o.append('ds_read_b64_tr_b16 %s, %s offset:%d' % (vr(S + 4 * jt + 2 * pp, 2), vr(cW1 if jt & 1 else cW0), ks * 4096 + pp * 1024 + (jt >> 1) * 512))
        o.append('ds_read_b128 %s, %s' % (vr(S + 16, 4), vr(cX0 if ks == 0 else cX1)))
        return o

    def rd_rem():
        o = []
        for Ts in range(2):
            for pp in range(2):
                o.append('ds_read_b64_tr_b16 %s, %s offset:%d' % (vr(qRem + 4 * Ts + 2 * pp, 2), vr(cWr), pp * 1024 + 8 * Ts))
        o.append('ds_read_b128 %s, %s' % (vr(qRem + 8, 4), vr(cXr)))
        return o

    def mf_set(ks, init):
        S = qSet[ks]
        return ['v_mfma_f32_32x32x16_bf16 %s, %s, %s, %s' % (vr(16 * jt, 16), vr(S + 4 * jt, 4), vr(S + 16, 4), '0' if init else vr(16 * jt, 16)) for jt in range(4)]

    def mf_rem():
        return ['v_mfma_f32_16x16x32_bf16 %s, %s, %s, %s' % (vr(64 + 4 * Ts, 4), vr(qRem + 4 * Ts, 4), vr(qRem + 8, 4), vr(64 + 4 * Ts, 4)) for Ts in range(2)]

    def sub(cp, first, light, parts=None, nv=17, tailmode=False):
        if cp == 0:
            p('v_add_u32 %s, %s, %s' % (vr(cW0), sr(sBufR), vr(vWm)))
            p('v_add_u32 %s, %s, %s' % (vr(cWr), sr(sBufR), vr(vWr)))
            p('v_add_u32 %s, %s, %s' % (vr(cX0), sr(sBufR), vr(vXm)))
            p('v_add_u32 %s, %s, %s' % (vr(cXr), sr(sBufR), vr(vXr)))
        else:
            p('v_add_u32 %s, 0x4000, %s' % (vr(cW0), vr(cW0)))
            p('v_add_u32 %s, 0x4000, %s' % (vr(cWr), vr(cWr)))
            p('v_xor_b32 %s, 64, %s' % (vr(cX0), vr(cX0)))
            p('v_xor_b32 %s, 64, %s' % (vr(cXr), vr(cXr)))
        p('v_xor_b32 %s, 64, %s' % (vr(cW1), vr(cW0)))
        p('v_xor_b32 %s, 32, %s' % (vr(cX1), vr(cX0)))
        p('s_waitcnt vmcnt(%d) lgkmcnt(0)' % nv if (cp == 0 and light) else 's_waitcnt lgkmcnt(0)')
        p('s_barrier')
        if first:
            p.ext(stamp(1))
        p.ext(rd_set(0))
        if parts is None:
            parts = (w_dyn() + (x_dyn() if cp == 0 else [])) if light else ([touch()] if TOUCH else [])
        parts = list(parts)
        if not first:
            for i, m in enumerate(mf_set(1, False) + mf_rem()):
                p(m)
                if parts:
                    p.ext(parts.pop(0))
        else:
            for g in parts[:5]:
                p.ext(g)
            parts = parts[5:]
        r1 = rd_set(1) + rd_rem()
        p.ext(r1[:6])
        p('s_waitcnt lgkmcnt(6)')
        rest = r1[6:]
        upd = []
        if light and not tailmode:
            upd += ['s_add_u32 %s, %s, 0x%x' % (sr(sBufW), sr(sBufR), cp * WBUF),
                    's_add_u32 %s, %s, 0x40000' % (sr(sSoW), sr(sSoW)),
                    's_cmp_ge_u32 %s, 0x%x' % (sr(sSoW), 18 * 262144),
                    's_cselect_b32 %s, 0x%x, %s' % (sr(sBufW), LDS_DROP, sr(sBufW))]
            if cp == 1:
                upd += ['s_add_u32 %s, %s, 0x%x' % (sr(sXW), sr(sBufR), 2 * WBUF),
                        's_add_u32 %s, %s, 128' % (sr(sSoX), sr(sSoX))]
        if cp == 1:
            upd += ['s_add_u32 %s, %s, 0x%x' % (sr(sBufR), sr(sBufR), SUP),
                    's_cmp_ge_u32 %s, 0x%x' % (sr(sBufR), 3 * SUP),
                    's_cselect_b32 %s, 0, %s' % (sr(sBufR), sr(sBufR))]
        for i, m in enumerate(mf_set(0, first)):
            p(m)
            p.ext(rest[3 * i:3 * i + 3])
            if parts:
                p.ext(parts.pop(0))
        for g in parts:
            p.ext(g)
        p.ext(upd)

    def fill_units(typ, units):
        at = Attn(typ, 'L')
        fix = lambda g: [t.replace(vr(voffK1) + ',', vr(72) + ',') for t in g]
        out = []
        if typ == 1:
            for kind, i in units:
                so = sSk0 if kind == 'K' else sSv
                pre = ['s_add_u32 %s, %s, 0x%x' % (sr(so), sr(sRot), i * 8192), 's_and_b32 %s, %s, 0x3ffff' % (sr(so), sr(so)),
                       's_mov_b32 %s, 0x%x' % (sr(sWr), i * 16384)]
                if (kind, i) == ('K', 0):
                    pre = ['v_xor_b32 %s, 64, %s' % (vr(72), vr(voffK))] + pre
                cur = list(pre)
                for g in (at.k_dma(sWr, so) if kind == 'K' else at.v_dma(sWr, so)):
                    for t in fix(g):
                        cur.append(t)
                        if t.startswith('buffer_load'):
                            out.append(cur)
                            cur = []
            return out
        for un in units:
            d = [fix(g) for g in at.dma_singles()]
            if un == -1:
                d = d[:len(d) // 2]
                d[0] = ['v_xor_b32 %s, 64, %s' % (vr(72), vr(voffK)), 's_mov_b32 %s, %s' % (sr(sSk0), sr(sRot)),
                        's_mov_b32 %s, %s' % (sr(sWr), sr(sCur)), 's_mov_b32 %s, -1' % sr(sCv)] + d[0]
            else:
                d[0] = at.unit_adv() + ['s_add_u32 %s, %s, 0x%x' % (sr(sWr), sr(sCur), (un + 1) * at.stride)] + d[0]
            out += d
        return out

    p('s_cmp_lt_u32 %s, 4' % sr(sRole))
    p('s_cbranch_scc1 QH')
    for light in (True, False):
        if not light:
            p.label('QH')
        elif opt('qprio', 1):
            p('s_setprio 1')
        sub(0, True, light)
        sub(1, False, light)
        p.label('QLOOP%d' % light)
        sub(0, False, light)
        sub(1, False, light)
        p('s_sub_u32 %s, %s, 1' % (sr(sCnt), sr(sCnt)))
        p('s_cmp_lg_u32 %s, 0' % sr(sCnt))
        p('s_cbranch_scc1 QLOOP%d' % light)
        if light:
            p('s_cmp_eq_u32 %s, 0' % sr(sTyp))
            p('s_cbranch_scc0 QTB')
            for typ in (0, 1):
                if typ:
                    p.label('QTB')
                plan = [[-1, 0, 1], [2], [], []] if typ == 0 else [[('K', 0), ('K', 1), ('K', 2)], [('K', 3)], [('V', 0)], [('V', 1)]]
                if typ == 0:
                    plan = [[u for u in pl if u < DDA] for pl in plan]
                f = [fill_units(typ, pl) for pl in plan]
                sub(0, False, True, parts=f[0], nv=17, tailmode=True)
                sub(1, False, True, parts=f[1], tailmode=True)
                sub(0, False, True, parts=f[2], nv=4 + len(f[0]) + len(f[1]), tailmode=True)
                sub(1, False, True, parts=f[3], tailmode=True)
                p('s_branch QX')
        else:
            for T in range(2):
                sub(0, False, False, parts=[])
                sub(1, False, False, parts=[])
    p.label('QX')
    p('s_waitcnt lgkmcnt(0)')
    p('s_barrier')
    p.ext(stamp(2))
    p('s_add_u32 %s, %s, %s' % (sr(sT1), sr(sCur), sr(sMb)))
    p('s_lshl_b32 %s, %s, 12' % (sr(sT0), sr(sE)))
    p('s_mov_b32 %s, 0x2000' % sr(sT2))
    p('s_cmp_eq_u32 %s, 0' % sr(sTyp))
    p('s_cselect_b32 %s, %s, 0x%x' % (sr(sT2), sr(sT2), FLAGS + 1024))
    p('s_add_u32 %s, %s, %s' % (sr(sQx), sr(sT0), sr(sT2)))
    p('s_cmp_eq_u32 %s, 0' % sr(sTyp))
    p('s_cbranch_scc1 NOFLAGCLR')
    p('v_lshlrev_b32 %s, 2, %s' % (vr(vA), vr(vLane)))
    p('v_and_b32 %s, 0x7c, %s' % (vr(vA), vr(vA)))
    p('v_add_u32 %s, 0x%x, %s' % (vr(vA), FLAGS, vr(vA)))
    p('v_mov_b32 %s, 0' % vr(vB))
    p('ds_write_b32 %s, %s' % (vr(vA), vr(vB)))
    p.label('NOFLAGCLR')

    def rot_off(dst, off):
        return ['s_add_u32 %s, %s, 0x%x' % (sr(dst), sr(sRot), off), 's_and_b32 %s, %s, 0x3ffff' % (sr(dst), sr(dst))]

    def packq(nv):
        for i in range(36):
            p('v_pk_mul_f32 %s, %s, %s' % (vr(2 * i, 2), vr(2 * i, 2), sr(sScale, 2)))
        for i in range(32):
            p('v_cvt_pk_bf16_f32 %s, %s, %s' % (vr(vQ + i), vr(2 * i), vr(2 * i + 1)))
        for i in range(4):
            p('v_cvt_pk_bf16_f32 %s, %s, %s' % (vr(vQr + i), vr(64 + 2 * i), vr(64 + 2 * i + 1)))
        p('v_lshlrev_b32 %s, 4, %s' % (vr(vA), vr(vLane)))
        p('s_lshl_b32 %s, %s, 10' % (sr(sT0), sr(sWv)))
        p('s_add_u32 %s, %s, %s' % (sr(sT0), sr(sT0), sr(sQx)))
        p('v_add_u32 %s, %s, %s' % (vr(vA), sr(sT0), vr(vA)))
        p('ds_write_b128 %s, %s' % (vr(vA), vr(vQr, 4)))
        p('s_waitcnt vmcnt(%d) lgkmcnt(0)' % nv)
        p('s_barrier')

    def dispatch(T):
        p('s_add_u32 %s, %s, 2' % (sr(sT0), sr(sW8)))
        p('s_and_b32 %s, %s, 7' % (sr(sT0), sr(sT0)))
        p('s_cmp_ge_u32 %s, 4' % sr(sT0))
        p('s_cbranch_scc1 ATT_%sL' % T)
        p('s_bitcmp1_b32 %s, 0' % sr(sW8))
        p('s_cbranch_scc1 ATT_%sY' % T)

    for m in mf_set(1, False) + mf_rem():
        p(m)
    p('s_mov_b32 %s, %s' % (sr(sCnt), sr(sRole)))
    p('s_mov_b32 %s, %s' % (sr(sScale + 1), sr(sScale)))
    p('s_cmp_eq_u32 %s, 0' % sr(sTyp))
    p('s_cbranch_scc0 FILL_B')
    for typ, T in ((0, 'A'), (1, 'B')):
        if typ:
            p.label('FILL_B')
        at = Attn(typ, 'L')
        p('s_cmp_lt_u32 %s, 4' % sr(sCnt))
        p('s_cbranch_scc1 NOFILL_%s' % T)
        for g in fill_units(typ, range(3, at.DD) if typ == 0 else [('V', 2), ('K', 4)]):
            p.ext(g)
        p.label('NOFILL_%s' % T)
        packq(at.DD * at.nd)
        dispatch(T)
        for role in 'XLY':
            Attn(typ, role).emit(p)
    tail(p, 'L')
    tail(p, 'X')
    tail(p, 'Y')
    tail_common(p)
    outproj(p, 1)
    outproj(p, 0)
    sync_reduce(p)
    return p.L


def desc(name, vg, sg=102):
    return """.amdhsa_kernel %s
  .amdhsa_next_free_vgpr %d
  .amdhsa_next_free_sgpr %d
  .amdhsa_accum_offset %d
  .amdhsa_group_segment_fixed_size 0
  .amdhsa_kernarg_size 104
  .amdhsa_user_sgpr_count 2
  .amdhsa_user_sgpr_kernarg_segment_ptr 1
  .amdhsa_system_sgpr_workgroup_id_x 1
.end_amdhsa_kernel
""" % (name, vg, sg, (vg + 3) // 4 * 4)


def main():
    out_path = opt('o', 'cdna_kernels/%s.s' % NAME)
    kn = NAME + '_kernel'
    hdr = open('cdna_kernels/%s.s.ref' % NAME).read().split('; Override launch')[0]
    out = [hdr.rstrip('\n')]
    if '--list' in ARGS:
        out.append('; @launch kernel=%s grid=(256,1,1) block=(512,1,1) lds=%d' % (kn, LDS_TOTAL))
    else:
        out.append('; @launch grid=(256,1,1) block=(512,1,1) lds=%d' % LDS_TOTAL)
    out.append('.amdgcn_target "amdgcn-amd-amdhsa--gfx950"')
    out.append('.text')
    L2, tot = chk.fix_hazards(kernel(), verbose='-v' in ARGS)
    errs = [e for e in chk.check_waits(L2, ignore=('v%d' % vDum,)) if "['v%d']" % vDum not in e]
    if '--nomem' in ARGS or '--nocompute' in ARGS:
        errs = []
    print('%d lines, %d nop states inserted, %d wait errors' % (len(L2), tot, len(errs)))
    for e in errs[:20]:
        print('   ', e)
    out += ['.globl %s' % kn, '.p2align 8', '.type %s,@function' % kn, '%s:' % kn] + L2
    out.append('.section .rodata,"a"')
    out.append('.p2align 6')
    out.append(desc(kn, 256, 102))
    open(out_path, 'w').write('\n'.join(out) + '\n')


if __name__ == '__main__':
    main()
```
